```python
import torch

def _softmax(x, axis=-1):
    return torch.softmax(x, dim=axis)
def _gelu(x):
    return torch.nn.functional.gelu(x, approximate="tanh")
def _silu(x):
    return torch.nn.functional.silu(x)
def _sigmoid(x):
    return torch.sigmoid(x)
def _layernorm(x, axis=-1, eps=1e-5):
    m = x.mean(dim=axis, keepdim=True)
    v = x.var(dim=axis, keepdim=True, unbiased=False)
    return (x - m) / torch.sqrt(v + eps)
def _scatter_add(tgt, idx, src, axis=0):
    return tgt.clone().index_add_(axis, idx, src)
def _segment_sum(src, seg, n):
    out = torch.zeros((n,) + src.shape[1:], dtype=src.dtype)
    return out.index_add_(0, seg, src)
def _pad(x, pw):
    flat = tuple(v for pair in reversed(pw) for v in pair)
    return torch.nn.functional.pad(x, flat)

kernel_name = 'sequential_preLN__mha_block__moe_arch_mod__prompt'

def setup_inputs():

    _w = (lambda a: (lambda t: t.to(torch.bfloat16) if t.is_floating_point() else t)(torch.as_tensor(a)))
    def _A_setup():
        B, S, D, H = 1, 2048, 448, 16
        return {
            "x": _w((lambda *s: torch.randn(*s, dtype=torch.bfloat16) * 0.05)(B, S, D)),
            "wqkv": _w((lambda *s: torch.randn(*s, dtype=torch.bfloat16) * 0.05)(D, 3 * D)),
            "wo": _w((lambda *s: torch.randn(*s, dtype=torch.bfloat16) * 0.05)(D, D)),
        }
    _A_in = _A_setup()

    def _B_setup():
        B, S, D, F, C = 1, 2048, 448, 1792, 2
        return {
            "x": _w((lambda *s: torch.randn(*s, dtype=torch.bfloat16) * 0.05)(B, S, D)),
            "w_r": _w((lambda *s: torch.randn(*s, dtype=torch.bfloat16) * 0.05)(D)),
            "w_gate": _w((lambda *s: torch.randn(*s, dtype=torch.bfloat16) * 0.05)(D, F)),
            "w_up": _w((lambda *s: torch.randn(*s, dtype=torch.bfloat16) * 0.05)(D, F)),
            "w_down": _w((lambda *s: torch.randn(*s, dtype=torch.bfloat16) * 0.05)(F, D)),
        }
    _B_in = _B_setup()

    return {
        "A_x": _A_in["x"],
        "A_wqkv": _A_in["wqkv"],
        "A_wo": _A_in["wo"],
        "B_x": _B_in["x"],
        "B_w_r": _B_in["w_r"],
        "B_w_gate": _B_in["w_gate"],
        "B_w_up": _B_in["w_up"],
        "B_w_down": _B_in["w_down"],
    }

def reference(A_x, A_wqkv, A_wo, B_x, B_w_r, B_w_gate, B_w_up, B_w_down):
    def _A_ref(x, wqkv, wo):
        B, S, D = x.shape
        H = 16
        Dh = D // H
        qkv = (lambda x, *d: x.permute(*d))((x @ wqkv).reshape(B, S, 3, H, Dh), 2, 0, 3, 1, 4)
        q, k, v = qkv[0], qkv[1], qkv[2]
        scores = torch.einsum("bhqd,bhkd->bhqk", q, k) * (Dh ** -0.5)
        p = _softmax(scores, axis=-1)
        o = torch.einsum("bhqk,bhkd->bhqd", p, v)
        return (lambda x, *d: x.permute(*d))(o, 0, 2, 1, 3).reshape(B, S, D) @ wo

    def _B_ref(x, w_r, w_gate, w_up, w_down):
        B, S, D = x.shape
        C = 2
        r = x @ w_r
        idx = torch.argsort(-r, axis=-1)[:, :C]
        idx_e = (lambda x, n, axis: torch.repeat_interleave(x, n, dim=axis))(idx.reshape(B, C, 1), D, axis=2)
        x_sel = (lambda x, i, axis: torch.take_along_dim(x, i, dim=axis))(x, idx_e, axis=1)
        g = _silu(x_sel @ w_gate)
        u = x_sel @ w_up
        y = (g * u) @ w_down
        r_sel = _sigmoid((lambda x, i, axis: torch.take_along_dim(x, i, dim=axis))(r, idx, axis=1))
        y = y * r_sel.reshape(B, C, 1)
        b_off = (torch.arange(B) * S).reshape(B, 1)
        flat_idx = (idx + b_off).reshape(B * C)
        zero = (x * 0.0).reshape(B * S, D)
        upd = _scatter_add(zero, flat_idx, y.reshape(B * C, D), axis=0)
        return x + upd.reshape(B, S, D)

    x = A_x
    h = x + _A_ref(_layernorm(x, axis=-1), A_wqkv, A_wo)
    h2 = h + _B_ref(_layernorm(h, axis=-1), B_w_r, B_w_gate, B_w_up, B_w_down)
    return h2
```

```python
class Asm:
    def __init__(self):
        self.L = []
    def __call__(self, s=""):
        for l in s.strip("\n").split("\n"):
            l = l.strip()
            if not l: continue
            if l.startswith(";") or l.endswith(":") or l.startswith("."):
                self.L.append(l)
            else:
                self.L.append("    " + l)
    def text(self):
        return "\n".join(self.L) + "\n"

def vr(b, n=1):
    return f"v{b}" if n == 1 else f"v[{b}:{b+n-1}]"
def sr(b, n=1):
    return f"s{b}" if n == 1 else f"s[{b}:{b+n-1}]"
def ar(b, n=1):
    return f"a{b}" if n == 1 else f"a[{b}:{b+n-1}]"

def srd(a, d, b, nbytes):
    a(f"""s_mov_b32 s{d}, s{b}
    s_mov_b32 s{d+1}, s{b+1}
    s_mov_b32 s{d+2}, {nbytes}
    s_mov_b32 s{d+3}, 0x00020000""")

def kdesc(name, vgpr, sgpr=102, accum=None):
    accum = accum if accum is not None else ((min(vgpr, 256) + 3) // 4 * 4)
    return f""".p2align 6
.amdhsa_kernel {name}
  .amdhsa_next_free_vgpr {vgpr}
  .amdhsa_next_free_sgpr {sgpr}
  .amdhsa_accum_offset {accum}
  .amdhsa_group_segment_fixed_size 0
  .amdhsa_kernarg_size 88
  .amdhsa_user_sgpr_count 2
  .amdhsa_user_sgpr_kernarg_segment_ptr 1
  .amdhsa_system_sgpr_workgroup_id_x 1
.end_amdhsa_kernel
"""
def khead(name):
    return f""".globl {name}
.p2align 8
.type {name},@function
{name}:
"""
```

```python
import re
TRANS = ("v_exp_f32", "v_log_f32", "v_rcp_f32", "v_rsq_f32", "v_sqrt_f32", "v_sin_f32", "v_cos_f32")
def regs(op):
    op = op.strip().strip("|")
    if op.startswith("-"): op = op[1:].strip("|")
    m = re.fullmatch(r"([vsa])(\d+)", op)
    if m: return {(m.group(1), int(m.group(2)))}
    m = re.fullmatch(r"([vsa])\[(\d+):(\d+)\]", op)
    if m: return {(m.group(1), i) for i in range(int(m.group(2)), int(m.group(3)) + 1)}
    if op == "vcc": return {("s", "vcc_lo"), ("s", "vcc_hi")}
    if op in ("vcc_lo", "vcc_hi", "exec_lo", "exec_hi", "m0"): return {("s", op)}
    if op == "exec": return {("s", "exec_lo"), ("s", "exec_hi")}
    return set()
class I:
    def __init__(self, text):
        self.text = text
        t = text.split(";")[0].strip()
        self.label = t[:-1] if t.endswith(":") else None
        self.dir = t.startswith(".") or t == ""
        self.mn = None; self.R = set(); self.W = set(); self.kind = None
        self.states = 0
        if self.label or self.dir: return
        p = t.split(None, 1)
        mn = self.mn = p[0]
        rest = p[1] if len(p) > 1 else ""
        ops = []; cur = ""; d = 0
        for ch in rest:
            if ch == "[": d += 1
            if ch == "]": d -= 1
            if ch == "," and d == 0: ops.append(cur.strip()); cur = ""
            else: cur += ch
        if cur.strip(): ops.append(cur.strip())
        mods = ""
        if ops:
            q = ops[-1].split(None, 1)
            ops[-1] = q[0]; mods = q[1] if len(q) > 1 else ""
        self.ops = ops; self.mods = mods
        self.states = 1
        U = lambda l: set().union(*[regs(o) for o in l]) if l else set()
        if mn == "s_nop": self.kind = "nop"; self.states = int(ops[0]) + 1
        elif mn.startswith("v_mfma") or mn.startswith("v_smfmac"):
            self.kind = "mfma"; self.W = regs(ops[0]); self.AB = regs(ops[1]) | regs(ops[2])
            if mn.startswith("v_smfmac"): self.C = regs(ops[0]); self.AB |= regs(ops[3])
            else: self.C = regs(ops[3])
            self.R = self.AB | self.C
            self.passes = 8 if "32x32" in mn else 4
        elif mn.startswith("v_"):
            self.kind = "valu"
            self.W = regs(ops[0]); self.R = U(ops[1:])
            if "permlane" in mn: self.W |= regs(ops[1]); self.R |= regs(ops[0])
            if mn.startswith(("v_dot2c", "v_fmac", "v_writelane")) or "_dpp" in mn: self.R |= regs(ops[0])
            if mn.startswith("v_cmpx"): self.W |= regs("exec")
            if "_co_" in mn: self.W |= regs(ops[1])
        elif mn.startswith("ds_"):
            self.kind = "mem"
            if mn.startswith(("ds_read", "ds_bpermute", "ds_permute", "ds_swizzle")) or "_rtn" in mn:
                self.W = regs(ops[0]); self.R = U(ops[1:])
            else: self.R = U(ops)
        elif mn.startswith(("buffer_", "global_")):
            self.kind = "mem"; self.vmem = True
            lds = " lds" in " " + mods or "_lds_" in mn
            if "load" in mn and not lds: self.W = regs(ops[0]); self.R = U(ops[1:])
            else: self.R = U(ops)
            if lds: self.R |= regs("m0"); self.lds = True
            if "store" in mn and mn.endswith(("x3", "x4")):
                self.wide = regs(ops[0]) if mn.startswith("buffer") else regs(ops[1])
        elif mn.startswith("s_"):
            self.kind = "salu"
            if mn.startswith(("s_cmp", "s_bitcmp")): self.R = U(ops)
            elif mn.startswith(("s_cbranch", "s_branch", "s_waitcnt", "s_barrier", "s_setprio", "s_endpgm", "s_sleep")): pass
            else:
                self.W = regs(ops[0]); self.R = U(ops[1:])
                if "saveexec" in mn: self.W |= regs("exec")
        else: raise ValueError("unknown instr " + t)
def isv(s): return {r for r in s if r[0] in "va"}
def iss(s): return {r for r in s if r[0] == "s"}
def need(p, c):
    n = 0
    if p.kind == "valu":
        vw = isv(p.W); sw = iss(p.W)
        dl = p.mn.startswith("v_dot")
        if c.kind == "mfma" and vw & c.R: n = max(n, 3 if dl else 2)
        if c.kind == "mfma" and ("s", "exec_lo") in sw: n = max(n, 4)
        if c.kind == "valu":
            if vw & c.R:
                if c.mn.startswith(("v_readlane", "v_readfirstlane")): n = max(n, 1)
                if "_dpp" in c.mn or "permlane" in c.mn: n = max(n, 2)
                if p.mn in TRANS and c.mn not in TRANS: n = max(n, 1)
            if dl and (vw & (c.R | c.W)):
                same_c = c.mn == p.mn and not (vw & set().union(*[regs(o) for o in c.ops[1:3]]))
                if not same_c: n = max(n, 3)
            if sw & c.R:
                n = max(n, 4 if c.mn.startswith(("v_readlane", "v_writelane")) else 2)
            if ("s", "exec_lo") in sw:
                if "_dpp" in c.mn: n = max(n, 5)
                if "permlane" in c.mn or c.mn.startswith(("v_readlane", "v_readfirstlane", "v_writelane")): n = max(n, 4)
        if c.kind == "mem":
            if dl and vw & (c.R | c.W): n = max(n, 3)
            if p.mn in TRANS and vw & c.R: n = max(n, 1)
            if getattr(c, "vmem", False) and sw & c.R: n = max(n, 5)
    elif p.kind == "mfma":
        full = {8: 12, 4: 8}[p.passes]
        if c.kind == "mfma":
            if p.W & c.AB: n = max(n, full)
            if p.W & c.C and not (p.W == c.C and p.passes == c.passes): n = max(n, {8: 10, 4: 6}[p.passes])
        elif c.kind in ("valu", "mem"):
            if p.W & (c.R | c.W): n = max(n, full)
            if c.kind == "valu" and p.C & c.W: n = max(n, {8: 7, 4: 3}[p.passes])
    elif p.kind == "mem":
        w = getattr(p, "wide", None)
        if w and (w & c.W): n = max(n, 2)
        if c.kind == "valu" and "_dpp" in c.mn and False: pass
    elif p.kind == "salu":
        if ("s", "m0") in p.W and getattr(c, "lds", False): n = max(n, 1)
    return n
MAXD = 12
def fix(lines, verbose=False):
    ins = [I(l) for l in lines]
    total = 0
    changed = True
    while changed:
        changed = False
        lab = {x.label: i for i, x in enumerate(ins) if x.label}
        src = {}
        for i, x in enumerate(ins):
            if x.mn and x.mn.startswith(("s_cbranch", "s_branch")): src.setdefault(lab[x.ops[0]], []).append(i)
        def preds(i):
            out = list(src.get(i, []))
            if i > 0 and ins[i - 1].mn not in ("s_branch", "s_endpgm"): out.append(i - 1)
            return out
        for i, c in enumerate(ins):
            if c.kind not in ("valu", "mfma", "mem"): continue
            short = 0; why = None
            stack = [(p, 0) for p in preds(i)]; seen = {}
            while stack:
                j, d = stack.pop()
                if d >= MAXD or seen.get(j, 99) <= d: continue
                seen[j] = d
                p = ins[j]
                if p.kind:
                    n = need(p, c)
                    if n - d > short: short = n - d; why = p
                for k in preds(j): stack.append((k, d + p.states))
            if short > 0:
                if verbose: print(f"hazard: +{short} before '{c.text.strip()}' (after '{why.text.strip()}')")
                ins.insert(i, I(f"    s_nop {short - 1}"))
                total += 1; changed = True
                break
    return [x.text for x in ins], total
```

```python
import sys, math
sys.path.insert(0, "gen")
from asmlib import *
import hazard

NAME = "sequential_preLN__mha_block__moe_arch_mod__prompt"
MF = "v_mfma_f32_32x32x16_bf16"
M16 = "v_mfma_f32_16x16x32_bf16"
SM = "v_smfmac_f32_32x32x32_bf16"
WS_FLAG = 0x1000; WS_SCORE = 0x10000; WS_PART = 0x20000; WS_STAT = 0x80000
WS_KV = 0x100000; WS_O = 0x600000; WS_CAND = 0x800000; WS_DBG = 0xC00000; WS_SIZE = 0x1000000
L_W = 65536
L_W2 = 98304
L_QX = L_W2 + 32768
L_MISC = 155648
L_SCR = L_MISC
L_BAD = L_MISC + 1024
L_KEY = L_MISC + 1280
L_SEL = L_MISC + 1536
L_XS = L_MISC + 2048
L_A = L_MISC + 4096
L_FIN = L_MISC + 4608
L_BASE = L_MISC + 6656
L_EX = 32768
L_WU = 32768
sX, sW, sWS, sW2, sOUT = 8, 12, 16, 20, 24
sWAVE, sRT, sGRP, sQB, sH, sTAG, sROT = 28, 29, 30, 31, 32, 33, 34
sJ, sXCD, sRB, sCG, sF, sRETRY, sONES, sSPIN = 51, 52, 53, 54, 55, 56, 57, 58
sK1, sK2 = 59, 60
pX, pW, pWO, pWR, pWG, pWU, pWD, pOUT, pWS = 64, 66, 68, 72, 74, 76, 78, 80, 84
SPIN = 50000
EPS = 0x3727C5AC
def f2u(x):
    import struct
    return struct.unpack("<I", struct.pack("<f", x))[0]

class Vm:
    def __init__(self): self.q = []
    def add(self, tag, n=1): self.q += [tag] * n
    def wait(self, tag):
        idx = max(i for i, t in enumerate(self.q) if t == tag)
        n = len(self.q) - 1 - idx
        self.q = self.q[idx + 1:]
        return n

def build(opt):
    a = Asm()
    stamps = opt.get("stamps", False)
    nst = [0]
    def stamp(k):
        if stamps: a(f"s_memtime s[{86+2*(k%8)}:{87+2*(k%8)}]")
    def flush_stamps(base, n):
        if not stamps: return
        a("s_waitcnt lgkmcnt(0)")
        a(f"s_lshl_b32 s35, s2, 3\ns_add_u32 s35, s35, s{sWAVE}\ns_lshl_b32 s35, s35, 7\ns_add_u32 s35, s35, {WS_DBG + 0x300000}")
        a("s_mov_b64 s[36:37], exec\ns_mov_b64 exec, 1\nv_mov_b32 v126, 0")
        for k in range(base, base + n):
            a(f"v_mov_b32 v127, s{86+2*(k%8)}\nbuffer_store_dword v127, v126, s[{sWS}:{sWS+3}], s35 offen offset:{4*k}")
        a("s_mov_b64 exec, s[36:37]")
    lbl = [0]
    def L(p):
        lbl[0] += 1
        return f"L{p}{lbl[0]}"
    def spin_guard(out):
        a(f"s_sub_u32 s{sSPIN}, s{sSPIN}, 1\ns_bitcmp1_b32 s{sSPIN}, 31\ns_cbranch_scc1 {out}")
    def rbf(dst, src):
        a(f"v_cvt_pk_bf16_f32 v{dst}, v{src}, v{src}\nv_lshlrev_b32 v{dst}, 16, v{dst}")
    def ln_stats(s1, s2, nmb, rstd, t):
        a(f"""v_mul_f32 v{s1}, {hex(f2u(1/448))}, v{s1}
        v_mul_f32 v{s2}, {hex(f2u(1/448))}, v{s2}
        v_fma_f32 v{s2}, -v{s1}, v{s1}, v{s2}
        v_max_f32 v{s2}, 0, v{s2}
        v_cvt_pk_bf16_f32 v{t}, v{s2}, v{s1}
        v_lshlrev_b32 v{s2}, 16, v{t}
        v_add_f32 v{s2}, {hex(EPS)}, v{s2}
        v_and_b32 v{nmb}, 0xffff0000, v{t}""")
        rbf(s2, s2)
        a(f"v_sqrt_f32 v{s2}, v{s2}\nv_xor_b32 v{nmb}, 0x80000000, v{nmb}")
        rbf(s2, s2)
        a(f"v_rcp_f32 v{rstd}, v{s2}")

    a(khead(NAME + "_kernel"))
    a(f"""s_cmp_ge_u32 s2, 256
    s_cbranch_scc1 Lexit""")
    stamp(0)
    a(f"""s_load_dwordx16 s[64:79], s[0:1], 0
    s_load_dwordx2 s[80:81], s[0:1], 64
    s_load_dwordx2 s[84:85], s[0:1], 80
    v_lshrrev_b32 v1, 6, v0
    v_and_b32 v2, 63, v0
    v_readfirstlane_b32 s{sWAVE}, v1
    s_and_b32 s{sXCD}, s2, 7
    s_lshr_b32 s{sJ}, s2, 3
    s_and_b32 s35, s{sXCD}, 3
    s_lshl_b32 s35, s35, 2
    s_and_b32 s36, s{sJ}, 3
    s_add_u32 s{sQB}, s35, s36
    s_lshr_b32 s35, s{sXCD}, 2
    s_lshl_b32 s35, s35, 3
    s_lshr_b32 s37, s{sJ}, 2
    s_add_u32 s{sH}, s35, s37
    s_and_b32 s{sRT}, s{sWAVE}, 3
    s_lshr_b32 s{sGRP}, s{sWAVE}, 2
    s_lshl_b32 s36, s36, 1
    s_add_u32 s36, s36, s37
    s_mul_i32 s37, s36, 37
    s_lshr_b32 s37, s37, 8
    s_mul_i32 s37, s37, 7
    s_sub_u32 s{sROT}, s36, s37
    s_mov_b32 s{sSPIN}, {SPIN}
    s_mov_b32 s{sRETRY}, 0
    s_mov_b32 s{sONES}, 0x3f803f80
    v_lshlrev_b32 v7, 4, v2
    s_cmp_eq_u32 s{sGRP}, 1
    s_cbranch_scc1 Lcomp""")
    GA = 7
    def srds():
        a("s_waitcnt lgkmcnt(0)")
        srd(a, sX, pX, 1835008); srd(a, sW, pW, 1204224); srd(a, sWS, pWS, WS_SIZE)
    def epoch_to_tag():
        a(f"s_mul_i32 s{sTAG}, s{sTAG}, 0x9e3779b1\ns_add_u32 s{sTAG}, s{sTAG}, 0x7f4a7c15")

    XA, WA, QA = 8, 12, 14
    a(f"""v_lshrrev_b32 v3, 3, v2
    v_and_b32 v4, 7, v2
    v_lshrrev_b32 v5, 4, v2
    v_xor_b32 v6, v4, v5
    v_mul_u32_u24 v15, 896, v3
    v_lshl_add_u32 v{XA}, v6, 4, v15
    v_xor_b32 v6, 4, v6
    v_lshl_add_u32 v{XA+1}, v6, 4, v15
    v_add_u32 v{XA+2}, {2*6144}, v{XA}
    v_add_u32 v{XA+3}, {3*6144}, v{XA+1}
    v_add_u32 v{XA+1}, {6144}, v{XA+1}
    v_and_b32 v4, 3, v2
    v_lshlrev_b32 v4, 4, v4
    v_min_u32 v4, 40, v4
    v_lshrrev_b32 v6, 2, v2
    v_mul_u32_u24 v15, 2688, v6
    v_add_u32 v{QA}, v15, v4
    v_xor_b32 v6, v6, v5
    v_and_b32 v6, 1, v6
    v_mul_u32_u24 v6, 56, v6
    v_mul_u32_u24 v15, 2688, v3
    v_add3_u32 v{WA}, v15, v6, v4
    v_add_u32 v{WA+1}, {8*2688-1024}, v{WA}
    s_mul_i32 s40, s{sQB}, 114688
    s_mul_i32 s35, s{sRT}, 28672
    s_add_u32 s40, s40, s35
    s_mul_i32 s41, s{sRT}, {16*2688}
    s_mul_i32 s42, s{sH}, 56
    s_add_u32 s42, s42, s41
    s_mul_i32 s35, s{sH}, 112
    s_add_u32 s41, s41, s35
    s_add_u32 s41, s41, 896
    s_lshl_b32 s43, s{sRT}, 12
    s_lshl_b32 s44, s{sRT}, 11
    s_lshl_b32 s45, s{sRT}, 10
    s_mov_b32 s46, s{sROT}
    s_mov_b32 s47, s{sROT}""")
    srds()
    vm = Vm()
    def adv(r): a(f"s_add_u32 s{r}, s{r}, 1\ns_cmp_eq_u32 s{r}, 7\ns_cselect_b32 s{r}, 0, s{r}")
    def issue_chunk(i):
        a(f"""s_mul_i32 s35, s46, {64*2688}
        s_add_u32 s35, s35, s41
        s_add_u32 m0, s44, {L_W + (i % 4) * 8192}
        s_lshl_b32 s36, s46, 7
        buffer_load_dwordx4 v{WA}, s[{sW}:{sW+3}], s35 offen lds
        buffer_load_dwordx4 v{WA+1}, s[{sW}:{sW+3}], s35 offen offset:1024 lds
        s_add_u32 m0, s43, {(i % 4) * 16384}
        s_add_u32 s36, s36, s40""")
        for n in range(4): a(f"buffer_load_dwordx4 v{XA+n}, s[{sX}:{sX+3}], s36 offen offset:{n*1024} lds")
        adv(46); vm.add(("c", i), 6)
    def issue_q(i):
        a(f"""s_mul_i32 s35, s47, {64*2688}
        s_add_u32 m0, s45, {L_W2 + i * 4096}
        s_add_u32 s35, s35, s42
        buffer_load_dwordx4 v{QA}, s[{sW}:{sW+3}], s35 offen lds""")
        adv(47); vm.add(("q", i))
    for i in range(3): issue_chunk(i)
    a(f"s_load_dword s{sTAG}, s[{pWS}:{pWS+1}], 0")
    a(f"""s_lshl_b32 s48, s{sH}, 6
    s_lshl_b32 s35, s{sQB}, 2
    s_add_u32 s48, s48, s35
    s_add_u32 s48, s48, s{sRT}
    s_lshl_b32 s48, s48, 11
    s_add_u32 s48, s48, {WS_O}
    v_mov_b32 v16, -1
    v_mov_b32 v17, -1
    v_mov_b32 v18, -1
    v_mov_b32 v19, -1
    v_mov_b32 v20, 0
    v_mov_b32 v21, {L_BAD}
    ds_write_b32 v21, v20""")
    for i in range(7):
        a(f"s_waitcnt vmcnt({vm.wait(('c', i))}) lgkmcnt(0)\ns_barrier")
        if i == 0: stamp(1)
        if i + 3 <= 6: issue_chunk(i + 3)
        if i == 3:
            a(f"buffer_store_dwordx4 v[16:19], v{GA}, s[{sWS}:{sWS+3}], s48 offen sc1")
            a(f"buffer_store_dwordx4 v[16:19], v{GA}, s[{sWS}:{sWS+3}], s48 offen offset:1024 sc1")
            vm.add("clr", 2)
        if i == 4:
            for k in range(4): issue_q(k)
        if i == 5:
            for k in range(4, 7): issue_q(k)
    stamp(2)
    epoch_to_tag()
    a(f"""v_and_b32 v3, 15, v2
    v_bfe_u32 v4, v2, 4, 1
    v_lshlrev_b32 v4, 12, v4
    v_lshl_add_u32 v3, v3, 2, v4
    s_lshr_b32 s35, s{sH}, 1
    s_lshl_b32 s35, s35, 2
    s_add_u32 s35, s35, s{sRT}
    s_lshl_b32 s35, s35, 7
    s_add_u32 s49, s35, {WS_FLAG}
    s_lshl_b32 s38, s{sH}, 6
    s_add_u32 s38, s38, s{sRT}
    s_lshl_b32 s38, s38, 12
    s_add_u32 s38, s38, {WS_KV}""")
    a(f"s_waitcnt vmcnt({vm.wait(('q', 3))})\ns_barrier")
    a(f"s_waitcnt vmcnt(0)\ns_barrier")
    stamp(3)
    a(f"""Lpoll1:
    buffer_load_dword v4, v3, s[{sWS}:{sWS+3}], s49 offen sc1""")
    spin_guard("Lpoll1x")
    a(f"""s_waitcnt vmcnt(0)
    v_cmp_ne_u32 vcc, s{sTAG}, v4
    s_cbranch_vccnz Lpoll1
    Lpoll1x:""")
    stamp(4)
    for st in range(3):
        for g in range(2):
            a(f"s_add_u32 m0, s43, {st*32768 + g*16384}\ns_add_u32 s35, s38, {(g*8 + st)*16384}")
            for j in range(4): a(f"buffer_load_dwordx4 v{GA}, s[{sWS}:{sWS+3}], s35 offen offset:{j*1024} sc1 lds")
    a(f"""v_add_u32 v3, s44, v{GA}
    v_add_u32 v3, {L_QX}, v3
    s_waitcnt vmcnt(16)
    s_barrier
    ds_read_b128 v[8:11], v3
    ds_read_b128 v[12:15], v3 offset:1024
    s_branch Lattn""")

    XF, ACC, WF = 128, 32, 64
    XR, WR, QR, SC = 8, 12, 14, 15
    S1, S2, CS0, CS1, NMB, RSTD = 16, 17, 18, 19, 20, 22
    a("Lcomp:")
    a(f"""v_and_b32 v3, 31, v2
    v_lshrrev_b32 v4, 5, v2
    v_bfe_u32 v5, v2, 1, 3
    v_xor_b32 v5, v5, v4
    v_lshlrev_b32 v5, 4, v5
    v_lshl_add_u32 v5, v3, 7, v5
    s_lshl_b32 s43, s{sRT}, 12
    s_lshl_b32 s44, s{sRT}, 11
    v_add_u32 v{XR}, s43, v5
    v_xor_b32 v{XR+1}, 32, v{XR}
    v_xor_b32 v{XR+2}, 64, v{XR}
    v_xor_b32 v{XR+3}, 96, v{XR}
    v_bfe_u32 v5, v2, 2, 2
    v_lshl_add_u32 v6, v4, 3, v5
    v_bfe_u32 v24, v2, 4, 1
    v_and_b32 v25, 3, v2
    v_lshl_add_u32 v24, v24, 2, v25
    v_add_u32 v25, 2, v24
    v_lshrrev_b32 v25, 3, v25
    v_xor_b32 v24, v24, v25
    v_lshlrev_b32 v24, 3, v24
    v_lshl_add_u32 v{QR}, v6, 6, v24
    v_add_u32 v{QR}, {L_W2}, v{QR}
    v_lshl_add_u32 v24, v6, 7, v24
    v_lshrrev_b32 v5, 1, v5
    v_lshl_add_u32 v24, v5, 6, v24
    v_add_u32 v{WR}, {L_W}, v24
    v_xor_b32 v{WR+1}, 64, v{WR}
    s_lshl_b32 s35, s{sRT}, 8
    s_add_u32 s35, s35, {L_SCR}
    v_lshl_add_u32 v{SC}, v2, 2, s35
    v_lshl_add_u32 v26, v4, 4, s35
    v_mov_b32 v{S1}, 0
    v_mov_b32 v{S2}, 0
    v_mov_b32 v{CS0}, 0
    v_mov_b32 v{CS1}, 0""")
    SCR = 26
    srds()
    a(f"s_load_dword s{sTAG}, s[{pWS}:{pWS+1}], 0")
    a(f"""s_and_b32 s35, s{sH}, 7
    s_lshl_b32 s35, s35, 7
    s_lshl_b32 s36, s{sQB}, 2
    s_add_u32 s35, s35, s36
    s_add_u32 s35, s35, s{sRT}
    s_lshl_b32 s35, s35, 12
    s_lshr_b32 s36, s{sH}, 3
    s_lshl_b32 s36, s36, 11
    s_add_u32 s35, s35, s36
    s_add_u32 s40, s35, {WS_KV}
    s_add_u32 s41, s40, {64*4096}
    s_lshl_b32 s35, s{sH}, 2
    s_add_u32 s35, s35, s{sRT}
    s_lshl_b32 s35, s35, 7
    s_lshl_b32 s36, s{sQB}, 2
    s_add_u32 s35, s35, s36
    s_add_u32 s42, s35, {WS_FLAG}
    s_lshl_b32 s38, s{sH}, 6
    s_add_u32 s38, s38, s{sRT}
    s_lshl_b32 s38, s38, 12
    s_add_u32 s38, s38, {WS_KV}
    s_waitcnt lgkmcnt(0)""")
    epoch_to_tag()
    a(f"s_cmp_ge_u32 s{sH}, 8\ns_cbranch_scc1 LcompV")
    ST = 27
    def kloop(isV):
        def reads(i, j):
            x = XF + 16*i + 4*j
            a(f"ds_read_b128 v[{x}:{x+3}], v{XR+j} offset:{(i%4)*16384}")
            for m in range(2):
                for s in range(2):
                    w = WF + 8*j + 4*m + 2*s
                    a(f"ds_read_b64_tr_b16 v[{w}:{w+1}], v{WR+m} offset:{(i%4)*8192 + j*2048 + s*512}")
        for i in range(7):
            a("s_barrier")
            for j in range(3): reads(i, j)
            for j in range(4):
                a(f"s_waitcnt lgkmcnt({(10, 10, 5, 0)[j]})")
                x = XF + 16*i + 4*j
                for m in range(2):
                    w = WF + 8*j + 4*m; c = ACC + 16*m
                    src = "0" if (i == 0 and j == 0) else f"v[{c}:{c+15}]"
                    if isV: a(f"{MF} v[{c}:{c+15}], v[{x}:{x+3}], v[{w}:{w+3}], {src}")
                    else: a(f"{MF} v[{c}:{c+15}], v[{w}:{w+3}], v[{x}:{x+3}], {src}")
                    if j == 0 and m == 0: reads(i, 3)
                    for e in range(2*m, 2*m + 2):
                        a(f"""v_dot2c_f32_bf16 v{S1}, s{sONES}, v{x+e}
                        v_dot2c_f32_bf16 v{S2}, v{x+e}, v{x+e}
                        v_dot2c_f32_bf16 v{CS0}, s{sONES}, v{WF+8*j+e}
                        v_dot2c_f32_bf16 v{CS1}, s{sONES}, v{WF+8*j+4+e}""")
    def allred32(r, t):
        a(f"v_mov_b32 v{t}, v{r}\nv_permlane32_swap_b32 v{t}, v{r}\nv_add_f32 v{r}, v{t}, v{r}")
    def scale_pack(c, vec, usc, mul, mul_vec, out):
        for p in range(8):
            a(f"v_pk_fma_f32 v[{c+2*p}:{c+2*p+1}], v[{vec+2*p}:{vec+2*p+1}], v[{usc}:{usc+1}], v[{c+2*p}:{c+2*p+1}] op_sel_hi:[1,0,1]")
        for p in range(8):
            if mul_vec: a(f"v_pk_mul_f32 v[{c+2*p}:{c+2*p+1}], v[{c+2*p}:{c+2*p+1}], v[{mul+2*p}:{mul+2*p+1}]")
            else: a(f"v_pk_mul_f32 v[{c+2*p}:{c+2*p+1}], v[{c+2*p}:{c+2*p+1}], v[{mul}:{mul+1}] op_sel_hi:[1,0]")
        for p in range(8): a(f"v_cvt_pk_bf16_f32 v{out+p}, v{c+2*p}, v{c+2*p+1}")
    PK = 96
    def stores(m):
        so = 40 + m
        a(f"buffer_store_dwordx4 v[{PK+8*m}:{PK+8*m+3}], v{ST}, s[{sWS}:{sWS+3}], s{so} offen sc1")
        a(f"buffer_store_dwordx4 v[{PK+8*m+4}:{PK+8*m+7}], v{ST}, s[{sWS}:{sWS+3}], s{so} offen offset:1024 sc1")
    a(f"""v_bfe_u32 v3, v2, 2, 1
    v_bfe_u32 v4, v2, 3, 1
    v_and_b32 v5, 0x33, v2
    v_lshl_add_u32 v5, v3, 3, v5
    v_lshl_add_u32 v5, v4, 2, v5
    v_lshlrev_b32 v{ST}, 4, v5""")
    kloop(False)
    stamp(1)
    a(f"v_permlane32_swap_b32 v{CS0}, v{CS1}\nv_add_f32 v{CS0}, v{CS0}, v{CS1}\nds_write_b32 v{SC}, v{CS0}")
    allred32(S1, 24); allred32(S2, 25)
    a("s_waitcnt lgkmcnt(0)")
    for m in range(2):
        for q in range(4): a(f"ds_read_b128 v[{WF+16*m+4*q}:{WF+16*m+4*q+3}], v{SCR} offset:{m*128 + q*32}")
    ln_stats(S1, S2, NMB, RSTD, 24)
    for m in range(2):
        a(f"s_waitcnt lgkmcnt({4 - 4*m})")
        scale_pack(ACC + 16*m, WF + 16*m, NMB, RSTD, False, PK + 8*m)
        a(f"""s_mov_b32 exec_lo, 0
        v_mov_b32 v{PK+8*m+6}, s{sONES}
        v_mov_b32 v{PK+8*m+7}, 0x3f80
        s_mov_b32 exec_lo, -1""")
        stores(m)
    a("s_branch LcompQ")
    a("LcompV:")
    a(f"""v_and_b32 v3, 31, v2
    v_mul_u32_u24 v4, 37, v3
    v_lshrrev_b32 v4, 8, v4
    v_mul_u32_u24 v5, 7, v4
    v_sub_u32 v5, v3, v5
    v_cmp_le_u32 vcc, 28, v3
    v_cndmask_b32 v4, v4, v5, vcc
    v_cndmask_b32 v5, v5, 7, vcc
    v_lshrrev_b32 v6, 1, v4
    v_and_b32 v4, 1, v4
    v_lshlrev_b32 v6, 4, v6
    v_lshl_add_u32 v6, v4, 2, v6
    v_lshrrev_b32 v4, 2, v5
    v_and_b32 v5, 3, v5
    v_lshl_add_u32 v6, v4, 3, v6
    v_add_u32 v6, v6, v5
    v_and_b32 v4, 32, v2
    v_add_u32 v6, v6, v4
    v_lshlrev_b32 v{ST}, 4, v6""")
    kloop(True)
    stamp(1)
    allred32(S1, 24); allred32(S2, 25)
    ln_stats(S1, S2, NMB, RSTD, 24)
    a(f"""v_mov_b32 v24, v{NMB}
    s_mov_b32 exec_lo, 0
    v_mov_b32 v24, v{RSTD}
    s_mov_b32 exec_lo, -1
    ds_write_b32 v{SC}, v24""")
    CSa, CSb = 28, 30
    a(f"v_mov_b32 v{CSa}, v{CS0}\nv_mov_b32 v{CSb}, v{CS1}")
    allred32(CSa, 24); allred32(CSb, 25)
    a("s_waitcnt lgkmcnt(0)")
    for m in range(2):
        for q in range(4): a(f"ds_read_b128 v[{WF+16*m+4*q}:{WF+16*m+4*q+3}], v{SCR} offset:{m*128 + q*32}")
    a("s_waitcnt lgkmcnt(0)")
    for m in range(2):
        scale_pack(ACC + 16*m, WF, (CSa, CSb)[m], WF + 16, True, PK + 8*m)
        a("s_mov_b32 exec_lo, 0xf0000000\ns_mov_b32 exec_hi, 0xf0000000")
        for p in range(8): a(f"v_mov_b32 v{PK+8*m+p}, s{sONES}")
        a("s_mov_b64 exec, -1")
        stores(m)
    a("LcompQ:")
    stamp(2)
    a(f"v_mov_b32 v{CS0}, 0\nv_mov_b32 v{CS1}, 0\nv_mov_b32 v3, 0\nv_mov_b32 v4, s{sTAG}")
    def qchunks(i0, i1):
        steps = [(i, j) for i in range(i0, i1) for j in range(4)]
        def rd(n):
            i, j = steps[n]; w = WF + 4 * (n % 8)
            for s in range(2): a(f"ds_read_b64_tr_b16 v[{w+2*s}:{w+2*s+1}], v{QR} offset:{i*4096 + j*1024 + s*256}")
        AH = 6
        for n in range(min(AH, len(steps))): rd(n)
        for n, (i, j) in enumerate(steps):
            left = min(AH - 1, len(steps) - 1 - n)
            a(f"s_waitcnt lgkmcnt({2*left})")
            w = WF + 4 * (n % 8); x = XF + 16*i + 4*j
            src = "0" if (i == 0 and j == 0) else f"v[{ACC}:{ACC+15}]"
            a(f"{MF} v[{ACC}:{ACC+15}], v[{w}:{w+3}], v[{x}:{x+3}], {src}")
            if n + AH < len(steps): rd(n + AH)
            for e in range(4): a(f"v_dot2c_f32_bf16 v{(CS0, CS1)[e&1]}, s{sONES}, v{w+e}")
    a("s_barrier")
    qchunks(0, 4)
    a(f"""s_waitcnt vmcnt(0)
    s_mov_b64 exec, 1
    buffer_store_dword v4, v3, s[{sWS}:{sWS+3}], s42 offen sc1
    s_mov_b64 exec, -1""")
    stamp(3)
    a("s_barrier")
    qchunks(4, 7)
    a(f"v_add_f32 v{CS0}, v{CS0}, v{CS1}")
    allred32(CS0, 24)
    a(f"""ds_write_b32 v{SC}, v{CS0}
    v_mul_f32 v{RSTD}, {hex(f2u(math.log2(math.e) / math.sqrt(28)))}, v{RSTD}
    v_add_u32 v3, s44, v{GA}
    v_add_u32 v3, {L_QX}, v3
    s_waitcnt lgkmcnt(0)""")
    for q in range(4): a(f"ds_read_b128 v[{WF+4*q}:{WF+4*q+3}], v{SCR} offset:{q*32}")
    a("s_waitcnt lgkmcnt(0)")
    scale_pack(ACC, WF, NMB, RSTD, False, 8)
    a(f"""s_mov_b32 exec_lo, 0
    v_mov_b32 v14, 0
    v_mov_b32 v15, 0
    s_mov_b32 exec_lo, -1
    ds_write_b128 v3, v[8:11]
    ds_write_b128 v3, v[12:15] offset:1024""")
    stamp(4)
    a("s_waitcnt lgkmcnt(0)\ns_barrier")

    Q, S, O, K, V = 8, (16, 32), 48, (64, 72), (80, 88, 96, 104)
    IDX, LA0, LA1 = 4, 5, 6
    W2A, XP, WRP, WRA, FLG = 112, 116, 120, 124, 113
    a("Lattn:")
    stamp(5)
    def rd(u, j):
        st, t = divmod(u, 4)
        off = (st % 3) * 32768 + t * 4096 + j * 1024
        base = LA0
        if off >= 65536: off -= 65536; base = LA1
        dst = K[u & 1] + 4 * j if j < 2 else V[u & 3] + 4 * (j - 2)
        return f"ds_read_b128 v[{dst}:{dst+3}], v{base} offset:{off}"
    a(f"""s_lshl_b32 s35, s{sGRP}, 14
    v_add_u32 v{LA0}, s35, v{GA}""")
    for u in (0, 1):
        for j in range(4): a(rd(u, j))
    a(f"""v_add_u32 v{LA1}, 0x10000, v{LA0}
    v_mov_b32 v{IDX}, 0xdddddddd
    s_add_u32 s40, s43, s35
    s_lshl_b32 s35, s{sGRP}, 17
    s_add_u32 s39, s38, s35""")
    for i in range(16): a(f"v_mov_b32 v{O+i}, 0")
    a(f"""s_mul_i32 s35, s{sJ}, 37
    s_lshr_b32 s35, s35, 8
    s_mul_i32 s36, s35, 7
    s_sub_u32 s{sCG}, s{sJ}, s36
    s_lshl_b32 s36, s{sXCD}, 2
    s_add_u32 s{sF}, s36, s{sCG}
    s_min_u32 s35, s35, 3
    s_add_u32 s{sRB}, s36, s35""")
    a("s_waitcnt lgkmcnt(6)")
    a(f"{MF} v[{S[0]}:{S[0]+15}], v[{K[0]}:{K[0]+3}], v[{Q}:{Q+3}], 0")
    a(f"{MF} v[{S[0]}:{S[0]+15}], v[{K[0]+4}:{K[0]+7}], v[{Q+4}:{Q+7}], v[{S[0]}:{S[0]+15}]")
    a(f"""s_cmp_ge_u32 s{sJ}, 28
    s_cselect_b64 s[{sW2}:{sW2+1}], s[{pWG}:{pWG+1}], s[{pWO}:{pWO+1}]
    s_cselect_b32 s{sW2+2}, 1605632, s{sONES}
    s_cselect_b32 s{sW2+2}, s{sW2+2}, 401408
    s_mov_b32 s{sW2+3}, 0x00020000
    s_mov_b32 s44, 896
    s_cselect_b32 s44, 1024, s44
    s_cselect_b32 s45, -1, 0x00ffffff
    s_cselect_b32 s46, s{sF}, s{sCG}
    s_mov_b32 s47, 896
    s_cselect_b32 s47, 3584, s47
    s_cselect_b32 s36, 0, 2
    s_cselect_b32 s50, 8, 7
    s_cselect_b32 s61, 0, 1
    s_min_u32 s46, s46, 27
    s_lshl_b32 s46, s46, 7
    s_mul_i32 s50, s50, s47
    s_mul_i32 s35, s50, s{sWAVE}
    s_add_u32 s46, s46, s35
    s_lshl_b32 s50, s50, 3
    s_mul_i32 s35, s44, s{sWAVE}
    s_add_u32 s62, s35, {L_W2}
    s_lshl_b32 s44, s44, 3
    s_and_b32 s35, s{sWAVE}, 1
    s_mul_i32 s36, s36, s35
    v_lshrrev_b32 v1, 3, v2
    v_bfe_u32 v3, v2, 4, 1
    v_or_b32 v3, s36, v3
    v_lshlrev_b32 v3, 1, v3
    v_and_b32 v{W2A}, 7, v2
    v_xor_b32 v3, v3, v{W2A}
    v_lshlrev_b32 v3, 4, v3
    v_mad_u32_u24 v{W2A}, v1, s47, v3""")
    def dma(stage):
        Ls = [f"s_add_u32 m0, s40, {(stage % 3) * 32768}", f"s_add_u32 s41, s39, {stage * 16384}"]
        for j in range(4): Ls.append(f"buffer_load_dwordx4 v{GA}, s[{sWS}:{sWS+3}], s41 offen offset:{j*1024} sc1 lds")
        return Ls
    def w2dma(n):
        s = f"""s_mov_b32 m0, s62
        s_mov_b32 exec_hi, s45
        buffer_load_dwordx4 v{W2A}, s[{sW2}:{sW2+3}], s46 offen lds
        s_mov_b32 exec_hi, -1
        """
        if n == 6: s += f"s_mul_i32 s44, s44, s61\ns_mul_i32 s50, s50, s61\n"
        if n < 7: s += f"s_add_u32 s62, s62, s44\ns_add_u32 s46, s46, s50"
        return s
    PR = {(0, 8): 3, (0, 12): 2, (3, 8): 1, (0, 2): 0}
    NT = 32
    pend = []
    for t in range(NT):
        c = S[t & 1]; n = S[(t + 1) & 1]
        ph = (t + 2) % 4
        def ex(i0, i1):
            for i in range(i0, i1):
                if (ph, i) in PR: a(f"s_setprio {PR[(ph, i)]}")
                a(f"v_exp_f32 v{c+i}, v{c+i}")
        last = t + 1 >= NT
        rdok = t + 2 < NT
        ex(0, 2)
        if t > 0: a(f"{SM} v[{O}:{O+15}], v[{V[(t-1)&3]+4}:{V[(t-1)&3]+7}], v[{n+8}:{n+15}], v{IDX}")
        ex(2, 5)
        if not last:
            a("s_waitcnt lgkmcnt(2)")
            kk = K[(t + 1) & 1]
            a(f"{MF} v[{n}:{n+15}], v[{kk}:{kk+3}], v[{Q}:{Q+3}], 0")
        else: a("s_waitcnt lgkmcnt(0)")
        ex(5, 8)
        if not last: a(f"{MF} v[{n}:{n+15}], v[{kk+4}:{kk+7}], v[{Q+4}:{Q+7}], v[{n}:{n+15}]")
        if rdok and ph == 0:
            st = (t + 2) // 4
            a(f"s_waitcnt vmcnt({8 if st == 1 else 4}) lgkmcnt(0)\ns_barrier")
            if st + 2 <= 7:
                D = dma(st + 2); a("\n".join(D[:2])); pend = D[2:]
            else: pend = [w2dma(4 * (st - 6) + k) for k in range(4)]
        if rdok: a(rd(t + 2, 0))
        ex(8, 10)
        if rdok: a(rd(t + 2, 1))
        if pend: a(pend.pop(0))
        ex(10, 12)
        a(f"{SM} v[{O}:{O+15}], v[{V[t&3]}:{V[t&3]+3}], v[{c}:{c+7}], v{IDX}")
        if rdok: a(rd(t + 2, 2))
        ex(12, 14)
        if rdok: a(rd(t + 2, 3))
        ex(14, 16)
    c = S[(NT - 1) & 1]
    a(f"{SM} v[{O}:{O+15}], v[{V[(NT-1)&3]+4}:{V[(NT-1)&3]+7}], v[{c+8}:{c+15}], v{IDX}")
    a("s_setprio 0")
    stamp(6)
    a(f"""s_lshl_b32 s35, s{sWAVE}, 11
    v_add_u32 v3, s35, v{GA}
    v_xor_b32 v5, 0x2000, v3
    v_mov_b32 v6, {L_BAD}
    s_lshl_b32 s48, s{sH}, 6
    s_lshl_b32 s35, s{sQB}, 2
    s_add_u32 s48, s48, s35
    s_add_u32 s48, s48, s{sRT}
    s_lshl_b32 s48, s48, 1
    s_add_u32 s48, s48, s{sGRP}
    s_lshl_b32 s48, s48, 10
    s_add_u32 s48, s48, {WS_O}
    s_cmp_eq_u32 s{sGRP}, 1
    s_cbranch_scc1 Lcmb1
    ds_write_b128 v3, v[{O+8}:{O+11}]
    ds_write_b128 v3, v[{O+12}:{O+15}] offset:1024
    s_branch Lcmb2
    Lcmb1:
    ds_write_b128 v3, v[{O}:{O+3}]
    ds_write_b128 v3, v[{O+4}:{O+7}] offset:1024
    Lcmb2:
    v_maximum3_f32 v16, |v{O}|, |v{O+1}|, |v{O+2}|
    v_maximum3_f32 v17, |v{O+3}|, |v{O+4}|, |v{O+5}|
    v_maximum3_f32 v16, |v{O+6}|, |v{O+8}|, v16
    v_maximum3_f32 v17, |v{O+9}|, |v{O+10}|, v17
    v_maximum3_f32 v16, |v{O+11}|, |v{O+12}|, v16
    v_maximum3_f32 v17, |v{O+13}|, |v{O+14}|, v17
    v_maximum3_f32 v16, v16, v17, v17
    v_cmp_nge_f32 vcc, {hex(f2u(2.0**120))}, v16
    s_mov_b64 s[36:37], vcc
    v_cmp_nge_f32 vcc, {hex(f2u(2.0**40))}, v{O+15}
    s_or_b64 s[36:37], s[36:37], vcc
    v_cmp_nle_f32 vcc, {hex(f2u(2.0**-30))}, v{O+15}
    s_or_b64 vcc, s[36:37], vcc
    s_cbranch_vccz Lcmb3
    ds_write_b32 v6, v{IDX}
    Lcmb3:
    s_waitcnt vmcnt(0) lgkmcnt(0)
    s_barrier
    ds_read_b32 v24, v6
    ds_read_b128 v[16:19], v5
    ds_read_b128 v[20:23], v5 offset:1024
    s_cmp_eq_u32 s{sGRP}, 0
    s_cbranch_scc1 Lcmb4""")
    for p in range(8): a(f"v_mov_b32 v{O+p}, v{O+8+p}")
    a(f"""Lcmb4:
    s_waitcnt lgkmcnt(2)
    v_readfirstlane_b32 s35, v24
    s_cmp_gt_u32 s35, s{sRETRY}
    s_cbranch_scc1 Lfallback
    s_waitcnt lgkmcnt(0)
    v_add_f32 v23, v23, v{O+7}
    v_rcp_f32 v24, v23
    v_pk_add_f32 v[16:17], v[16:17], v[{O}:{O+1}]
    v_pk_add_f32 v[18:19], v[18:19], v[{O+2}:{O+3}]
    v_pk_add_f32 v[20:21], v[20:21], v[{O+4}:{O+5}]
    v_add_f32 v22, v22, v{O+6}
    v_pk_mul_f32 v[16:17], v[16:17], v[24:25] op_sel_hi:[1,0]
    v_pk_mul_f32 v[18:19], v[18:19], v[24:25] op_sel_hi:[1,0]
    v_pk_mul_f32 v[20:21], v[20:21], v[24:25] op_sel_hi:[1,0]
    v_mul_f32 v22, v22, v24
    v_cvt_pk_bf16_f32 v28, v16, v17
    v_cvt_pk_bf16_f32 v29, v18, v19
    v_cvt_pk_bf16_f32 v30, v20, v21
    v_cvt_pk_bf16_f32 v31, v22, 0
    buffer_store_dwordx4 v[28:31], v{GA}, s[{sWS}:{sWS+3}], s48 offen sc1""")
    stamp(7)
    flush_stamps(0, 8)
    if opt.get("stop") == "attn":
        a(f"""s_cmp_eq_u32 s2, 0
        s_cbranch_scc0 Lexit
        v_mov_b32 v3, 0
        v_mov_b32 v4, s{sTAG}
        buffer_store_dword v4, v3, s[{sWS}:{sWS+3}], 0 offen
        s_branch Lexit""")
    else:
        tail(a, opt, stamp, flush_stamps, spin_guard, rbf, ln_stats)

    a("Lfallback:")
    a(f"""s_mov_b32 s{sRETRY}, -1
    s_waitcnt lgkmcnt(0)
    s_barrier
    s_lshl_b32 s35, s{sH}, 18
    s_add_u32 s35, s35, {WS_KV}
    s_mov_b32 s36, 64
    v_mov_b32 v3, 0xff800000
    Lfb1:
    buffer_load_dwordx4 v[64:67], v{GA}, s[{sWS}:{sWS+3}], s35 offen sc1
    buffer_load_dwordx4 v[68:71], v{GA}, s[{sWS}:{sWS+3}], s35 offen offset:1024 sc1
    s_waitcnt vmcnt(0)
    {MF} v[16:31], v[64:67], v[{Q}:{Q+3}], 0
    {MF} v[16:31], v[68:71], v[{Q+4}:{Q+7}], v[16:31]
    s_add_u32 s35, s35, 4096
    s_sub_u32 s36, s36, 1""")
    for p in range(8): a(f"v_max3_f32 v3, v{16+2*p}, v{17+2*p}, v3")
    a(f"""s_cmp_lg_u32 s36, 0
    s_cbranch_scc1 Lfb1
    v_mov_b32 v5, v3
    v_permlane32_swap_b32 v5, v3
    v_max_f32 v3, v3, v5
    v_sub_f32 v3, 0, v3
    v_and_b32 v5, 0xffff0000, v3
    v_sub_f32 v3, v3, v5
    v_and_b32 v6, 0xffff0000, v3
    v_sub_f32 v3, v3, v6
    v_lshrrev_b32 v5, 16, v5
    s_mov_b32 exec_lo, 0
    v_or_b32 v{Q+6}, v5, v6
    v_lshrrev_b32 v{Q+7}, 16, v3
    s_mov_b32 exec_lo, -1""")
    for st in range(3): a("\n".join(dma(st)))
    a("s_waitcnt vmcnt(0)\ns_barrier\ns_branch Lattn")
    a("Lexit:\ns_endpgm")
    lines, n = hazard.fix(a.L, verbose=opt.get("verbose", False))
    hdr = open(f"cdna_kernels/{NAME}.s.ref").read().split("; Override launch")[0]
    hdr += "; @launch grid=(256,1,1) block=(512,1,1) lds=163840\n"
    hdr += '.amdgcn_target "amdgcn-amd-amdhsa--gfx950"\n.text\n'
    return hdr + "\n".join(lines) + '\n.section .rodata,"a"\n' + kdesc(NAME + "_kernel", 256)

def tail(a, opt, stamp, flush_stamps, spin_guard, rbf, ln_stats):
    GA = 7; W2A = 112
    WSR = f"s[{sWS}:{sWS+3}]"
    def red8(regs):
        for m in ("quad_perm:[1,0,3,2]", "quad_perm:[2,3,0,1]", "row_half_mirror"):
            for r in regs: a(f"v_add_f32_dpp v{r}, v{r}, v{r} {m} row_mask:0xf bank_mask:0xf")
    def max64(v, t, sd):
        a(f"v_max_u32_dpp v{t}, v{v}, v{v} row_ror:1 row_mask:0xf bank_mask:0xf")
        for k in (2, 4, 8): a(f"v_max_u32_dpp v{t}, v{t}, v{t} row_ror:{k} row_mask:0xf bank_mask:0xf")
        a(f"""v_readlane_b32 s{sd}, v{t}, 0
        v_readlane_b32 s35, v{t}, 16
        v_readlane_b32 s36, v{t}, 32
        v_readlane_b32 s37, v{t}, 48
        s_max_u32 s{sd}, s{sd}, s35
        s_max_u32 s36, s36, s37
        s_max_u32 s{sd}, s{sd}, s36""")
    def top2(v, t, k1, k2):
        max64(v, t, k1)
        a(f"v_cmp_ne_u32 vcc, s{k1}, v{v}\nv_cndmask_b32 v{v}, 0, v{v}, vcc")
        max64(v, t, k2)
    def poll_scores(lab, k1, k2):
        a(f"""v_and_b32 v3, 31, v2
        v_lshlrev_b32 v3, 7, v3
        s_mov_b32 s38, {WS_SCORE}
        {lab}:
        buffer_load_dwordx3 v[24:26], v3, {WSR}, s38 offen sc1""")
        spin_guard(lab + "x")
        a(f"""s_waitcnt vmcnt(0)
        v_cmp_ne_u32 vcc, s{sTAG}, v26
        s_cbranch_vccnz {lab}
        {lab}x:
        s_waitcnt vmcnt(0)
        s_mov_b32 exec_lo, 0
        v_mov_b32 v24, v25
        s_mov_b32 exec_lo, -1""")
        top2(24, 25, k1, k2)
    a(f"s_cmp_ge_u32 s{sJ}, 28\ns_cbranch_scc1 Lffn")
    TA, OA, XP, WRP, WRA, FL = 8, 16, 20, 24, 28, 17
    WOF, OF, ACC = 128, 64, 32
    ROW, XA, WSUM = 18, 19, 100
    srd(a, sW, pWR, 896); srd(a, sOUT, pOUT, 1835008)
    a(f"""v_lshrrev_b32 v3, 3, v2
    s_lshl_b32 s39, s{sRT}, 1
    s_add_u32 s39, s39, s{sGRP}
    s_lshl_b32 s35, s{sRB}, 3
    s_add_u32 s41, s35, s39
    s_lshl_b32 s35, s41, 3
    v_add_u32 v{ROW}, s35, v3
    v_and_b32 v4, 7, v2
    v_lshlrev_b32 v4, 4, v4
    s_lshl_b32 s42, s{sCG}, 7
    s_movk_i32 s35, 896
    v_mad_u32_u24 v{XA}, v{ROW}, s35, v4
    buffer_load_dwordx4 v[{XP}:{XP+3}], v{XA}, s[{sX}:{sX+3}], s42 offen
    buffer_load_dwordx4 v[{WRP}:{WRP+3}], v4, s[{sW}:{sW+3}], s42 offen
    buffer_load_dwordx4 v[{WRA}:{WRA+3}], v{GA}, s[{sW}:{sW+3}], 0 offen
    v_and_b32 v5, 15, v2
    v_lshlrev_b32 v101, 9, v5
    s_lshr_b32 s35, s{sRB}, 1
    s_lshl_b32 s35, s35, 2
    s_add_u32 s43, s35, {WS_FLAG}
    buffer_load_dword v{FL}, v101, {WSR}, s43 offen sc1
    v_lshrrev_b32 v3, 4, v2
    s_and_b32 s35, s{sRT}, 1
    s_lshl_b32 s35, s35, 8
    v_lshl_add_u32 v{OA}, v5, 4, s35
    v_lshl_add_u32 v{OA}, v3, 9, v{OA}
    s_lshl_b32 s40, s{sGRP}, 9
    s_lshl_b32 s35, s{sRB}, 1
    s_add_u32 s40, s40, s35
    s_lshr_b32 s35, s{sRT}, 1
    s_add_u32 s40, s40, s35
    s_lshl_b32 s40, s40, 11
    s_add_u32 s40, s40, {WS_O}
    v_bfe_u32 v4, v2, 2, 2
    v_and_b32 v5, 3, v2
    s_mul_i32 s35, s{sGRP}, {8*3584}
    s_add_u32 s35, s35, {L_W2}
    v_mul_u32_u24 v6, 896, v3
    v_lshl_add_u32 v6, v5, 3, v6
    v_and_b32 v3, 1, v3
    v_lshl_add_u32 v6, v3, 6, v6
    v_add_u32 v6, s35, v6
    v_lshrrev_b32 v5, 1, v4
    v_lshl_add_u32 v3, v4, 7, v6
    v_lshl_add_u32 v{TA}, v5, 5, v3
    v_min_u32 v4, 2, v4
    v_lshl_add_u32 v3, v4, 7, v6
    v_lshl_add_u32 v{TA+4}, v5, 5, v3""")
    for ct in range(1, 4): a(f"v_xor_b32 v{TA+ct}, {32*ct}, v{TA}\nv_xor_b32 v{TA+4+ct}, {32*ct}, v{TA+4}")
    n = 0
    for hl in range(8):
        for ct in range(4):
            w = WOF + (hl*4 + ct)*4
            a(f"ds_read_b64_tr_b16 v[{w}:{w+1}], v{TA+ct} offset:{hl*3584}")
            a(f"ds_read_b64_tr_b16 v[{w+2}:{w+3}], v{TA+4+ct} offset:{hl*3584 + 512}")
        a("s_waitcnt lgkmcnt(6)")
    EW, ER = 102, 103
    a(f"""v_and_b32 v3, 15, v2
    v_lshrrev_b32 v4, 4, v2
    s_mul_i32 s35, s{sGRP}, 17408
    s_mul_i32 s36, s{sRT}, {16*272}
    s_add_u32 s35, s35, s36
    s_add_u32 s35, s35, {L_EX}
    v_mul_u32_u24 v3, 272, v3
    v_lshl_add_u32 v3, v4, 4, v3
    v_add_u32 v{EW}, s35, v3
    v_lshrrev_b32 v3, 3, v2
    v_and_b32 v4, 7, v2
    s_mul_i32 s35, s39, {8*272}
    s_add_u32 s35, s35, {L_EX}
    v_mul_u32_u24 v5, 272, v3
    v_lshl_add_u32 v5, v4, 5, v5
    v_add_u32 v{ER}, s35, v5
    v_min_u32 v4, 6, v4
    v_lshlrev_b32 v104, 4, v3
    v_lshl_add_u32 v105, v4, 7, v104
    s_lshl_b32 s44, s41, 10
    s_add_u32 s44, s44, {WS_STAT}
    s_add_u32 s45, s44, s42
    v_mov_b32 v{WSUM}, 0
    s_waitcnt vmcnt(0)
    v_cmp_ne_u32 vcc, s{sTAG}, v{FL}
    s_cbranch_vccz Lclr_ok
    Lclr:
    buffer_load_dword v{FL}, v101, {WSR}, s43 offen sc1""")
    spin_guard("Lclr_ok")
    a(f"""s_waitcnt vmcnt(0)
    v_cmp_ne_u32 vcc, s{sTAG}, v{FL}
    s_cbranch_vccnz Lclr
    Lclr_ok:""")
    stamp(8)
    a("Lo:")
    for hl in range(8):
        a(f"s_add_u32 s35, s40, {hl*131072}\nbuffer_load_dwordx4 v[{OF+4*hl}:{OF+4*hl+3}], v{OA}, {WSR}, s35 offen sc1")
    a("s_waitcnt lgkmcnt(0)")
    for hl in range(8):
        a(f"s_waitcnt vmcnt({7-hl})")
        for ct in range(4):
            w = WOF + (hl*4 + ct)*4; c = ACC + 4*ct
            a(f"{M16} v[{c}:{c+3}], v[{w}:{w+3}], v[{OF+4*hl}:{OF+4*hl+3}], {'0' if hl == 0 else f'v[{c}:{c+3}]'}")
    a(f"""v_or3_b32 v3, v{OF+3}, v{OF+7}, v{OF+11}
    v_or3_b32 v4, v{OF+15}, v{OF+19}, v{OF+23}
    v_or3_b32 v3, v{OF+27}, v{OF+31}, v3
    v_or_b32 v3, v3, v4""")
    spin_guard("Lox")
    a(f"""v_cmp_lt_u32 vcc, 0xffff, v3
    s_cbranch_vccnz Lo
    Lox:""")
    stamp(9)
    for ct in range(4): a(f"ds_write_b128 v{EW}, v[{ACC+4*ct}:{ACC+4*ct+3}] offset:{64*ct}")
    XU = 48
    for p in range(4):
        a(f"v_lshlrev_b32 v{XU+2*p}, 16, v{XP+p}\nv_and_b32 v{XU+2*p+1}, 0xffff0000, v{XP+p}")
        a(f"v_dot2c_f32_bf16 v{WSUM}, s{sONES}, v{WRA+p}")
    a(f"""s_waitcnt lgkmcnt(0)
    s_barrier
    ds_read_b128 v[32:35], v{ER}
    ds_read_b128 v[36:39], v{ER} offset:16
    ds_read_b128 v[40:43], v{ER} offset:17408
    ds_read_b128 v[44:47], v{ER} offset:17424
    v_mov_b32 v64, 0
    v_mov_b32 v65, 0
    v_mov_b32 v66, 0
    v_mov_b32 v67, s{sTAG}
    s_waitcnt lgkmcnt(2)""")
    for p in range(4): a(f"v_pk_add_f32 v[{32+2*p}:{33+2*p}], v[{32+2*p}:{33+2*p}], v[{XU+2*p}:{XU+2*p+1}]")
    a("s_waitcnt lgkmcnt(0)")
    HP = 56
    for p in range(4): a(f"v_pk_add_f32 v[{32+2*p}:{33+2*p}], v[{32+2*p}:{33+2*p}], v[{40+2*p}:{41+2*p}]")
    for p in range(4): a(f"v_cvt_pk_bf16_f32 v{HP+p}, v{32+2*p}, v{33+2*p}")
    for p in range(4):
        a(f"""v_dot2c_f32_bf16 v64, s{sONES}, v{HP+p}
        v_dot2c_f32_bf16 v65, v{HP+p}, v{HP+p}
        v_dot2c_f32_bf16 v66, v{WRP+p}, v{HP+p}""")
    red8((64, 65, 66))
    a(f"""s_mov_b32 exec_lo, 0x01010101
    s_mov_b32 exec_hi, 0x01010101
    buffer_store_dwordx4 v[64:67], v104, {WSR}, s45 offen sc1
    s_mov_b64 exec, -1""")
    stamp(10)
    HU = 32
    for p in range(4): a(f"v_lshlrev_b32 v{HU+2*p}, 16, v{HP+p}\nv_and_b32 v{HU+2*p+1}, 0xffff0000, v{HP+p}")
    for k in (1, 2, 4, 8): a(f"v_add_f32_dpp v{WSUM}, v{WSUM}, v{WSUM} row_ror:{k} row_mask:0xf bank_mask:0xf")
    a(f"""v_mov_b32 v3, v{WSUM}
    v_permlane16_swap_b32 v3, v{WSUM}
    v_add_f32 v{WSUM}, v3, v{WSUM}
    v_mov_b32 v3, v{WSUM}
    v_permlane32_swap_b32 v3, v{WSUM}
    v_add_f32 v{WSUM}, v3, v{WSUM}
    v_and_b32 v3, 63, v{ROW}
    v_lshlrev_b32 v106, 2, v3
    v_add_u32 v106, {L_KEY}, v106
    v_lshlrev_b32 v107, 2, v2
    v_add_u32 v107, {L_KEY}, v107
    v_and_b32 v3, 7, v2
    v_lshlrev_b32 v3, 5, v3
    v_lshl_add_u32 v108, v{ROW}, 11, v3
    s_lshl_b32 s46, s{sCG}, 8
    s_add_u32 s46, s46, {WS_CAND}
    s_waitcnt vmcnt(0)
    Lst:
    buffer_load_dwordx4 v[68:71], v105, {WSR}, s44 offen sc1""")
    spin_guard("Lstx")
    a(f"""s_waitcnt vmcnt(0)
    v_cmp_ne_u32 vcc, s{sTAG}, v71
    s_cbranch_vccnz Lst
    Lstx:
    s_waitcnt vmcnt(0)""")
    stamp(11)
    a(f"""s_mov_b32 exec_lo, 0x80808080
    s_mov_b32 exec_hi, 0x80808080
    v_mov_b32 v68, 0
    v_mov_b32 v69, 0
    v_mov_b32 v70, 0
    s_mov_b64 exec, -1""")
    red8((68, 69, 70))
    NMB, RSTD, RR, KEY = 72, 74, 76, 77
    ln_stats(68, 69, NMB, RSTD, 71)
    a(f"""v_fma_f32 v{RR}, v{NMB}, v{WSUM}, v70
    v_mul_f32 v{RR}, v{RR}, v{RSTD}
    v_ashrrev_i32 v3, 31, v{RR}
    v_or_b32 v3, 0x80000000, v3
    v_xor_b32 v3, v3, v{RR}
    v_and_b32 v3, 0xfffff800, v3
    v_or_b32 v{KEY}, v3, v{ROW}
    ds_write_b32 v106, v{KEY}""")
    D, HN, HNU, OP = 40, 80, 48, 88
    for p in range(4): a(f"v_pk_add_f32 v[{D+2*p}:{D+2*p+1}], v[{HU+2*p}:{HU+2*p+1}], v[{NMB}:{NMB+1}] op_sel_hi:[1,0]")
    for p in range(4): a(f"v_cvt_pk_bf16_f32 v{60+p}, v{D+2*p}, v{D+2*p+1}")
    a(f"s_waitcnt lgkmcnt(0)\ns_barrier\nds_read_b32 v24, v107")
    for p in range(4): a(f"v_lshlrev_b32 v{D+2*p}, 16, v{60+p}\nv_and_b32 v{D+2*p+1}, 0xffff0000, v{60+p}")
    for p in range(4): a(f"v_pk_mul_f32 v[{D+2*p}:{D+2*p+1}], v[{D+2*p}:{D+2*p+1}], v[{RSTD}:{RSTD+1}] op_sel_hi:[1,0]")
    hn = [HN, HN+1, HN+4, HN+5]
    for p in range(4): a(f"v_cvt_pk_bf16_f32 v{hn[p]}, v{D+2*p}, v{D+2*p+1}")
    a(f"v_mov_b32 v{HN+2}, s{sTAG}\nv_mov_b32 v{HN+6}, s{sTAG}\ns_waitcnt lgkmcnt(0)")
    top2(24, 25, sK1, sK2)
    a(f"""s_or_b32 s35, s{sCG}, s{sWAVE}
    s_cmp_eq_u32 s35, 0
    s_cbranch_scc0 Lnosc
    v_mov_b32 v24, s{sK1}
    v_mov_b32 v25, s{sK2}
    v_mov_b32 v26, s{sTAG}
    v_mov_b32 v3, 0
    s_lshl_b32 s35, s{sRB}, 7
    s_add_u32 s35, s35, {WS_SCORE}
    s_mov_b64 exec, 1
    buffer_store_dwordx3 v[24:26], v3, {WSR}, s35 offen sc1
    s_mov_b64 exec, -1
    Lnosc:
    v_cmp_le_u32 vcc, s{sK2}, v{KEY}
    s_mov_b64 s[48:49], vcc
    s_cbranch_vccz Lnocand
    s_mov_b64 exec, vcc
    buffer_store_dwordx3 v[{HN}:{HN+2}], v108, {WSR}, s46 offen sc1
    buffer_store_dwordx3 v[{HN+4}:{HN+6}], v108, {WSR}, s46 offen offset:16 sc1
    s_mov_b64 exec, -1
    Lnocand:""")
    stamp(12)
    for p in range(4): a(f"v_lshlrev_b32 v{HNU+2*p}, 16, v{hn[p]}\nv_and_b32 v{HNU+2*p+1}, 0xffff0000, v{hn[p]}")
    for p in range(4): a(f"v_pk_add_f32 v[{D+2*p}:{D+2*p+1}], v[{HU+2*p}:{HU+2*p+1}], v[{HNU+2*p}:{HNU+2*p+1}]")
    for p in range(4): a(f"v_cvt_pk_bf16_f32 v{OP+p}, v{D+2*p}, v{D+2*p+1}")
    a(f"""s_andn2_b64 exec, exec, s[48:49]
    buffer_store_dwordx4 v[{OP}:{OP+3}], v{XA}, s[{sOUT}:{sOUT+3}], s42 offen
    s_mov_b64 exec, -1
    v_mov_b32 v6, {L_SEL}
    s_cmp_eq_u32 s{sWAVE}, 0
    s_cbranch_scc0 Lnopoll""")
    poll_scores("Lsc", sK1, sK2)
    a(f"""v_mov_b32 v24, s{sK1}
    v_mov_b32 v25, s{sK2}
    ds_write_b64 v6, v[24:25]
    s_cmp_eq_u32 s2, 0
    s_cbranch_scc0 Lnopoll
    v_mov_b32 v3, 0
    v_mov_b32 v4, s{sTAG}
    s_mov_b64 exec, 1
    buffer_store_dword v4, v3, {WSR}, 0 offen
    s_mov_b64 exec, -1
    Lnopoll:
    s_waitcnt lgkmcnt(0)
    s_barrier
    ds_read_b64 v[24:25], v6
    s_waitcnt lgkmcnt(0)
    v_readfirstlane_b32 s{sK1}, v24
    v_readfirstlane_b32 s{sK2}, v25""")
    stamp(13)
    a(f"""v_cmp_gt_u32 vcc, s{sK2}, v{KEY}
    s_and_b64 vcc, vcc, s[48:49]
    s_cbranch_vccz Lnocs
    s_mov_b64 exec, vcc
    buffer_store_dwordx4 v[{OP}:{OP+3}], v{XA}, s[{sOUT}:{sOUT+3}], s42 offen
    s_mov_b64 exec, -1
    Lnocs:""")
    for t in range(2):
        k = (sK1, sK2)[t]
        fin = L_EX + 4096 * t; base = fin + 2048
        a(f"""s_bfe_u32 s35, s{k}, 0x50006
        s_cmp_eq_u32 s35, s{sRB}
        s_cbranch_scc0 Lown{t}x
        v_and_b32 v3, 7, v2
        v_lshlrev_b32 v3, 5, v3
        v_cmp_eq_u32 vcc, s{k}, v{KEY}
        s_cbranch_vccz Lown{t}a
        s_mov_b64 exec, vcc
        ds_write_b128 v3, v[{HU}:{HU+3}] offset:{base}
        ds_write_b128 v3, v[{HU+4}:{HU+7}] offset:{base+16}
        ds_write_b128 v3, v[{HNU}:{HNU+3}] offset:{base+256}
        ds_write_b128 v3, v[{HNU+4}:{HNU+7}] offset:{base+272}
        ds_write_b32 v3, v{RR} offset:{base+512}
        s_mov_b64 exec, -1
        Lown{t}a:
        s_cmp_eq_u32 s{sWAVE}, 7
        s_cbranch_scc1 Lown{t}b
        s_add_u32 s35, s{sCG}, {7*t}
        s_mul_i32 s35, s35, 7
        s_add_u32 s35, s35, s{sWAVE}
        s_lshl_b32 s35, s35, 11
        s_add_u32 s38, s35, {WS_PART}
        s_lshl_b32 s35, s{sWAVE}, 8
        v_and_b32 v3, 31, v2
        v_lshl_add_u32 v3, v3, 3, s35
        Lown{t}p:
        buffer_load_dwordx4 v[64:67], v{GA}, {WSR}, s38 offen sc1
        buffer_load_dwordx4 v[68:71], v{GA}, {WSR}, s38 offen offset:1024 sc1""")
        spin_guard(f"Lown{t}q")
        a(f"""s_waitcnt vmcnt(0)
        v_xor_b32 v65, s{sTAG}, v65
        v_xor_b32 v67, s{sTAG}, v67
        v_xor_b32 v69, s{sTAG}, v69
        v_xor_b32 v71, s{sTAG}, v71
        v_or3_b32 v65, v65, v67, v69
        v_or_b32 v65, v65, v71
        v_cmp_ne_u32 vcc, 0, v65
        s_cbranch_vccnz Lown{t}p
        Lown{t}q:
        s_waitcnt vmcnt(0)
        v_add_f32 v64, v64, v68
        v_add_f32 v65, v66, v70
        v_mov_b32 v66, v64
        v_mov_b32 v67, v65
        v_permlane32_swap_b32 v66, v64
        v_permlane32_swap_b32 v67, v65
        v_pk_add_f32 v[64:65], v[64:65], v[66:67]
        ds_write_b64 v3, v[64:65] offset:{fin}
        Lown{t}b:
        s_waitcnt lgkmcnt(0)
        s_barrier
        s_cmp_eq_u32 s{sWAVE}, 7
        s_cbranch_scc0 Lown{t}x
        v_lshlrev_b32 v3, 2, v2
        v_mov_b32 v4, 0""")
        for w in range(7): a(f"ds_read_b32 v{64+w}, v3 offset:{fin + 256*w}")
        a(f"""ds_read_b32 v71, v4 offset:{base+512}
        ds_read_b32 v72, v3 offset:{base}
        ds_read_b32 v73, v3 offset:{base+256}
        s_and_b32 s35, s{k}, 0x7ff
        s_mul_i32 s35, s35, 896
        s_add_u32 s35, s35, s42
        v_lshlrev_b32 v3, 1, v2
        s_waitcnt lgkmcnt(0)""")
        rbf(71, 71)
        a(f"""v_mul_f32 v71, {hex(f2u(-math.log2(math.e)))}, v71
        v_exp_f32 v71, v71
        v_add_f32 v64, v64, v65
        v_add_f32 v66, v66, v67
        v_add_f32 v71, 1.0, v71
        v_rcp_f32 v71, v71
        v_add_f32 v68, v68, v69
        v_add_f32 v64, v64, v70
        v_add_f32 v66, v66, v68
        v_add_f32 v64, v64, v66""")
        rbf(71, 71); rbf(64, 64)
        a("v_mul_f32 v64, v64, v71"); rbf(64, 64)
        a("v_add_f32 v64, v64, v73"); rbf(64, 64)
        a(f"""v_add_f32 v64, v64, v72
        v_cvt_pk_bf16_f32 v64, v64, v64
        buffer_store_short v64, v3, s[{sOUT}:{sOUT+3}], s35 offen
        Lown{t}x:""")
    stamp(14)
    flush_stamps(8, 7)
    a("s_endpgm")
    a(f"""Lffn:
    s_cmp_ge_u32 s{sF}, 28
    s_cbranch_scc1 Lexit""")
    srd(a, sX, pWU, 1605632); srd(a, sW, pWD, 1605632)
    a(f"""s_lshl_b32 s40, s{sF}, 7
    s_mul_i32 s35, s{sWAVE}, {8*3584}
    s_add_u32 s40, s40, s35
    s_lshl_b32 s41, s{sWAVE}, 10""")
    for n in range(7):
        a(f"s_add_u32 m0, s41, {L_WU + n*8192}\ns_add_u32 s35, s40, {n*64*3584}\nbuffer_load_dwordx4 v{W2A}, s[{sX}:{sX+3}], s35 offen lds")
    a(f"""v_lshrrev_b32 v3, 3, v2
    v_and_b32 v4, 7, v2
    v_mul_u32_u24 v3, 896, v3
    v_lshl_add_u32 v3, v4, 4, v3
    s_mul_i32 s40, s{sF}, {64*896}
    s_min_u32 s35, s{sWAVE}, 6
    s_lshl_b32 s35, s35, 7
    s_add_u32 s40, s40, s35""")
    for n in range(8):
        a(f"s_add_u32 s35, s40, {n*8*896}\nbuffer_load_dwordx4 v[{64+4*n}:{67+4*n}], v3, s[{sW}:{sW+3}], s35 offen")
    F1, F2 = 128, 192
    a(f"""v_lshrrev_b32 v3, 4, v2
    v_bfe_u32 v4, v2, 2, 2
    v_lshl_add_u32 v5, v3, 3, v4
    v_lshlrev_b32 v5, 7, v5
    v_and_b32 v6, 3, v2
    s_lshl_b32 s41, s{sWAVE}, 12
    v_lshl_add_u32 v9, v6, 3, v5
    v_add_u32 v9, s41, v9
    v_add_u32 v10, s41, v{GA}
    v_and_b32 v6, 1, v2
    s_lshl_b32 s35, s{sWAVE}, 4
    v_lshl_add_u32 v8, v6, 3, s35
    v_lshrrev_b32 v4, 1, v4
    v_lshlrev_b32 v4, 5, v4
    v_xor_b32 v8, v8, v4
    v_add_u32 v8, v8, v5
    v_bfe_u32 v4, v2, 1, 1
    v_mul_u32_u24 v4, {L_W2 - L_WU}, v4
    v_sub_u32 v8, v8, v4
    v_add_u32 v8, {L_W2}, v8
    v_mul_u32_u24 v11, 896, v6
    v_lshl_add_u32 v11, v3, 4, v11
    v_add_u32 v11, {L_XS}, v11
    v_lshlrev_b32 v12, 7, v6
    v_add_u32 v12, {L_A}, v12
    v_and_b32 v4, 1, v3
    v_lshl_add_u32 v13, v4, 3, v12
    v_add_u32 v13, s35, v13
    v_lshl_add_u32 v12, v3, 4, v12
    v_cmp_eq_u32 s[44:45], 1, v3
    v_cmp_eq_u32 s[46:47], 2, v3
    v_cmp_eq_u32 s[48:49], 3, v3
    s_waitcnt vmcnt(0)
    s_barrier""")
    stamp(8)
    for ks in range(14):
        for s_ in range(2): a(f"ds_read_b64_tr_b16 v[{F1+4*ks+2*s_}:{F1+4*ks+2*s_+1}], v8 offset:{ks*4096 + s_*512}")
        if ks % 4 == 3: a("s_waitcnt lgkmcnt(4)")
    for ks in range(2):
        a("s_waitcnt lgkmcnt(0)")
        for n in range(4): a(f"ds_write_b128 v10, v[{64+16*ks+4*n}:{67+16*ks+4*n}] offset:{1024*n}")
        for ct in range(4):
            for s_ in range(2):
                w = F2 + (ks*4 + ct)*4 + 2*s_
                a(f"ds_read_b64_tr_b16 v[{w}:{w+1}], v9 offset:{ct*32 + s_*512}")
    a(f"""s_cmp_eq_u32 s{sWAVE}, 7
    s_cbranch_scc0 Lf2""")
    stamp(9)
    poll_scores("Lfs", sK1, sK2)
    stamp(10)
    a(f"""v_min_u32 v3, 55, v2
    v_lshlrev_b32 v4, 3, v3
    v_add_u32 v4, {L_XS}, v4
    v_lshlrev_b32 v3, 4, v3
    s_and_b32 s38, s{sK1}, 0x7ff
    s_lshl_b32 s38, s38, 11
    s_add_u32 s38, s38, {WS_CAND}
    s_and_b32 s39, s{sK2}, 0x7ff
    s_lshl_b32 s39, s39, 11
    s_add_u32 s39, s39, {WS_CAND}
    Lfc:
    buffer_load_dwordx3 v[16:18], v3, {WSR}, s38 offen sc1
    buffer_load_dwordx3 v[20:22], v3, {WSR}, s38 offen offset:896 sc1
    buffer_load_dwordx3 v[24:26], v3, {WSR}, s39 offen sc1
    buffer_load_dwordx3 v[28:30], v3, {WSR}, s39 offen offset:896 sc1""")
    spin_guard("Lfcx")
    a(f"""s_waitcnt vmcnt(0)
    v_xor_b32 v18, s{sTAG}, v18
    v_xor_b32 v22, s{sTAG}, v22
    v_xor_b32 v26, s{sTAG}, v26
    v_xor_b32 v30, s{sTAG}, v30
    v_or3_b32 v18, v18, v22, v26
    v_or_b32 v18, v18, v30
    v_cmp_ne_u32 vcc, 0, v18
    s_cbranch_vccnz Lfc
    Lfcx:
    s_waitcnt vmcnt(0)
    ds_write_b64 v4, v[16:17]
    ds_write_b64 v4, v[20:21] offset:448
    ds_write_b64 v4, v[24:25] offset:896
    ds_write_b64 v4, v[28:29] offset:1344
    Lf2:
    s_waitcnt lgkmcnt(0)
    s_barrier""")
    stamp(11)
    for ks in range(14): a(f"ds_read_b128 v[{64+4*ks}:{67+4*ks}], v11 offset:{64*ks}")
    for ks in range(14):
        a(f"s_waitcnt lgkmcnt({13-ks})")
        a(f"{M16} v[16:19], v[{F1+4*ks}:{F1+4*ks+3}], v[{64+4*ks}:{67+4*ks}], {'0' if ks == 0 else 'v[16:19]'}")
    a("v_cvt_pk_bf16_f32 v20, v16, v17\nv_cvt_pk_bf16_f32 v21, v18, v19\nv_mov_b32 v22, v20\nv_mov_b32 v23, v21")
    a("v_permlane32_swap_b32 v22, v20\nv_permlane32_swap_b32 v23, v21")
    for p in range(2): a(f"v_lshlrev_b32 v{24+2*p}, 16, v{22+p}\nv_and_b32 v{25+2*p}, 0xffff0000, v{22+p}")
    for i in range(4): a(f"v_mul_f32 v{28+i}, {hex(f2u(-math.log2(math.e)))}, v{24+i}")
    for i in range(4): a(f"v_exp_f32 v{28+i}, v{28+i}")
    for p in range(2): a(f"v_lshlrev_b32 v{16+2*p}, 16, v{20+p}\nv_and_b32 v{17+2*p}, 0xffff0000, v{20+p}")
    for i in range(4): a(f"v_add_f32 v{28+i}, 1.0, v{28+i}")
    for i in range(4): a(f"v_rcp_f32 v{28+i}, v{28+i}")
    for i in range(4): a(f"v_mul_f32 v{24+i}, v{24+i}, v{28+i}")
    a("v_cvt_pk_bf16_f32 v22, v24, v25\nv_cvt_pk_bf16_f32 v23, v26, v27")
    for p in range(2): a(f"v_lshlrev_b32 v{24+2*p}, 16, v{22+p}\nv_and_b32 v{25+2*p}, 0xffff0000, v{22+p}")
    for i in range(4): a(f"v_mul_f32 v{24+i}, v{24+i}, v{16+i}")
    a(f"""v_cvt_pk_bf16_f32 v22, v24, v25
    v_cvt_pk_bf16_f32 v23, v26, v27
    ds_write_b64 v13, v[22:23]
    s_mul_i32 s35, s{sWAVE}, 28
    s_add_u32 s35, s35, s{sF}
    s_lshl_b32 s35, s35, 9
    s_add_u32 s38, s35, {WS_PART}
    s_add_u32 s39, s38, {7*28*512}
    v_lshlrev_b32 v3, 3, v2
    s_waitcnt lgkmcnt(0)
    s_barrier""")
    stamp(12)
    a(f"""s_cmp_eq_u32 s{sWAVE}, 7
    s_cbranch_scc1 Lfend
    ds_read_b128 v[64:67], v12
    ds_read_b128 v[68:71], v12 offset:64
    v_mov_b32 v49, s{sTAG}
    v_mov_b32 v51, s{sTAG}""")
    for ks in range(2):
        a(f"s_waitcnt lgkmcnt({1-ks})")
        for ct in range(4):
            w = F2 + (ks*4 + ct)*4; c = 32 + 4*ct
            a(f"{M16} v[{c}:{c+3}], v[{64+4*ks}:{67+4*ks}], v[{w}:{w+3}], {'0' if ks == 0 else f'v[{c}:{c+3}]'}")
    for t in range(2):
        a(f"""v_cndmask_b32 v{48+2*t}, v{32+t}, v{36+t}, s[44:45]
        v_cndmask_b32 v{48+2*t}, v{48+2*t}, v{40+t}, s[46:47]
        v_cndmask_b32 v{48+2*t}, v{48+2*t}, v{44+t}, s[48:49]
        buffer_store_dwordx2 v[{48+2*t}:{49+2*t}], v3, {WSR}, s{38+t} offen sc1""")
    a("Lfend:")
    stamp(13)
    flush_stamps(8, 6)
    a("s_endpgm")

if __name__ == "__main__":
    opt = {}
    out = f"cdna_kernels/{NAME}.s"
    for x in sys.argv[1:]:
        if x.startswith("out="): out = x[4:]
        elif "=" in x: k, v = x.split("="); opt[k] = v
        else: opt[x] = True
    open(out, "w").write(build(opt))
```

```python
import re
TRANS = ("v_exp_f32", "v_log_f32", "v_rcp_f32", "v_rsq_f32", "v_sqrt_f32", "v_sin_f32", "v_cos_f32")
def regs(op):
    op = op.strip().strip("|")
    if op.startswith("-"): op = op[1:].strip("|")
    m = re.fullmatch(r"([vsa])(\d+)", op)
    if m: return {(m.group(1), int(m.group(2)))}
    m = re.fullmatch(r"([vsa])\[(\d+):(\d+)\]", op)
    if m: return {(m.group(1), i) for i in range(int(m.group(2)), int(m.group(3)) + 1)}
    if op == "vcc": return {("s", "vcc_lo"), ("s", "vcc_hi")}
    if op in ("vcc_lo", "vcc_hi", "exec_lo", "exec_hi", "m0"): return {("s", op)}
    if op == "exec": return {("s", "exec_lo"), ("s", "exec_hi")}
    return set()
class I:
    def __init__(self, text):
        self.text = text
        t = text.split(";")[0].strip()
        self.label = t[:-1] if t.endswith(":") else None
        self.dir = t.startswith(".") or t == ""
        self.mn = None; self.R = set(); self.W = set(); self.kind = None
        self.states = 0
        if self.label or self.dir: return
        p = t.split(None, 1)
        mn = self.mn = p[0]
        rest = p[1] if len(p) > 1 else ""
        ops = []; cur = ""; d = 0
        for ch in rest:
            if ch == "[": d += 1
            if ch == "]": d -= 1
            if ch == "," and d == 0: ops.append(cur.strip()); cur = ""
            else: cur += ch
        if cur.strip(): ops.append(cur.strip())
        mods = ""
        if ops:
            q = ops[-1].split(None, 1)
            ops[-1] = q[0]; mods = q[1] if len(q) > 1 else ""
        self.ops = ops; self.mods = mods
        self.states = 1
        U = lambda l: set().union(*[regs(o) for o in l]) if l else set()
        if mn == "s_nop": self.kind = "nop"; self.states = int(ops[0]) + 1
        elif mn.startswith("v_mfma") or mn.startswith("v_smfmac"):
            self.kind = "mfma"; self.W = regs(ops[0]); self.AB = regs(ops[1]) | regs(ops[2])
            if mn.startswith("v_smfmac"): self.C = regs(ops[0]); self.AB |= regs(ops[3])
            else: self.C = regs(ops[3])
            self.R = self.AB | self.C
            self.passes = 8 if "32x32" in mn else 4
        elif mn.startswith("v_"):
            self.kind = "valu"
            self.W = regs(ops[0]); self.R = U(ops[1:])
            if "permlane" in mn: self.W |= regs(ops[1]); self.R |= regs(ops[0])
            if mn.startswith(("v_dot2c", "v_fmac", "v_writelane")) or "_dpp" in mn: self.R |= regs(ops[0])
            if mn.startswith("v_cmpx"): self.W |= regs("exec")
            if "_co_" in mn: self.W |= regs(ops[1])
        elif mn.startswith("ds_"):
            self.kind = "mem"
            if mn.startswith(("ds_read", "ds_bpermute", "ds_permute", "ds_swizzle")) or "_rtn" in mn:
                self.W = regs(ops[0]); self.R = U(ops[1:])
            else: self.R = U(ops)
        elif mn in ("buffer_wbl2", "buffer_inv"): self.kind = "mem"
        elif mn.startswith(("buffer_", "global_")):
            self.kind = "mem"; self.vmem = True
            lds = " lds" in " " + mods or "_lds_" in mn
            if "load" in mn and not lds: self.W = regs(ops[0]); self.R = U(ops[1:])
            else: self.R = U(ops)
            if lds: self.R |= regs("m0"); self.lds = True
            if "store" in mn and mn.endswith(("x3", "x4")):
                self.wide = regs(ops[0]) if mn.startswith("buffer") else regs(ops[1])
        elif mn.startswith("s_"):
            self.kind = "salu"
            if mn.startswith(("s_cmp", "s_bitcmp")): self.R = U(ops)
            elif mn.startswith(("s_cbranch", "s_branch", "s_waitcnt", "s_barrier", "s_setprio", "s_endpgm", "s_sleep")): pass
            else:
                self.W = regs(ops[0]); self.R = U(ops[1:])
                if "saveexec" in mn: self.W |= regs("exec")
        else: raise ValueError("unknown instr " + t)
def isv(s): return {r for r in s if r[0] in "va"}
def iss(s): return {r for r in s if r[0] == "s"}
def need(p, c):
    n = 0
    if p.kind == "valu":
        vw = isv(p.W); sw = iss(p.W)
        dl = p.mn.startswith("v_dot")
        if c.kind == "mfma" and vw & c.R: n = max(n, 3 if dl else 2)
        if c.kind == "mfma" and ("s", "exec_lo") in sw: n = max(n, 4)
        if c.kind == "valu":
            if vw & c.R:
                if c.mn.startswith(("v_readlane", "v_readfirstlane")): n = max(n, 1)
                if "_dpp" in c.mn or "permlane" in c.mn: n = max(n, 2)
                if p.mn in TRANS and c.mn not in TRANS: n = max(n, 1)
            if dl and (vw & (c.R | c.W)):
                same_c = c.mn == p.mn and not (vw & set().union(*[regs(o) for o in c.ops[1:3]]))
                if not same_c: n = max(n, 3)
            if sw & c.R:
                n = max(n, 4 if c.mn.startswith(("v_readlane", "v_writelane")) else 2)
            if ("s", "exec_lo") in sw:
                if "_dpp" in c.mn: n = max(n, 5)
                if "permlane" in c.mn or c.mn.startswith(("v_readlane", "v_readfirstlane", "v_writelane")): n = max(n, 4)
        if c.kind == "mem":
            if dl and vw & (c.R | c.W): n = max(n, 3)
            if p.mn in TRANS and vw & c.R: n = max(n, 1)
            if getattr(c, "vmem", False) and sw & c.R: n = max(n, 5)
    elif p.kind == "mfma":
        full = {8: 12, 4: 8}[p.passes]
        if c.kind == "mfma":
            if p.W & c.AB: n = max(n, full)
            if p.W & c.C and not (p.W == c.C and p.passes == c.passes): n = max(n, {8: 10, 4: 6}[p.passes])
        elif c.kind in ("valu", "mem"):
            if p.W & (c.R | c.W): n = max(n, full)
            if c.kind == "valu" and p.C & c.W: n = max(n, {8: 7, 4: 3}[p.passes])
    elif p.kind == "mem":
        w = getattr(p, "wide", None)
        if w and (w & c.W): n = max(n, 2)
        if c.kind == "valu" and "_dpp" in c.mn and False: pass
    elif p.kind == "salu":
        if ("s", "m0") in p.W and getattr(c, "lds", False): n = max(n, 1)
    return n
MAXD = 12
TRANS2 = False
def fix(lines, verbose=False):
    ins = [I(l) for l in lines]
    total = 0
    while True:
        lab = {x.label: i for i, x in enumerate(ins) if x.label}
        src = {}
        for i, x in enumerate(ins):
            if x.mn and x.mn.startswith(("s_cbranch", "s_branch")): src.setdefault(lab[x.ops[0]], []).append(i)
        pad = {}
        def preds(i):
            out = list(src.get(i, []))
            if i > 0 and ins[i - 1].mn not in ("s_branch", "s_endpgm"): out.append(i - 1)
            return out
        for i, c in enumerate(ins):
            if c.kind not in ("valu", "mfma", "mem"): continue
            short = 0; why = None
            stack = [(p, 0) for p in preds(i)]; seen = {}
            while stack:
                j, d = stack.pop()
                if d >= MAXD or seen.get(j, 99) <= d: continue
                seen[j] = d
                p = ins[j]
                if p.kind:
                    n = need(p, c)
                    if n - d > short: short = n - d; why = p
                for k in preds(j): stack.append((k, d + p.states + pad.get(j, 0) + (1 if TRANS2 and p.mn in TRANS and c.mn in TRANS else 0)))
            if short > 0:
                if verbose: print(f"hazard: +{short} before '{c.text.strip()}' (after '{why.text.strip()}')")
                pad[i] = short
        if not pad: break
        out = []
        for i, x in enumerate(ins):
            if i in pad: out.append(I(f"    s_nop {pad[i] - 1}"))
            out.append(x)
        ins = out; total += len(pad)
    return [x.text for x in ins], total
```

```python
import sys, math, struct
sys.path.insert(0, "old3")
from asmlib import *
import hazard

NAME = "sequential_preLN__mha_block__moe_arch_mod__prompt"
MF = "v_mfma_f32_32x32x16_bf16"
M16 = "v_mfma_f32_16x16x32_bf16"
SM = "v_smfmac_f32_32x32x32_bf16"
WS_SEL = 0x800; WS_SCORE = 0x1000; WS_XCC = 0x2000; WS_FLAG = 0x3000
WS_PART = 0x8000; WS_CAND = 0x40000; WS_STAT = 0x80000; WS_FLAG2 = 0xC0000
WS_KV = 0x100000; WS_O = 0x600000; WS_DBG = 0xC00000; WS_SIZE = 0x1000000
L_W = 65536
L_W2 = 98304
L_QX = L_W2 + 32768
L_MISC = 155648
L_SCR = L_MISC
L_BAD = L_MISC + 1024
L_KEY = L_MISC + 1280
L_SEL = L_MISC + 1536
L_LOC = L_MISC + 1600
L_CS = L_MISC + 4608
L_XS = L_MISC + 2048
L_A = L_MISC + 4096
L_EX = 32768
L_WU = 32768
sOO, sF2, sF2C, sTCH, sLOC = 3, 4, 5, 6, 7
sX, sW, sWS, sW2, sOUT = 8, 12, 16, 20, 24
sWAVE, sRT, sGRP, sQB, sH, sTAG, sROT = 28, 29, 30, 31, 32, 33, 34
sKVS, sKVL, sXCC, sTST = 39, 40, 50, 38
sJ, sXCD, sRB, sCG, sF, sRETRY, sONES, sSPIN = 51, 52, 53, 54, 55, 56, 57, 58
sK1, sK2, sW2X, sW2M, sG = 59, 60, 61, 62, 63
pX, pW, pWO, pWR, pWG, pWU, pWD, pOUT, pWS = 64, 66, 68, 72, 74, 76, 78, 80, 84
sW2L, sW2G, sW2Ls, sW2Gs = 70, 71, 82, 83
GA = 7
W2A, CW, TCH, F2A, F2V, TC2, ZR = 112, 113, 114, 115, 116, 117, 120
OA, XA, PF = 124, 127, 240
SPIN = 50000
EPS = 0x3727C5AC
WSR = f"s[{sWS}:{sWS+3}]"
def f2u(x): return struct.unpack("<I", struct.pack("<f", x))[0]

class Vm:
    def __init__(self): self.q = []
    def add(self, tag, n=1): self.q += [tag] * n
    def wait(self, tag):
        idx = max(i for i, t in enumerate(self.q) if t == tag)
        n = len(self.q) - 1 - idx
        self.q = self.q[idx + 1:]
        return n

class G:
    def __init__(self, opt):
        self.opt = opt; self.a = Asm(); self.stamps = opt.get("stamps", False); self.n = 0
    def lab(self, p):
        self.n += 1
        return f"L{p}_{self.n}"
    def stamp(self, k, att=False):
        mode = "a" if self.opt.get("astamps") else "c" if self.opt.get("cstamps") else "s" if self.opt.get("sstamps") else "e" if self.opt.get("estamps") else False
        if att is True: att = "a"
        if 0 < k < 8 and att != mode: return
        if self.stamps: self.a(f"{'s_memtime' if self.opt.get('cyc') else 's_memrealtime'} s[{86+2*(k%8)}:{87+2*(k%8)}]")
    def flush_stamps(self, base, n, final=True):
        a = self.a
        if not self.stamps: return
        a("s_waitcnt lgkmcnt(0)")
        for k in range(base, base + n): a(f"v_writelane_b32 v125, s{86+2*(k%8)}, {k}")
        if not final: return
        if self.opt.get("probe"):
            k, wv, wg = [int(x) for x in self.opt["probe"].split(",")]
            l1, l2 = self.lab("pr"), self.lab("prx")
            a(f"""s_cmp_eq_u32 s2, {wg}
            s_cbranch_scc0 {l2}
            s_cmp_eq_u32 s{sWAVE}, {wv}
            s_cbranch_scc0 {l2}
            s_nop 4
            v_readlane_b32 s35, v125, 0
            v_readlane_b32 s36, v125, {k}
            s_sub_u32 s36, s36, s35
            s_min_u32 s36, s36, 6000
            s_lshl_b32 s36, s36, 2
            s_add_u32 s36, s36, {self.opt.get("pspan", 4000)}
            {l1}:
            s_memrealtime s[86:87]
            s_waitcnt lgkmcnt(0)
            s_sub_u32 s37, s86, s35
            s_cmp_lt_u32 s37, s36
            s_cbranch_scc1 {l1}
            {l2}:""")
            return
        a(f"s_lshl_b32 s35, s2, 3\ns_add_u32 s35, s35, s{sWAVE}\ns_lshl_b32 s35, s35, 7\ns_add_u32 s35, s35, {WS_DBG + 0x300000}")
        a(f"v_lshlrev_b32 v126, 2, v2\ns_mov_b32 exec_hi, 0\nbuffer_store_dword v125, v126, {WSR}, s35 offen")
    def spin_guard(self, out):
        self.a(f"s_sub_u32 s{sSPIN}, s{sSPIN}, 1\ns_bitcmp1_b32 s{sSPIN}, 31\ns_cbranch_scc1 {out}")
    def rbf(self, dst, src):
        self.a(f"v_cvt_pk_bf16_f32 v{dst}, v{src}, v{src}\nv_lshlrev_b32 v{dst}, 16, v{dst}")
    def ln_stats(self, s1, s2, nmb, rstd, t):
        a = self.a
        a(f"""v_mul_f32 v{s1}, {hex(f2u(1/448))}, v{s1}
        v_mul_f32 v{s2}, {hex(f2u(1/448))}, v{s2}
        v_fma_f32 v{s2}, -v{s1}, v{s1}, v{s2}
        v_max_f32 v{s2}, 0, v{s2}
        v_cvt_pk_bf16_f32 v{t}, v{s2}, -v{s1}
        v_lshlrev_b32 v{s2}, 16, v{t}
        v_add_f32 v{s2}, {hex(EPS)}, v{s2}""")
        self.rbf(s2, s2)
        a(f"v_sqrt_f32 v{s2}, v{s2}\nv_and_b32 v{nmb}, 0xffff0000, v{t}")
        self.rbf(s2, s2)
        a(f"v_rcp_f32 v{rstd}, v{s2}")
    def allred32(self, pairs):
        a = self.a
        for r, t in pairs: a(f"v_mov_b32 v{t}, v{r}")
        for r, t in pairs: a(f"v_permlane32_swap_b32 v{t}, v{r}")
        for r, t in pairs: a(f"v_add_f32 v{r}, v{t}, v{r}")
    def dual(self, lines):
        a = self.a
        if self.opt.get("force") == "global":
            for l in lines: a(l.replace("@", "sc1").replace("#", "128"))
            return
        l1, l2 = self.lab("glob"), self.lab("join")
        a(f"s_cmp_eq_u32 s{sLOC}, 0\ns_cbranch_scc1 {l1}")
        for l in lines: a(l.replace("@", self.opt.get("lst", "").replace("_", " ")).replace("#", "0"))
        a(f"{l2}:")
        self.ool.append(f"{l1}:\n" + "\n".join(l.replace("@", "sc1").replace("#", "128") for l in lines) + f"\ns_branch {l2}")
    def xcc_load(self, d, t):
        self.a(f"""v_and_b32 v{t}, 31, v2
        v_lshlrev_b32 v{t}, 3, v{t}
        s_lshl_b32 s35, s{sXCD}, 8
        s_add_u32 s35, s35, {WS_XCC}
        buffer_load_dwordx2 v[{d}:{d+1}], v{t}, {WSR}, s35 offen sc1""")
    def xcc_eval(self, d):
        self.a(f"""v_cmp_ne_u32 vcc, s{sTAG}, v{d}
        v_cmp_ne_u32 s[36:37], s{sXCC}, v{d+1}
        s_or_b64 vcc, vcc, s[36:37]
        s_cselect_b32 s{sLOC}, 0, 1""")
    def tr_addr(self, d):
        self.a(f"""v_lshrrev_b32 v4, 5, v2
        v_bfe_u32 v5, v2, 2, 2
        v_lshl_add_u32 v6, v4, 3, v5
        v_bfe_u32 v{d}, v2, 4, 1
        v_and_b32 v25, 3, v2
        v_lshl_add_u32 v{d}, v{d}, 2, v25
        v_add_u32 v25, 2, v{d}
        v_lshrrev_b32 v25, 3, v25
        v_xor_b32 v{d}, v{d}, v25
        v_lshlrev_b32 v25, 3, v{d}
        v_lshl_add_u32 v{d}, v6, 7, v25
        v_lshrrev_b32 v5, 1, v5
        v_lshl_add_u32 v{d}, v5, 6, v{d}""")
    def roles(self, grp, t=3):
        a = self.a
        a(f"""s_mul_i32 s35, s{sJ}, 37
        s_lshr_b32 s35, s35, 8
        s_mul_i32 s36, s35, 7
        s_sub_u32 s{sCG}, s{sJ}, s36
        s_lshl_b32 s36, s{sXCD}, 2
        s_add_u32 s{sF}, s36, s{sCG}
        s_min_u32 s35, s35, 3
        s_add_u32 s{sRB}, s36, s35
        s_lshl_b32 s35, s{sH}, 6
        s_add_u32 s35, s35, s{sRT}
        s_lshl_b32 s36, s35, 12
        s_add_u32 s{sKVS}, s36, {WS_KV}
        s_lshl_b32 s{sKVL}, s{sRT}, 12
        s_lshl_b32 s36, s{sQB}, 2
        s_add_u32 s35, s35, s36
        s_lshl_b32 s36, s35, 11
        s_add_u32 s{sOO}, s36, {WS_O}
        s_lshl_b32 s36, s35, 7
        s_add_u32 s{sF2}, s36, {WS_FLAG2}
        s_lshl_b32 s36, s{sRB}, 1
        s_lshr_b32 s35, s{sRT}, 1
        s_add_u32 s35, s35, s36
        s_lshl_b32 s35, s35, 7
        s_add_u32 s{sF2C}, s35, {WS_FLAG2 + grp*8*64*128}
        v_and_b32 v1, 7, v2
        v_lshlrev_b32 v{F2A}, 13, v1
        s_lshl_b32 s35, s{sWAVE}, 11
        v_add_u32 v{CW}, s35, v{GA}
        v_mov_b32 v{ZR}, 0
        v_mov_b32 v{ZR+1}, 0
        v_mov_b32 v{ZR+2}, 0
        v_mov_b32 v{ZR+3}, 0
        v_lshrrev_b32 v1, 3, v2""")
        a(f"""s_lshl_b32 s35, s{sRB}, 2
        s_add_u32 s35, s35, s{sRT}
        s_lshl_b32 s35, s35, 4
        s_add_u32 s35, s35, {8*grp}
        v_add_u32 v1, s35, v1
        v_mul_u32_u24 v1, 896, v1
        v_and_b32 v{t}, 0x70, v{GA}
        v_add_u32 v{XA}, v1, v{t}
        s_and_b32 s35, s{sRT}, 1
        s_lshl_b32 s35, s35, 8
        v_and_b32 v1, 0xf0, v{GA}
        v_and_b32 v{t}, 0x300, v{GA}
        v_lshl_add_u32 v1, v{t}, 1, v1
        v_add_u32 v{OA}, s35, v1""")
        if grp == 1:
            srd(a, sW2, pWO, 401408)
            a(f"""s_and_b32 s36, s{sRT}, 1
            s_lshl_b32 s36, s36, 6
            v_bfe_u32 v{t}, v2, 4, 1
            v_lshlrev_b32 v{t}, 5, v{t}
            v_and_b32 v1, 0x70, v{GA}
            v_xor_b32 v{t}, v{t}, v1
            v_xor_b32 v{t}, s36, v{t}
            v_lshrrev_b32 v1, 3, v2
            v_mul_u32_u24 v1, 896, v1
            v_add_u32 v{W2A}, v1, v{t}
            s_lshl_b32 s{sW2G}, s{sCG}, 7
            s_mul_i32 s35, s{sRT}, {7*896}
            s_add_u32 s{sW2G}, s{sW2G}, s35
            s_mul_i32 s{sW2L}, s{sRT}, 896
            s_lshl_b32 s35, s{sJ}, 2
            s_add_u32 s35, s35, s{sRT}
            s_mul_i32 s35, s35, {25*128}
            v_min_u32 v1, 24, v2
            v_lshl_add_u32 v{TC2}, v1, 7, s35""")
            a(f"""s_lshr_b32 s35, s{sJ}, 3
            s_lshl_b32 s36, s{sXCD}, 2
            s_add_u32 s35, s35, s36
            s_min_u32 s35, s35, 27
            s_cmp_eq_u32 s{sRT}, 1
            s_cselect_b64 s[{sOUT}:{sOUT+1}], s[{pWG}:{pWG+1}], s[{pWU}:{pWU+1}]
            s_add_u32 s36, s{sRT}, 1
            s_bitcmp0_b32 s36, 1
            s_cselect_b64 s[{sOUT}:{sOUT+1}], s[{pWD}:{pWD+1}], s[{sOUT}:{sOUT+1}]
            s_mov_b32 s{sOUT+2}, 1605632
            s_mov_b32 s{sOUT+3}, 0x00020000
            s_movk_i32 s36, 128
            s_cselect_b32 s37, s36, 3584
            s_cselect_b32 s36, 57344, s36
            s_mul_i32 s{sTCH}, s35, s36
            s_and_b32 s35, s{sJ}, 7
            s_mul_i32 s35, s35, 56
            s_mul_i32 s35, s35, s37
            s_add_u32 s{sTCH}, s{sTCH}, s35
            v_min_u32 v1, 55, v2
            v_mul_u32_u24 v{TCH}, s37, v1""")
            return
        a(f"""s_lshl_b32 s35, s2, 2
        s_add_u32 s35, s35, s{sRT}
        s_lshl_b32 s35, s35, 9
        v_and_b32 v1, 3, v2
        v_lshl_add_u32 v{TC2}, v1, 7, s35
        s_lshl_b32 s35, s{sRB}, 2
        s_add_u32 s35, s35, s{sRT}
        s_lshl_b32 s35, s35, 11
        s_lshl_b32 s36, s{sCG}, 7
        s_add_u32 s35, s35, s36
        s_add_u32 s35, s35, {WS_STAT}
        v_and_b32 v1, 1, v2
        v_lshl_add_u32 v1, v1, 10, s35
        s_mov_b32 exec_lo, 0
        v_mov_b32 v{TC2}, v1
        s_mov_b32 exec_lo, -1""")

    def head(self):
        a = self.a; opt = self.opt
        ra, rb_, rc = [int(x) for x in opt.get("rot", "1,3,1").split(",")]
        a(khead(NAME + "_kernel"))
        a("s_cmp_ge_u32 s2, 256\ns_cbranch_scc1 Lexit")
        self.stamp(0)
        a(f"""s_load_dwordx16 s[64:79], s[0:1], 0
        s_load_dwordx2 s[80:81], s[0:1], 64
        s_load_dwordx2 s[84:85], s[0:1], 80
        v_lshrrev_b32 v1, 6, v0
        v_and_b32 v2, 63, v0
        v_readfirstlane_b32 s{sWAVE}, v1
        s_and_b32 s{sXCD}, s2, 7
        s_lshr_b32 s{sJ}, s2, 3
        s_and_b32 s{sQB}, s{sJ}, 15
        s_lshr_b32 s35, s{sJ}, 4
        s_lshl_b32 s36, s{sXCD}, 1
        s_add_u32 s{sH}, s36, s35
        s_lshl_b32 s36, s35, 3
        s_add_u32 s{sG}, s36, s{sXCD}
        s_and_b32 s{sRT}, s{sWAVE}, 3
        s_lshr_b32 s{sGRP}, s{sWAVE}, 2
        s_cmp_eq_u32 s{sGRP}, 0
        s_cbranch_scc1 Lload
        @TOUR
        s_branch Lcomp
        Lload:
        s_mul_i32 s36, s{sXCD}, {ra}
        s_mul_i32 s35, s35, {rb_}
        s_add_u32 s36, s36, s35
        s_mul_i32 s35, s{sQB}, {rc}
        s_add_u32 s36, s36, s35
        s_mul_i32 s37, s36, 37
        s_lshr_b32 s37, s37, 8
        s_mul_i32 s37, s37, 7
        s_sub_u32 s{sROT}, s36, s37""")
    def consts(self):
        self.a(f"""s_mov_b32 s{sSPIN}, {SPIN}
        s_mov_b32 s{sRETRY}, {-1 if self.opt.get('linst') else 0}
        s_mov_b32 s{sONES}, 0x3f803f80
        v_lshlrev_b32 v{GA}, 4, v2""")
        if self.stamps: self.a("v_mov_b32 v125, 0")
    def epoch_to_tag(self):
        self.a(f"s_mul_i32 s{sTAG}, s{sTAG}, 0x9e3779b1\ns_add_u32 s{sTAG}, s{sTAG}, 0x7f4a7c15")

    def loader(self):
        a = self.a; stamp = self.stamp
        XA, WA, QA = 8, 12, 14
        a(f"""v_lshrrev_b32 v3, 3, v2
        v_and_b32 v4, 7, v2
        v_lshrrev_b32 v5, 4, v2
        v_xor_b32 v6, v4, v5
        v_mul_u32_u24 v15, 896, v3
        v_lshl_add_u32 v{XA}, v6, 4, v15
        v_xor_b32 v6, 4, v6
        v_lshl_add_u32 v{XA+1}, v6, 4, v15
        v_add_u32 v{XA+2}, {2*6144}, v{XA}
        v_add_u32 v{XA+3}, {3*6144}, v{XA+1}
        v_add_u32 v{XA+1}, {6144}, v{XA+1}
        v_and_b32 v4, 3, v2
        v_lshlrev_b32 v4, 4, v4
        v_min_u32 v4, 40, v4
        v_lshrrev_b32 v6, 2, v2
        v_mul_u32_u24 v15, 2688, v6
        v_add_u32 v{QA}, v15, v4
        v_xor_b32 v6, v6, v5
        v_and_b32 v6, 1, v6
        v_mul_u32_u24 v6, 56, v6
        v_mul_u32_u24 v15, 2688, v3
        v_add3_u32 v{WA}, v15, v6, v4
        v_add_u32 v{WA+1}, {8*2688-1024}, v{WA}
        s_mul_i32 s48, s{sQB}, 114688
        s_mul_i32 s35, s{sRT}, 28672
        s_add_u32 s48, s48, s35
        s_mul_i32 s41, s{sRT}, {16*2688}
        s_mul_i32 s42, s{sH}, 56
        s_add_u32 s42, s42, s41
        s_mul_i32 s35, s{sG}, 112
        s_add_u32 s41, s41, s35
        s_add_u32 s41, s41, 896
        s_lshl_b32 s43, s{sRT}, 12
        s_lshl_b32 s44, s{sRT}, 11
        s_lshl_b32 s45, s{sRT}, 10
        s_mov_b32 s46, s{sROT}
        s_mov_b32 s{sX+2}, 1835008
        s_mov_b32 s{sX+3}, 0x00020000
        s_mov_b32 s{sW+2}, 1204224
        s_mov_b32 s{sW+3}, 0x00020000""")
        stamp(1, "s")
        a(f"s_waitcnt lgkmcnt(0)\ns_mov_b64 s[{sX}:{sX+1}], s[{pX}:{pX+1}]\ns_mov_b64 s[{sW}:{sW+1}], s[{pW}:{pW+1}]")
        stamp(2, "s")
        vm = Vm()
        def adv(r): a(f"s_add_u32 s{r}, s{r}, 1\ns_cmp_eq_u32 s{r}, 7\ns_cselect_b32 s{r}, 0, s{r}")
        def issue_chunk(i):
            a(f"""s_mul_i32 s35, s46, {64*2688}
            s_add_u32 s35, s35, s41
            s_add_u32 m0, s44, {L_W + (i % 4) * 8192}
            s_lshl_b32 s36, s46, 7
            buffer_load_dwordx4 v{WA}, s[{sW}:{sW+3}], s35 offen lds
            buffer_load_dwordx4 v{WA+1}, s[{sW}:{sW+3}], s35 offen offset:1024 lds
            s_add_u32 m0, s43, {(i % 4) * 16384}
            s_add_u32 s36, s36, s48""")
            for n in range(4): a(f"buffer_load_dwordx4 v{XA+n}, s[{sX}:{sX+3}], s36 offen offset:{n*1024} lds")
            if i < 6: adv(46)
            vm.add(("c", i), 6)
        def issue_q(i):
            a(f"""s_mul_i32 s35, s{sROT}, {64*2688}
            s_add_u32 m0, s45, {L_W2 + i * 4096}
            s_add_u32 s35, s35, s42
            buffer_load_dwordx4 v{QA}, s[{sW}:{sW+3}], s35 offen lds""")
            if i < 6: adv(sROT)
            vm.add(("q", i))
        LA = 2
        a(f"s_load_dword s{sTAG}, s[{pWS}:{pWS+1}], 0")
        issue_chunk(0)
        stamp(3, "s")
        srd(a, sWS, pWS, WS_SIZE)
        self.consts()
        a(f"""s_lshl_b32 s35, s{sXCD}, 19
        s_bfe_u32 s36, s{sJ}, 0x20003
        s_lshl_b32 s36, s36, 17
        s_add_u32 s35, s35, s36
        s_and_b32 s36, s{sJ}, 7
        s_lshl_b32 s36, s36, 12
        s_add_u32 s35, s35, s36
        s_add_u32 s35, s35, s45
        s_add_u32 s35, s35, {WS_KV}
        v_and_b32 v28, 7, v2
        v_lshl_add_u32 v29, v28, 7, s35
        s_lshl_b32 s35, s{sXCD}, 2
        s_add_u32 s35, s35, s{sRT}
        s_lshl_b32 s35, s35, 8
        s_add_u32 s49, s35, {WS_FLAG}
        s_lshl_b32 s36, s{sXCD}, 8
        s_add_u32 s47, s36, {WS_XCC}
        v_and_b32 v28, 1, v2
        s_mov_b32 exec_lo, 0
        v_lshl_add_u32 v29, v28, 7, s49
        s_mov_b32 exec_hi, 0xffff
        v_lshl_add_u32 v29, v28, 7, s47
        s_mov_b64 exec, -1
        s_getreg_b32 s{sXCC}, hwreg(HW_REG_XCC_ID, 0, 4)
        v_mov_b32 v20, 0
        v_mov_b32 v21, {L_BAD}
        ds_write_b32 v21, v20
        v_lshlrev_b32 v23, 2, v2""")
        self.tr_addr(24)
        a(f"""s_add_u32 s36, s44, {L_W}
        v_add_u32 v24, s36, v24
        v_xor_b32 v31, 64, v24
        v_and_b32 v22, 15, v2
        v_lshl_add_u32 v22, v4, 4, v22
        s_lshl_b32 s35, s{sRT}, 3
        s_add_u32 s35, s35, {L_CS}
        v_lshl_add_u32 v22, v22, 5, s35
        v_lshl_add_u32 v30, v6, 6, v25
        s_add_u32 s35, s45, {L_W2}
        v_add_u32 v30, s35, v30
        v_and_b32 v27, 31, v2
        v_lshlrev_b32 v27, 3, v27
        s_lshl_b32 s35, s{sRT}, 2
        s_add_u32 s35, s35, {L_LOC}
        v_mov_b32 v18, s35
        v_mov_b32 v52, 0
        s_mov_b32 exec_lo, 0xff0000ff
        s_mov_b32 exec_hi, 0xff0000ff
        v_mov_b32 v52, s{sONES}
        s_mov_b64 exec, -1
        v_mov_b32 v53, v52
        v_mov_b32 v54, v52
        v_mov_b32 v55, v52""")
        self.roles(0)
        stamp(4, "s")
        issue_chunk(1)
        issue_q(0)
        if not self.opt.get("nokvt"): a(f"buffer_load_dword v118, v29, {WSR}, 0 offen sc1"); vm.add("pre")
        for i in range(7):
            if i == 0: stamp(5, "s")
            a(f"s_waitcnt vmcnt({vm.wait(('c', i))}) lgkmcnt(0)")
            if i == 0: stamp(6, "s")
            a("s_barrier")
            if i == 0: stamp(1); stamp(7, "s")
            stamp(i + 1, "c")
            if i == 6: stamp(1, "e")
            for k in range(4): a(f"ds_read_b64_tr_b16 v[{32+2*k}:{33+2*k}], v{(24, 31)[k>>1]} offset:{(i%4)*8192 + (k&1)*512}")
            if i == 0:
                self.epoch_to_tag()
                a(f"""s_lshl_b32 s35, s{sJ}, 3
                s_add_u32 s35, s35, s47
                v_mov_b32 v16, s{sTAG}
                v_mov_b32 v17, s{sXCC}
                s_mov_b64 exec, 1
                buffer_store_dwordx2 v[16:17], v{ZR}, {WSR}, s35 offen
                s_mov_b64 exec, -1""")
                vm.add("xs")
            if i == 3: a(f"buffer_load_dwordx2 v[28:29], v27, {WSR}, s47 offen sc1"); vm.add("xcc")
            if i + LA <= 6: issue_chunk(i + LA)
            if i == 5:
                for k in range(1, 4): issue_q(k)
                self.xcc_eval(28)
                a(f"v_mov_b32 v19, s{sLOC}\nds_write_b32 v18, v19")
            a("s_waitcnt lgkmcnt(0)")
            for k in range(2): a(f"{M16} v[{48+8*k}:{51+8*k}], v[52:55], v[{32+4*k}:{35+4*k}], {'0' if i == 0 else f'v[{48+8*k}:{51+8*k}]'}")
        def cs_pub(regs):
            for r, _ in regs: a(f"v_and_b32 v{r+1}, 0xffff0000, v{r}")
            for r, _ in regs: a(f"v_sub_f32 v{r+1}, v{r}, v{r+1}")
            for r, _ in regs: a(f"v_and_b32 v{r+2}, 0xffff0000, v{r+1}\nv_perm_b32 v{r}, v{r+1}, v{r}, s37")
            for r, _ in regs: a(f"v_sub_f32 v{r+1}, v{r+1}, v{r+2}")
            for r, k in regs: a(f"v_lshrrev_b32 v{r+1}, 16, v{r+1}\nds_write_b64 v22, v[{r}:{r+1}] offset:{1024*k}")
        a("s_mov_b32 s37, 0x07060302")
        cs_pub([(48, 0), (56, 1)])
        stamp(2, "e")
        a("s_waitcnt lgkmcnt(0)\ns_barrier")
        stamp(3, "e")
        stamp(2)
        for k in range(4, 7): issue_q(k)
        a(f"v_add_u32 v3, s44, v{GA}\nv_add_u32 v3, {L_QX}, v3")
        for (i0, i1) in ((0, 4), (4, 7)):
            a(f"s_waitcnt vmcnt({vm.wait(('q', 3)) if i0 == 0 else 0})")
            stamp(4 if i0 == 0 else 6, "e")
            a("s_barrier")
            stamp(5 if i0 == 0 else 7, "e")
            if i0: stamp(3)
            for i in range(i0, i1):
                for s_ in range(2): a(f"ds_read_b64_tr_b16 v[{32+4*(i-i0)+2*s_}:{33+4*(i-i0)+2*s_}], v30 offset:{i*4096 + s_*256}")
            if i0: a(f"buffer_load_dword v26, v23, {WSR}, s49 offen sc1")
            a("s_waitcnt lgkmcnt(0)")
            for k in range(i1 - i0): a(f"{M16} v[48:51], v[52:55], v[{32+4*k}:{35+4*k}], {'0' if i0 + k == 0 else 'v[48:51]'}")
        cs_pub([(48, 2)])
        B2 = self.opt.get("b2", "late")
        if B2 == "early": a("s_waitcnt lgkmcnt(0)\ns_barrier")
        a(f"""s_branch Lpoll1a
        Lpoll1:
        buffer_load_dword v26, v23, {WSR}, s49 offen sc1""")
        self.spin_guard("Lpoll1x")
        a(f"""Lpoll1a:
        s_waitcnt vmcnt(0)
        v_cmp_ne_u32 vcc, s{sTAG}, v26
        s_and_b32 s35, vcc_lo, vcc_hi
        s_cbranch_scc1 Lpoll1
        Lpoll1x:
        s_waitcnt lgkmcnt(0)""")
        stamp(4)
        D = self.dma(0)
        a("\n".join(D[:2]))
        if B2 != "early": a("s_barrier")
        a("\n".join(D[2:]))
        a(f"""s_waitcnt vmcnt(0)
        s_barrier
        ds_read_b128 v[8:11], v3
        ds_read_b128 v[12:15], v3 offset:1024""")

    def compute(self):
        a = self.a; stamp = self.stamp
        XF, ACC, WF, PK = 128, 32, 64, 64
        XR, WR, QR, SC, SCR, ST = 8, 12, 14, 15, 26, 27
        S1, S2, T1, T2, NMB, RSTD, XC = 16, 17, 18, 19, 20, 22, 118
        a("Lcomp:")
        a(f"""v_and_b32 v3, 31, v2
        v_lshrrev_b32 v4, 5, v2
        v_bfe_u32 v5, v2, 1, 3
        v_xor_b32 v5, v5, v4
        v_lshlrev_b32 v5, 4, v5
        v_lshl_add_u32 v5, v3, 7, v5
        s_lshl_b32 s43, s{sRT}, 12
        s_lshl_b32 s44, s{sRT}, 11
        v_add_u32 v{XR}, s43, v5
        v_xor_b32 v{XR+1}, 32, v{XR}
        v_xor_b32 v{XR+2}, 64, v{XR}
        v_xor_b32 v{XR+3}, 96, v{XR}""")
        self.tr_addr(24)
        a(f"""v_lshl_add_u32 v{QR}, v6, 6, v25
        v_add_u32 v{QR}, {L_W2}, v{QR}
        v_add_u32 v{WR}, {L_W}, v24
        v_xor_b32 v{WR+1}, 64, v{WR}
        s_lshl_b32 s35, s{sRT}, 8
        s_add_u32 s35, s35, {L_SCR}
        v_lshl_add_u32 v{SC}, v2, 2, s35
        v_lshl_add_u32 v{SCR}, v4, 4, s35
        v_lshlrev_b32 v119, 4, v4
        v_lshl_add_u32 v119, v3, 5, v119
        v_add_u32 v119, {L_CS}, v119
""")
        stamp(1, "s")
        a(f"s_waitcnt lgkmcnt(0)\ns_load_dword s{sTAG}, s[{pWS}:{pWS+1}], 0")
        self.consts()
        def capture(f):
            old = self.a; self.a = Asm(); f(self.a); L = self.a.L; self.a = old
            return L
        def late(b):
            srd(b, sX, pX, 1835008); srd(b, sWS, pWS, WS_SIZE)
            self.epoch_to_tag()
            self.roles(1, 4)
            b(f"""s_lshl_b32 s35, s{sXCD}, 7
            s_lshl_b32 s36, s{sQB}, 2
            s_add_u32 s35, s35, s36
            s_add_u32 s35, s35, s{sRT}
            s_lshl_b32 s35, s35, 12
            s_lshr_b32 s36, s{sG}, 3
            s_lshl_b32 s36, s36, 11
            s_add_u32 s35, s35, s36
            s_add_u32 s46, s35, {WS_KV}
            s_add_u32 s47, s46, {64*4096}
            s_lshl_b32 s35, s{sXCD}, 2
            s_add_u32 s35, s35, s{sRT}
            s_lshl_b32 s35, s35, 8
            s_lshl_b32 s36, s{sJ}, 2
            s_add_u32 s35, s35, s36
            s_add_u32 s42, s35, {WS_FLAG}
            s_lshl_b32 s35, s{sRT}, 2
            s_add_u32 s35, s35, {L_LOC}
            v_mov_b32 v{XC}, s35""")
        def atoms(L):
            out = []; hold = False
            for l in L:
                if hold: out[-1] += "\n" + l
                else: out.append(l)
                if "exec" in l: hold = "-1" not in l
            return out
        a(f"""s_cmp_ge_u32 s{sG}, 8
        s_cbranch_scc1 LcompV""")
        DA, NB, CA, CSF = (16, 17, 18, 19, 28, 29, 30, 31), 28, 119, 96
        def kloop(isV):
            order = [(j, m) for m in range(2) for j in range(4)]
            def wreg(i, j, m): return WF + 8*j + 4*m if i % 2 == 0 else (96, 240)[m] + 4*j
            def rlist(i):
                L = [(("x", i, j), f"ds_read_b128 v[{XF+16*i+4*j}:{XF+16*i+4*j+3}], v{XR+j} offset:{(i%4)*16384}") for j in range(4)]
                for k, (j, m) in enumerate(order):
                    for s in range(2):
                        w = wreg(i, j, m) + 2*s
                        L.append((("w", i, k), f"ds_read_b64_tr_b16 v[{w}:{w+1}], v{WR+m} offset:{(i%4)*8192 + j*2048 + s*512}"))
                return L
            def mm(c, w, x, src):
                if isV: a(f"{MF} v[{c}:{c+15}], v[{x}:{x+3}], v[{w}:{w+3}], {src}")
                else: a(f"{MF} v[{c}:{c+15}], v[{w}:{w+3}], v[{x}:{x+3}], {src}")
            BP = int(self.opt.get("bp", 3)); BPL = int(self.opt.get("bpl", 8)); CSP = int(self.opt.get("csp", 3))
            lg = Vm(); R = []
            def issue(n):
                c = 0
                while c < n and R and len(lg.q) < 15:
                    t, l = R.pop(0); a(l); lg.add(t); c += 1
                return c
            def need(t):
                assert all(u != t for u, _ in R)
                if t in lg.q: a(f"s_waitcnt lgkmcnt({lg.wait(t)})")
            def bar():
                assert not R
                a("s_waitcnt lgkmcnt(0)\ns_barrier"); lg.q = []
            LT = atoms(capture(late))
            for e in DA: a(f"v_mov_b32 v{e}, 0")
            stamp(5, "s"); bar(); stamp(7, "s")
            R += rlist(0); issue(14)
            for i in range(7):
                issue(14)
                for j in range(4):
                    need(("x", i, j))
                    for e in range(4):
                        x = XF + 16*i + 4*j + e
                        a(f"v_dot2c_f32_bf16 v{DA[e]}, s{sONES}, v{x}\nv_dot2c_f32_bf16 v{DA[4+e]}, v{x}, v{x}")
                    if j == 3 and R: need(("w", i, 2))
                    issue(6)
                stamp(i + 1, "c")
                if i == 6: stamp(2, "e"); LT = capture(lambda b: stats(isV))
                bp = BP if i < 5 else BPL
                for k, (j, m) in enumerate(order):
                    if k == bp and i < 6: bar(); R += rlist(i + 1)
                    need(("w", i, k))
                    c = ACC + 16*m
                    mm(c, wreg(i, j, m), XF + 16*i + 4*j, "0" if (i == 0 and j == 0) else f"v[{c}:{c+15}]")
                    if i == 6 and k == CSP:
                        stamp(3, "e"); bar(); stamp(4, "e")
                        a(f"ds_read_b128 v[{CSF}:{CSF+3}], v{CA}\nds_read_b128 v[{CSF+4}:{CSF+7}], v{CA} offset:1024\nds_read_b32 v{XC}, v{XC}")
                    if issue(4) < 3:
                        for _ in range(6):
                            if LT: a(LT.pop(0))
                if bp >= 8 and i < 6: bar(); R += rlist(i + 1)
                if i == 5: stamp(1, "e"); assert not LT
            for l in LT: a(l)
            a(f"s_waitcnt lgkmcnt({5 if isV else 0})")
            for m in range(2): mm(ACC + 16*m, CSF + 4*m, NB, f"v[{ACC+16*m}:{ACC+16*m+15}]")
            a(f"v_readfirstlane_b32 s{sLOC}, v{XC}")
        def stats(isV):
            b = self.a
            b(f"""v_add_f32 v{DA[0]}, v{DA[0]}, v{DA[1]}
            v_add_f32 v{DA[2]}, v{DA[2]}, v{DA[3]}
            v_add_f32 v{DA[4]}, v{DA[4]}, v{DA[5]}
            v_add_f32 v{DA[6]}, v{DA[6]}, v{DA[7]}
            v_add_f32 v{S1}, v{DA[0]}, v{DA[2]}
            v_add_f32 v{S2}, v{DA[4]}, v{DA[6]}""")
            self.allred32([(S1, 24), (S2, 25)])
            self.ln_stats(S1, S2, NMB, RSTD, 24)
            b(f"v_alignbit_b32 v{NB}, v{NMB}, v{NMB}, 16\nv_or_b32 v{NB}, v{NB}, v{NMB}")
            for e in range(1, 4): b(f"v_mov_b32 v{NB+e}, v{NB}")
            if isV:
                b(f"ds_write_b32 v{SC}, v{RSTD}")
                for q in range(4): b(f"ds_read_b128 v[{240+4*q}:{243+4*q}], v{SCR} offset:{q*32}")
        def scale_pack(c, mul, mul_vec, out):
            for p in range(8):
                if mul_vec: a(f"v_pk_mul_f32 v[{c+2*p}:{c+2*p+1}], v[{c+2*p}:{c+2*p+1}], v[{mul+2*p}:{mul+2*p+1}]")
                else: a(f"v_pk_mul_f32 v[{c+2*p}:{c+2*p+1}], v[{c+2*p}:{c+2*p+1}], v[{mul}:{mul+1}] op_sel_hi:[1,0]")
            for p in range(8): a(f"v_cvt_pk_bf16_f32 v{out+p}, v{c+2*p}, v{c+2*p+1}")
        def stores(m):
            stamp(5 + m, "e")
            if self.opt.get("linst"): a(f"v_mov_b32 v{ST}, v{GA}")
            self.dual([f"buffer_store_dwordx4 v[{PK+8*m}:{PK+8*m+3}], v{ST}, {WSR}, s{46+m} offen @",
                       f"buffer_store_dwordx4 v[{PK+8*m+4}:{PK+8*m+7}], v{ST}, {WSR}, s{46+m} offen offset:1024 @"])
        a(f"""v_bfe_u32 v3, v2, 2, 1
        v_bfe_u32 v4, v2, 3, 1
        v_and_b32 v5, 0x33, v2
        v_lshl_add_u32 v5, v3, 3, v5
        v_lshl_add_u32 v5, v4, 2, v5
        v_lshlrev_b32 v{ST}, 4, v5
""")
        kloop(False)
        stamp(1)
        for m in range(2):
            scale_pack(ACC + 16*m, RSTD, False, PK + 8*m)
            a(f"""s_mov_b32 exec_lo, 0
            v_mov_b32 v{PK+8*m+6}, s{sONES}
            v_mov_b32 v{PK+8*m+7}, 0x3f80
            s_mov_b32 exec_lo, -1""")
            stores(m)
        a("s_branch LcompQ")
        a("LcompV:")
        a(f"""v_and_b32 v3, 31, v2
        v_mul_u32_u24 v4, 37, v3
        v_lshrrev_b32 v4, 8, v4
        v_mul_u32_u24 v5, 7, v4
        v_sub_u32 v5, v3, v5
        v_cmp_le_u32 vcc, 28, v3
        v_cndmask_b32 v4, v4, v5, vcc
        v_cndmask_b32 v5, v5, 7, vcc
        v_lshrrev_b32 v6, 1, v4
        v_and_b32 v4, 1, v4
        v_lshlrev_b32 v6, 4, v6
        v_lshl_add_u32 v6, v4, 2, v6
        v_lshrrev_b32 v4, 2, v5
        v_and_b32 v5, 3, v5
        v_lshl_add_u32 v6, v4, 3, v6
        v_add_u32 v6, v6, v5
        v_and_b32 v4, 32, v2
        v_add_u32 v6, v6, v4
        s_and_b32 s35, s{sQB}, 8
        s_lshl_b32 s35, s35, 1
        v_xor_b32 v6, s35, v6
        v_lshlrev_b32 v{ST}, 4, v6
""")
        kloop(True)
        stamp(1)
        a("s_mov_b32 exec_lo, 0xf0000000\ns_mov_b32 exec_hi, 0xf0000000")
        for p in range(16): a(f"v_mov_b32 v{PK+p}, s{sONES}")
        a("s_waitcnt lgkmcnt(0)")
        for m in range(2):
            a("s_mov_b32 exec_lo, 0x0fffffff\ns_mov_b32 exec_hi, 0x0fffffff")
            scale_pack(ACC + 16*m, 240, True, PK + 8*m)
            a("s_mov_b64 exec, -1")
            stores(m)
        a("LcompQ:")
        stamp(2); stamp(7, "e")
        QW = 80
        def qchunks(i0, i1, hook):
            steps = [(i, j) for i in range(i0, i1) for j in range(4)]
            def rd(n):
                i, j = steps[n]; w = QW + 4 * (n % 8)
                for s in range(2): a(f"ds_read_b64_tr_b16 v[{w+2*s}:{w+2*s+1}], v{QR} offset:{i*4096 + j*1024 + s*256}")
            AH = 6
            for n in range(min(AH, len(steps))): rd(n)
            for n, (i, j) in enumerate(steps):
                left = min(AH - 1, len(steps) - 1 - n)
                a(f"s_waitcnt lgkmcnt({2*left})")
                w = QW + 4 * (n % 8); x = XF + 16*i + 4*j
                src = "0" if (i == 0 and j == 0) else f"v[{ACC}:{ACC+15}]"
                a(f"{MF} v[{ACC}:{ACC+15}], v[{w}:{w+3}], v[{x}:{x+3}], {src}")
                if n + AH < len(steps): rd(n + AH)
                hook(n)
        FP = int(self.opt.get("fpos", 3))
        def h0(n):
            if n == 0:
                a(f"""v_mov_b32 v4, s{sTAG}
                v_mul_f32 v{RSTD}, {hex(f2u(math.log2(math.e) / math.sqrt(28)))}, v{RSTD}
                v_add_u32 v3, s44, v{GA}
                v_add_u32 v3, {L_QX}, v3""")
            if n == FP:
                a("s_waitcnt vmcnt(0)\ns_mov_b64 exec, 1")
                self.dual([f"buffer_store_dword v4, v{ZR}, {WSR}, s42 offen offset:# @"])
                a("s_mov_b64 exec, -1")
                stamp(3)
        if FP < 0: a(f"v_mov_b32 v4, s{sTAG}"); h0(FP)
        a("s_barrier"); qchunks(0, 4, h0)
        def h1(n):
            if n == 9: a(f"s_waitcnt lgkmcnt(0)\ns_barrier\nds_read_b128 v[64:67], v{CA} offset:2048")
        a("s_barrier"); qchunks(4, 7, h1)
        a(f"s_waitcnt lgkmcnt(0)\n{MF} v[{ACC}:{ACC+15}], v[64:67], v[{NB}:{NB+3}], v[{ACC}:{ACC+15}]")
        scale_pack(ACC, RSTD, False, 8)
        a(f"""s_mov_b32 exec_lo, 0
        v_mov_b32 v14, 0
        v_mov_b32 v15, 0
        s_mov_b32 exec_lo, -1
        ds_write_b128 v3, v[8:11]
        ds_write_b128 v3, v[12:15] offset:1024""")
        stamp(4)
        a("s_waitcnt lgkmcnt(0)\ns_barrier")

    def dma(self, stage):
        Ls = []
        kvl = self.opt.get("kvl", "sc1").replace("plain", "")
        for g in range(2):
            for j in range(4):
                p = f"s_add_u32 m0, s{sKVL}, {(stage % 3) * 32768 + g * 16384}\ns_add_u32 s41, s{sKVS}, {(8*g + stage) * 16384}\n" if j == 0 else ""
                Ls.append(p + f"buffer_load_dwordx4 v{GA}, {WSR}, s41 offen offset:{j*1024} {kvl} lds")
        return Ls
    def attention(self, grp):
        a = self.a; stamp = self.stamp
        Q, S, O, K, V = 8, (16, 32), 48, (64, 72), (80, 88, 96, 104)
        IDX, LA1 = 4, 6
        a(f"Lattn{grp}:")
        stamp(5); stamp(1, True)
        def rd(u, j):
            st, t = divmod(u, 4)
            off = (st % 3) * 32768 + grp * 16384 + t * 4096 + j * 1024
            base = GA
            if off >= 65536: off -= 65536; base = LA1
            dst = K[u & 1] + 4 * j if j < 2 else V[u & 3] + 4 * (j - 2)
            return f"ds_read_b128 v[{dst}:{dst+3}], v{base} offset:{off}"
        for u in (0, 1):
            for j in range(4): a(rd(u, j))
        vm = Vm()
        pend = []
        def pop(n):
            for _ in range(n):
                if pend:
                    tag, x = pend.pop(0); a(x); vm.add(tag)
        if grp == 0:
            pend = [(("kv", st), x) for st in (1, 2) for x in self.dma(st)]
            pop(2)
        a(f"v_add_u32 v{LA1}, 0x10000, v{GA}\nv_mov_b32 v{IDX}, 0xdddddddd")
        a("s_waitcnt lgkmcnt(6)")
        a(f"{MF} v[{S[0]}:{S[0]+15}], v[{K[0]}:{K[0]+3}], v[{Q}:{Q+3}], 0")
        a(f"{MF} v[{S[0]}:{S[0]+15}], v[{K[0]+4}:{K[0]+7}], v[{Q+4}:{Q+7}], v[{S[0]}:{S[0]+15}]")
        for i in range(16): a(f"v_mov_b32 v{O+i}, 0")
        def w2dma(n):
            return f"""s_add_u32 m0, s{sW2L}, {L_W2 + n*4*896}
            s_add_u32 s35, s{sW2G}, {n*4*7*896}
            s_mov_b32 exec_hi, 0x00ffffff
            buffer_load_dwordx4 v{W2A}, s[{sW2}:{sW2+3}], s35 offen lds
            s_mov_b32 exec_hi, -1"""
        sd = {}
        o = lambda k, d: int(self.opt.get(k, d))
        S0, S1, S2, T0 = o("s0", 6), o("s1", 20), o("s2", 24), o("t0", 25)
        if grp == 1:
            sd[(o("tw0", 10), 3)] = ("t", f"buffer_load_dword v118, v{TC2}, s[{sW2}:{sW2+3}], 0 offen")
            for k in range(2): sd[(S0 + k, 2)] = ("clr", f"buffer_store_dwordx4 v[{ZR}:{ZR+3}], v{GA}, {WSR}, s{sOO} offen offset:{1024*k} sc1")
            sd[(o("sf2", 16), 2)] = ("f2", None)
            WR = o("wr", 4)
            for n in range(16): sd[(S1 + n // WR, {4: (0, 1, 2, 3), 3: (0, 1, 3), 2: (1, 3), 1: (1,)}[WR][n % WR])] = ("w2", w2dma(n))
            x = f"buffer_load_dword v118, v{TCH}, s[{sOUT}:{sOUT+3}], s{sTCH} offen"
            if self.opt.get("wb"):
                x = f"s_lshl_b32 s35, s{sJ}, 2\ns_add_u32 s35, s35, s{sRT}\ns_cmp_eq_u32 s35, 124\ns_cbranch_scc1 Lwb\n{x}\nLwbx:"
                self.ool.append("Lwb:\nbuffer_wbl2 sc1\ns_branch Lwbx")
            sd[(T0, 1)] = ("t", x)
        else:
            sd[(T0, 1)] = ("t", f"buffer_load_dword v118, v{TC2}, {WSR}, 0 offen")
        sd[(S2, 0)] = ("pf", f"s_lshl_b32 s42, s{sCG}, 7\nbuffer_load_dwordx4 v[{PF}:{PF+3}], v{XA}, s[{sX}:{sX+3}], s42 offen")
        sd[(S2, 1)] = ("pf", f"""s_mov_b64 s[{sW}:{sW+1}], s[{pWR}:{pWR+1}]
            s_movk_i32 s{sW+2}, 896
            s_mov_b32 s{sW+3}, 0x00020000
            buffer_load_dwordx4 v[{PF+8}:{PF+11}], v{GA}, s[{sW}:{sW+3}], 0 offen""")
        sd[(S2, 2)] = ("pf", f"v_and_b32 v1, 0x70, v{GA}\nbuffer_load_dwordx4 v[{PF+4}:{PF+7}], v1, s[{sW}:{sW+3}], s42 offen")
        sd[(S2, 3)] = ("f2c", f"buffer_load_dword v{F2V}, v{F2A}, {WSR}, s{sF2C} offen sc1")
        ns = self.opt.get("noside", "")
        for k in sd:
            if sd[k][0] in ns.split(","): sd[k] = (sd[k][0], f"buffer_load_dword v118, v{ZR}, {WSR}, s{sKVS} offen")
        def side(t, pos):
            if (t, pos) not in sd: return
            tag, x = sd[(t, pos)]
            if tag == "f2":
                x = f"v_mov_b32 v{F2V}, s{sTAG}\ns_waitcnt vmcnt({vm.wait('clr')})\ns_mov_b64 exec, 1\nbuffer_store_dword v{F2V}, v{ZR}, {WSR}, s{sF2} offen sc1\ns_mov_b64 exec, -1"
            a(x); vm.add(tag)
        PR = {(0, 8): 3, (0, 12): 2, (3, 8): 1, (0, 2): 0}
        PRE = {(26, 8): 3, (26, 12): 2, (30, 8): 1, (31, 8): 0, (26, 2): 0}
        NT = 32
        for t in range(NT):
            c = S[t & 1]; n = S[(t + 1) & 1]
            ph = (t + 2) % 4
            def ex(i0, i1):
                for i in range(i0, i1):
                    p = PR.get((ph, i)) if t < 26 else PRE.get((t, i))
                    if p is not None: a(f"s_setprio {p}")
                    a(f"v_exp_f32 v{c+i}, v{c+i}")
            last = t + 1 >= NT
            rdok = t + 2 < NT
            burst = 1 if t < 6 or t >= o("kb", 18) else 0
            ex(0, 2)
            if t > 0: a(f"{SM} v[{O}:{O+15}], v[{V[(t-1)&3]+4}:{V[(t-1)&3]+7}], v[{n+8}:{n+15}], v{IDX}")
            pop(burst); side(t, 0)
            ex(2, 5)
            if not last:
                a("s_waitcnt lgkmcnt(2)")
                kk = K[(t + 1) & 1]
                a(f"{MF} v[{n}:{n+15}], v[{kk}:{kk+3}], v[{Q}:{Q+3}], 0")
            else: a("s_waitcnt lgkmcnt(0)")
            pop(burst); side(t, 1)
            ex(5, 8)
            if not last: a(f"{MF} v[{n}:{n+15}], v[{kk+4}:{kk+7}], v[{Q+4}:{Q+7}], v[{n}:{n+15}]")
            if rdok and ph == 0:
                st = (t + 2) // 4
                if grp == 0:
                    assert all(tag != ("kv", st) for tag, _ in pend)
                    a(f"s_waitcnt vmcnt({vm.wait(('kv', st))}) lgkmcnt(0)\ns_barrier")
                    if st + 2 <= 7: pend += [(("kv", st + 2), x) for x in self.dma(st + 2)]
                else: a("s_waitcnt lgkmcnt(0)\ns_barrier")
                if st < 7: stamp(st + 1, True)
            if rdok: a(rd(t + 2, 0))
            ex(8, 10)
            if rdok: a(rd(t + 2, 1))
            pop(1); side(t, 2)
            ex(10, 12)
            a(f"{SM} v[{O}:{O+15}], v[{V[t&3]}:{V[t&3]+3}], v[{c}:{c+7}], v{IDX}")
            if rdok: a(rd(t + 2, 2))
            ex(12, 14)
            if rdok: a(rd(t + 2, 3))
            pop(1); side(t, 3)
            ex(14, 16)
        assert not pend
        c = S[(NT - 1) & 1]
        a(f"""v_xor_b32 v5, 0x2000, v{CW}
        v_mov_b32 v6, {L_BAD}
        {SM} v[{O}:{O+15}], v[{V[(NT-1)&3]+4}:{V[(NT-1)&3]+7}], v[{c+8}:{c+15}], v{IDX}""")
        stamp(6)
        assert vm.wait("f2c") == 1
        if grp == 0:
            a(f"s_mov_b32 s43, s{sOO}\ns_branch Lcomb")
            return
        a(f"s_add_u32 s43, s{sOO}, 1024\nLcomb:")
        a(f"""s_mov_b32 s36, {hex(f2u(2.0**40))}
        s_mov_b32 s37, {hex(f2u(2.0**-30))}
        ds_write_b128 v{CW}, v[{O+8}:{O+11}]
        ds_write_b128 v{CW}, v[{O+12}:{O+15}] offset:1024
        v_maximum3_f32 v16, |v{O}|, |v{O+1}|, |v{O+2}|
        v_maximum3_f32 v17, |v{O+3}|, |v{O+4}|, |v{O+5}|
        v_cmp_nge_f32 s[44:45], s36, v{O+15}
        v_maximum3_f32 v16, |v{O+6}|, |v{O+8}|, v16
        v_maximum3_f32 v17, |v{O+9}|, |v{O+10}|, v17
        v_cmp_nle_f32 s[46:47], s37, v{O+15}
        v_maximum3_f32 v16, |v{O+11}|, |v{O+12}|, v16
        v_maximum3_f32 v17, |v{O+13}|, |v{O+14}|, v17
        v_maximum3_f32 v16, v16, v17, v17
        s_or_b64 s[44:45], s[44:45], s[46:47]
        v_cmp_nge_f32 vcc, {hex(f2u(2.0**120))}, v16
        s_or_b64 vcc, s[44:45], vcc
        s_cbranch_scc1 Lbad
        Lbadx:
        s_waitcnt vmcnt(1) lgkmcnt(0)
        s_barrier
        ds_read_b128 v[20:23], v5 offset:1024
        ds_read_b128 v[16:19], v5
        ds_read_b32 v26, v6
        s_waitcnt lgkmcnt(2)
        v_add_f32 v23, v23, v{O+7}
        v_rcp_f32 v24, v23
        v_pk_add_f32 v[20:21], v[20:21], v[{O+4}:{O+5}]
        v_add_f32 v22, v22, v{O+6}
        s_waitcnt lgkmcnt(0)
        v_readfirstlane_b32 s35, v26
        v_pk_add_f32 v[16:17], v[16:17], v[{O}:{O+1}]
        v_pk_add_f32 v[18:19], v[18:19], v[{O+2}:{O+3}]
        v_mul_f32 v22, v22, v24
        v_pk_mul_f32 v[16:17], v[16:17], v[24:25] op_sel_hi:[1,0]
        v_pk_mul_f32 v[18:19], v[18:19], v[24:25] op_sel_hi:[1,0]
        v_pk_mul_f32 v[20:21], v[20:21], v[24:25] op_sel_hi:[1,0]
        v_cvt_pk_bf16_f32 v31, v22, -v{ZR}
        v_cvt_pk_bf16_f32 v28, v16, v17
        v_cvt_pk_bf16_f32 v29, v18, v19
        v_cvt_pk_bf16_f32 v30, v20, v21
        s_cmp_gt_u32 s35, s{sRETRY}
        s_cbranch_scc1 Lfallback
        buffer_store_dwordx4 v[28:31], v{GA}, {WSR}, s43 offen sc1""")
        self.ool.append(f"Lbad:\nds_write_b32 v6, v{IDX}\ns_branch Lbadx")
        stamp(7)
        self.flush_stamps(0, 8, False)

    def fallback(self):
        a = self.a; Q = 8
        a(f"""Lfallback:
        s_mov_b32 s{sRETRY}, -1
        s_waitcnt vmcnt(0) lgkmcnt(0)
        s_barrier""")
        a(f"""s_lshl_b32 s35, s{sH}, 18
        s_add_u32 s35, s35, {WS_KV}
        s_mov_b32 s36, 64
        v_mov_b32 v3, 0xff800000
        Lfb1:
        buffer_load_dwordx4 v[64:67], v{GA}, {WSR}, s35 offen sc1
        buffer_load_dwordx4 v[68:71], v{GA}, {WSR}, s35 offen offset:1024 sc1
        s_waitcnt vmcnt(0)
        {MF} v[16:31], v[64:67], v[{Q}:{Q+3}], 0
        {MF} v[16:31], v[68:71], v[{Q+4}:{Q+7}], v[16:31]
        s_add_u32 s35, s35, 4096
        s_sub_u32 s36, s36, 1""")
        for p in range(8): a(f"v_max3_f32 v3, v{16+2*p}, v{17+2*p}, v3")
        a(f"""s_cmp_lg_u32 s36, 0
        s_cbranch_scc1 Lfb1
        v_mov_b32 v5, v3
        v_permlane32_swap_b32 v5, v3
        v_max_f32 v3, v3, v5
        v_sub_f32 v3, 0, v3
        v_and_b32 v5, 0xffff0000, v3
        v_sub_f32 v3, v3, v5
        v_and_b32 v6, 0xffff0000, v3
        v_sub_f32 v3, v3, v6
        v_lshrrev_b32 v5, 16, v5
        s_mov_b32 exec_lo, 0
        v_or_b32 v{Q+6}, v5, v6
        v_lshrrev_b32 v{Q+7}, 16, v3
        s_mov_b32 exec_lo, -1""")
        a(f"s_cmp_eq_u32 s{sGRP}, 1\ns_cbranch_scc1 Lfb2")
        self.roles(0)
        a("\n".join(self.dma(0)))
        a("s_waitcnt vmcnt(0)\ns_barrier\ns_branch Lattn0\nLfb2:")
        self.roles(1)
        a("s_barrier\ns_branch Lattn1")

    def build(self):
        import tail
        a = self.a; self.ool = []
        self.head(); self.loader(); self.attention(0); self.compute(); self.attention(1)
        tail.emit(self)
        for x in self.ool: a(x)
        a("Lcoldcode:")
        self.fallback()
        a("Lexit:\ns_endpgm")
        import layout
        hdr = open(f"cdna_kernels/{NAME}.s.ref").read().split("; Override launch")[0]
        hdr += "; @launch grid=(256,1,1) block=(512,1,1) lds=163840\n"
        hdr += '.amdgcn_target "amdgcn-amd-amdhsa--gfx950"\n.text\n'
        if not self.opt.get("nopage"): hdr += ".p2align 12\n.fill 832, 4, 0xbf800000\n"
        lines = layout.finish(a.L, self.opt)
        return hdr + "\n".join(lines) + '\n.section .rodata,"a"\n' + kdesc(NAME + "_kernel", 256)

if __name__ == "__main__":
    opt = {}
    out = f"cdna_kernels/{NAME}.s"
    for x in sys.argv[1:]:
        if x.startswith("out="): out = x[4:]
        elif "=" in x: k, v = x.split("="); opt[k] = v
        else: opt[x] = True
    import gen
    open(out, "w").write(gen.G(opt).build())
```

```python
import re
TRANS = ("v_exp_f32", "v_log_f32", "v_rcp_f32", "v_rsq_f32", "v_sqrt_f32", "v_sin_f32", "v_cos_f32")
def regs(op):
    op = op.strip().strip("|")
    if op.startswith("-"): op = op[1:].strip("|")
    m = re.fullmatch(r"([vsa])(\d+)", op)
    if m: return {(m.group(1), int(m.group(2)))}
    m = re.fullmatch(r"([vsa])\[(\d+):(\d+)\]", op)
    if m: return {(m.group(1), i) for i in range(int(m.group(2)), int(m.group(3)) + 1)}
    if op == "vcc": return {("s", "vcc_lo"), ("s", "vcc_hi")}
    if op in ("vcc_lo", "vcc_hi", "exec_lo", "exec_hi", "m0"): return {("s", op)}
    if op == "exec": return {("s", "exec_lo"), ("s", "exec_hi")}
    return set()
class I:
    def __init__(self, text):
        self.text = text
        t = text.split(";")[0].strip()
        self.label = t[:-1] if t.endswith(":") else None
        self.dir = t.startswith(".") or t == ""
        self.mn = None; self.R = set(); self.W = set(); self.kind = None
        self.states = 0
        if self.label or self.dir: return
        p = t.split(None, 1)
        mn = self.mn = p[0]
        rest = p[1] if len(p) > 1 else ""
        ops = []; cur = ""; d = 0
        for ch in rest:
            if ch == "[": d += 1
            if ch == "]": d -= 1
            if ch == "," and d == 0: ops.append(cur.strip()); cur = ""
            else: cur += ch
        if cur.strip(): ops.append(cur.strip())
        mods = ""
        if ops:
            q = ops[-1].split(None, 1)
            ops[-1] = q[0]; mods = q[1] if len(q) > 1 else ""
        self.ops = ops; self.mods = mods
        self.states = 1
        U = lambda l: set().union(*[regs(o) for o in l]) if l else set()
        if mn == "s_nop": self.kind = "nop"; self.states = int(ops[0]) + 1
        elif mn.startswith("v_mfma") or mn.startswith("v_smfmac"):
            self.kind = "mfma"; self.W = regs(ops[0]); self.AB = regs(ops[1]) | regs(ops[2])
            if mn.startswith("v_smfmac"): self.C = regs(ops[0]); self.AB |= regs(ops[3])
            else: self.C = regs(ops[3])
            self.R = self.AB | self.C
            self.passes = 8 if "32x32" in mn else 4
        elif mn.startswith("v_"):
            self.kind = "valu"
            self.W = regs(ops[0]); self.R = U(ops[1:])
            if "permlane" in mn: self.W |= regs(ops[1]); self.R |= regs(ops[0])
            if mn.startswith(("v_dot2c", "v_fmac", "v_writelane")) or "_dpp" in mn: self.R |= regs(ops[0])
            if mn.startswith("v_cmpx"): self.W |= regs("exec")
            if "_co_" in mn: self.W |= regs(ops[1])
        elif mn.startswith("ds_"):
            self.kind = "mem"
            if mn.startswith(("ds_read", "ds_bpermute", "ds_permute", "ds_swizzle")) or "_rtn" in mn:
                self.W = regs(ops[0]); self.R = U(ops[1:])
            else: self.R = U(ops)
        elif mn in ("buffer_wbl2", "buffer_inv"): self.kind = "mem"
        elif mn.startswith(("buffer_", "global_")):
            self.kind = "mem"; self.vmem = True
            lds = " lds" in " " + mods or "_lds_" in mn
            if "load" in mn and not lds: self.W = regs(ops[0]); self.R = U(ops[1:])
            else: self.R = U(ops)
            if lds: self.R |= regs("m0"); self.lds = True
            if "store" in mn and mn.endswith(("x3", "x4")):
                self.wide = regs(ops[0]) if mn.startswith("buffer") else regs(ops[1])
        elif mn.startswith("s_"):
            self.kind = "salu"
            if mn.startswith(("s_cmp", "s_bitcmp")): self.R = U(ops)
            elif mn.startswith(("s_cbranch", "s_branch", "s_waitcnt", "s_barrier", "s_setprio", "s_endpgm", "s_sleep")): pass
            else:
                self.W = regs(ops[0]); self.R = U(ops[1:])
                if "saveexec" in mn: self.W |= regs("exec")
        else: raise ValueError("unknown instr " + t)
def isv(s): return {r for r in s if r[0] in "va"}
def iss(s): return {r for r in s if r[0] == "s"}
def need(p, c):
    n = 0
    if p.kind == "valu":
        vw = isv(p.W); sw = iss(p.W)
        dl = p.mn.startswith("v_dot")
        if c.kind == "mfma" and vw & c.R: n = max(n, 3 if dl else 2)
        if c.kind == "mfma" and ("s", "exec_lo") in sw: n = max(n, 4)
        if c.kind == "valu":
            if vw & c.R:
                if c.mn.startswith(("v_readlane", "v_readfirstlane")): n = max(n, 1)
                if "_dpp" in c.mn or "permlane" in c.mn: n = max(n, 2)
                if p.mn in TRANS and c.mn not in TRANS: n = max(n, 1)
            if dl and (vw & (c.R | c.W)):
                same_c = c.mn == p.mn and not (vw & set().union(*[regs(o) for o in c.ops[1:3]]))
                if not same_c: n = max(n, 3)
            if sw & c.R:
                n = max(n, 4 if c.mn.startswith(("v_readlane", "v_writelane")) else 2)
            if ("s", "exec_lo") in sw:
                if "_dpp" in c.mn: n = max(n, 5)
                if "permlane" in c.mn or c.mn.startswith(("v_readlane", "v_readfirstlane", "v_writelane")): n = max(n, 4)
        if c.kind == "mem":
            if dl and vw & (c.R | c.W): n = max(n, 3)
            if p.mn in TRANS and vw & c.R: n = max(n, 1)
            if getattr(c, "vmem", False) and sw & c.R: n = max(n, 5)
    elif p.kind == "mfma":
        full = {8: 12, 4: 8}[p.passes]
        if c.kind == "mfma":
            if p.W & c.AB: n = max(n, full)
            if p.W & c.C and not (p.W == c.C and p.passes == c.passes): n = max(n, {8: 10, 4: 6}[p.passes])
        elif c.kind in ("valu", "mem"):
            if p.W & (c.R | c.W): n = max(n, full)
            if c.kind == "valu" and p.C & c.W: n = max(n, {8: 7, 4: 3}[p.passes])
    elif p.kind == "mem":
        w = getattr(p, "wide", None)
        if w and (w & c.W): n = max(n, 2)
        if c.kind == "valu" and "_dpp" in c.mn and False: pass
    elif p.kind == "salu":
        if ("s", "m0") in p.W and getattr(c, "lds", False): n = max(n, 1)
    return n
MAXD = 12
def fix(lines, verbose=False):
    ins = [I(l) for l in lines]
    total = 0
    changed = True
    while changed:
        changed = False
        lab = {x.label: i for i, x in enumerate(ins) if x.label}
        src = {}
        for i, x in enumerate(ins):
            if x.mn and x.mn.startswith(("s_cbranch", "s_branch")): src.setdefault(lab[x.ops[0]], []).append(i)
        def preds(i):
            out = list(src.get(i, []))
            if i > 0 and ins[i - 1].mn not in ("s_branch", "s_endpgm"): out.append(i - 1)
            return out
        for i, c in enumerate(ins):
            if c.kind not in ("valu", "mfma", "mem"): continue
            short = 0; why = None
            stack = [(p, 0) for p in preds(i)]; seen = {}
            while stack:
                j, d = stack.pop()
                if d >= MAXD or seen.get(j, 99) <= d: continue
                seen[j] = d
                p = ins[j]
                if p.kind:
                    n = need(p, c)
                    if n - d > short: short = n - d; why = p
                for k in preds(j): stack.append((k, d + p.states))
            if short > 0:
                if verbose: print(f"hazard: +{short} before '{c.text.strip()}' (after '{why.text.strip()}')")
                ins.insert(i, I(f"    s_nop {short - 1}"))
                total += 1; changed = True
                break
    return [x.text for x in ins], total
```

```python
import math
from asmlib import *
from gen import *

def emit(g):
    a = g.a; stamp = g.stamp; opt = g.opt
    OUTS = opt.get("outs", "sc1").replace("plain", "")
    def red8(regs):
        for m in ("quad_perm:[1,0,3,2]", "quad_perm:[2,3,0,1]", "row_half_mirror"):
            for r in regs: a(f"v_add_f32_dpp v{r}, v{r}, v{r} {m} row_mask:0xf bank_mask:0xf")
    def top2(m1, m2, t, k1, k2, fill=()):
        fill = list(fill)
        D = "row_mask:0xf bank_mask:0xf"
        a(f"v_min_u32_dpp v{m2}, v{m1}, v{m1} row_ror:1 {D}\nv_max_u32_dpp v{t}, v{m1}, v{m1} row_ror:1 {D}")
        for k in (2, 4, 8):
            for _ in range(2):
                if fill: a(fill.pop(0))
            a(f"""v_max_u32_dpp v{m2}, v{m2}, v{m2} row_ror:{k} {D}
            v_min_u32_dpp v{t+1}, v{t}, v{t} row_ror:{k} {D}
            v_max_u32_dpp v{t}, v{t}, v{t} row_ror:{k} {D}
            v_max_u32 v{m2}, v{m2}, v{t+1}""")
        a(f"""v_readlane_b32 s{k1}, v{t}, 0
        v_readlane_b32 s35, v{t}, 16
        v_readlane_b32 s36, v{t}, 32
        v_readlane_b32 s37, v{t}, 48
        v_readlane_b32 s{k2}, v{m2}, 0
        v_readlane_b32 s64, v{m2}, 16
        v_readlane_b32 s65, v{m2}, 32
        v_readlane_b32 s66, v{m2}, 48
        s_min_u32 s67, s{k1}, s35
        s_max_u32 s{k1}, s{k1}, s35
        s_min_u32 s35, s36, s37
        s_max_u32 s36, s36, s37
        s_max_u32 s67, s67, s35
        s_min_u32 s35, s{k1}, s36
        s_max_u32 s{k1}, s{k1}, s36
        s_max_u32 s67, s67, s35
        s_max_u32 s{k2}, s{k2}, s64
        s_max_u32 s65, s65, s66
        s_max_u32 s{k2}, s{k2}, s67
        s_max_u32 s{k2}, s{k2}, s65""")
        for x in fill: a(x)
    a(f"s_cmp_ge_u32 s{sJ}, 28\ns_cbranch_scc1 Lffn")
    TA, WRP = 8, 24
    WOF, OF, ACC = 128, 64, 32
    ROW, WSUM, XU = 18, 100, 48
    EW, ER = 102, 103
    a(f"""s_sub_u32 s40, s{sF2C}, {WS_FLAG2}
    s_lshl_b32 s40, s40, 4
    s_add_u32 s40, s40, {WS_O}
    s_and_b32 s35, s{sCG}, 1
    s_lshl_b32 s36, s35, 19
    s_sub_u32 s47, s40, s36
    s_add_u32 s40, s40, s36
    s_mul_i32 s38, s35, {4*3584}
    v_cmp_ne_u32 vcc, s{sTAG}, v{F2V}
    s_cbranch_vccnz Lclr
    Lclr_ok:""")
    g.ool.append(f"""Lclr:
    buffer_load_dword v{F2V}, v{F2A}, {WSR}, s{sF2C} offen sc1
    s_sub_u32 s{sSPIN}, s{sSPIN}, 1
    s_bitcmp1_b32 s{sSPIN}, 31
    s_cbranch_scc1 Lclr_ok
    s_waitcnt vmcnt(0)
    v_cmp_ne_u32 vcc, s{sTAG}, v{F2V}
    s_cbranch_vccnz Lclr
    s_branch Lclr_ok""")
    stamp(8)
    def oload(hl): a(f"s_add_u32 s35, s{40 if hl < 4 else 47}, {hl*131072}\nbuffer_load_dwordx4 v[{OF+4*hl}:{OF+4*hl+3}], v{OA}, {WSR}, s35 offen sc1")
    NO0 = int(opt.get("no0", 4))
    OD = int(opt.get("od", 4))
    if OD < 0:
        for hl in range(NO0): oload(hl)
    a(f"""v_lshrrev_b32 v3, 4, v2
    v_bfe_u32 v4, v2, 2, 2
    v_and_b32 v5, 3, v2
    s_mul_i32 s35, s{sGRP}, {8*3584}
    s_add_u32 s35, s35, {L_W2}
    s_add_u32 s35, s35, s38
    s_lshl_b32 s38, s38, 1
    v_mul_u32_u24 v6, 896, v3
    v_lshl_add_u32 v6, v5, 3, v6
    v_and_b32 v1, 1, v3
    v_lshl_add_u32 v6, v1, 6, v6
    v_add_u32 v6, s35, v6
    v_lshrrev_b32 v5, 1, v4
    v_lshl_add_u32 v1, v4, 7, v6
    v_lshl_add_u32 v{TA}, v5, 5, v1
    v_min_u32 v4, 2, v4
    v_lshl_add_u32 v1, v4, 7, v6
    v_lshl_add_u32 v{TA+4}, v5, 5, v1""")
    for ct in range(1, 4): a(f"v_xor_b32 v{TA+ct}, {32*ct}, v{TA}\nv_xor_b32 v{TA+4+ct}, {32*ct}, v{TA+4}")
    F = Asm()
    F(f"v_mov_b32 v{WSUM}, 0")
    for p in range(4):
        F(f"v_lshlrev_b32 v{XU+2*p}, 16, v{PF+p}\nv_and_b32 v{XU+2*p+1}, 0xffff0000, v{PF+p}\nv_mov_b32 v{WRP+p}, v{PF+4+p}")
        F(f"v_dot2c_f32_bf16 v{WSUM}, s{sONES}, v{PF+8+p}")
    srd(F, sOUT, pOUT, 1835008)
    F(f"""v_add_f32_dpp v{WSUM}, v{WSUM}, v{WSUM} row_ror:1 row_mask:0xf bank_mask:0xf
    v_and_b32 v5, 15, v2
    s_mul_i32 s37, s{sGRP}, 17408
    v_add_f32_dpp v{WSUM}, v{WSUM}, v{WSUM} row_ror:2 row_mask:0xf bank_mask:0xf
    s_mul_i32 s36, s{sRT}, {16*272}
    s_add_u32 s37, s37, s36
    v_add_f32_dpp v{WSUM}, v{WSUM}, v{WSUM} row_ror:4 row_mask:0xf bank_mask:0xf
    s_add_u32 s37, s37, {L_EX}
    v_mul_u32_u24 v5, 272, v5
    v_add_f32_dpp v{WSUM}, v{WSUM}, v{WSUM} row_ror:8 row_mask:0xf bank_mask:0xf
    v_lshl_add_u32 v5, v3, 4, v5
    v_mov_b32 v1, v{WSUM}
    v_add_u32 v{EW}, s37, v5
    v_lshrrev_b32 v3, 3, v2
    v_permlane16_swap_b32 v1, v{WSUM}
    v_add_f32 v{WSUM}, v1, v{WSUM}
    v_mov_b32 v1, v{WSUM}
    s_lshl_b32 s39, s{sRT}, 1
    s_add_u32 s39, s39, s{sGRP}
    v_permlane32_swap_b32 v1, v{WSUM}
    v_add_f32 v{WSUM}, v1, v{WSUM}
    s_lshl_b32 s37, s{sRB}, 3
    s_add_u32 s41, s37, s39
    s_lshl_b32 s37, s41, 3
    v_add_u32 v{ROW}, s37, v3
    v_and_b32 v4, 7, v2
    s_mul_i32 s37, s39, {8*272}
    s_add_u32 s37, s37, {L_EX}
    v_mul_u32_u24 v5, 272, v3
    v_lshl_add_u32 v5, v4, 5, v5
    v_add_u32 v{ER}, s37, v5
    v_lshlrev_b32 v108, 5, v4
    v_min_u32 v4, 6, v4
    v_lshlrev_b32 v104, 4, v3
    v_lshl_add_u32 v105, v4, 7, v104
    s_lshl_b32 s44, s41, 10
    s_add_u32 s44, s44, {WS_STAT}
    s_add_u32 s45, s44, s42
    v_and_b32 v3, 63, v{ROW}
    v_lshlrev_b32 v106, 2, v3
    v_add_u32 v106, {L_KEY}, v106
    v_lshlrev_b32 v107, 2, v2
    v_add_u32 v107, {L_KEY}, v107
    v_add_u32 v109, 4096, v108
    s_lshl_b32 s46, s{sCG}, 8
    s_lshl_b32 s37, s{sRB}, 13
    s_add_u32 s46, s46, s37
    s_add_u32 s46, s46, {WS_CAND}""")
    FL = list(F.L)
    def trs(hl):
        if hl == 4:
            for k in range(8): a(f"v_subrev_u32 v{TA+k}, s38, v{TA+k}")
        for ct in range(4):
            w = WOF + (hl*4 + ct)*4
            a(f"ds_read_b64_tr_b16 v[{w}:{w+1}], v{TA+ct} offset:{hl*3584}")
            for _ in range(2):
                if FL: a(FL.pop(0))
            a(f"ds_read_b64_tr_b16 v[{w+2}:{w+3}], v{TA+4+ct} offset:{hl*3584 + 512}")
            for _ in range(2):
                if FL: a(FL.pop(0))
    def mf4(hl, first):
        s = ""
        for ct in range(4):
            w = WOF + (hl*4 + ct)*4; c = ACC + 4*ct
            s += f"{M16} v[{c}:{c+3}], v[{w}:{w+3}], v[{OF+4*hl}:{OF+4*hl+3}], {'0' if first else f'v[{c}:{c+3}]'}\n"
        return s
    NT0 = int(opt.get("nt0", 8))
    for hl in range(NT0):
        trs(hl)
        a("s_waitcnt lgkmcnt(6)")
        if hl == OD:
            for k in range(NO0): oload(k)
    assert not FL
    for hl in range(NO0, 8): oload(hl)
    for hl in range(8):
        if hl + NT0 < 8: trs(hl + NT0); a(f"s_waitcnt vmcnt({7-hl}) lgkmcnt(6)")
        elif hl + NT0 == 8: a(f"s_waitcnt vmcnt({7-hl}) lgkmcnt(0)")
        else: a(f"s_waitcnt vmcnt({7-hl})")
        a(mf4(hl, hl == 0))
        if hl == 1: a(f"v_and_b32 v3, v{OF+3}, v{OF+7}")
        elif hl > 1: a(f"v_and_b32 v3, v3, v{OF+4*hl+3}")
    stamp(15)
    if g.stamps: a(f"s_mov_b32 s62, s{sSPIN}")
    a(f"""v_cmp_le_i32 vcc, 0, v3
    s_cbranch_vccnz Lre
    Lrex:""")
    if g.stamps: a(f"s_sub_u32 s62, s62, s{sSPIN}\nv_writelane_b32 v125, s62, 16")
    r = "Lre:\n"
    for hl in range(8): r += f"v_cmp_le_i32 s[{64+2*hl}:{65+2*hl}], 0, v{OF+4*hl+3}\n"
    r += "Lre1:\n"
    for hl in range(8):
        r += f"""s_cmp_eq_u64 s[{64+2*hl}:{65+2*hl}], 0
        s_cbranch_scc1 Lre2_{hl}
        v_mov_b32 v{OF+4*hl}, 0
        v_mov_b32 v{OF+4*hl+1}, 0
        v_mov_b32 v{OF+4*hl+2}, 0
        v_mov_b32 v{OF+4*hl+3}, 0
        s_add_u32 s35, s{40 if hl < 4 else 47}, {hl*131072}
        s_mov_b64 exec, s[{64+2*hl}:{65+2*hl}]
        buffer_load_dwordx4 v[{OF+4*hl}:{OF+4*hl+3}], v{OA}, {WSR}, s35 offen sc1
        s_mov_b64 exec, -1
        Lre2_{hl}:
        """
    r += "s_mov_b64 s[36:37], 0\ns_waitcnt vmcnt(0)\n"
    for hl in range(8):
        r += f"""s_cmp_eq_u64 s[{64+2*hl}:{65+2*hl}], 0
        s_cbranch_scc1 Lre3_{hl}
        v_cmp_le_i32 vcc, 0, v{OF+4*hl+3}
        {mf4(hl, False)}s_and_b64 s[{64+2*hl}:{65+2*hl}], s[{64+2*hl}:{65+2*hl}], vcc
        s_or_b64 s[36:37], s[36:37], s[{64+2*hl}:{65+2*hl}]
        Lre3_{hl}:
        """
    r += f"""s_cmp_eq_u64 s[36:37], 0
    s_cbranch_scc1 Lrex
    s_sub_u32 s{sSPIN}, s{sSPIN}, 1
    s_bitcmp1_b32 s{sSPIN}, 31
    s_cbranch_scc0 Lre1
    s_branch Lrex"""
    g.ool.insert(0, r)
    stamp(9)
    for ct in range(4): a(f"ds_write_b128 v{EW}, v[{ACC+4*ct}:{ACC+4*ct+3}] offset:{64*ct}")
    a(f"""v_mov_b32 v64, 0
    v_mov_b32 v65, 0
    v_mov_b32 v66, 0
    v_mov_b32 v67, s{sTAG}
    s_waitcnt lgkmcnt(0)
    s_barrier
    ds_read_b128 v[32:35], v{ER}
    ds_read_b128 v[40:43], v{ER} offset:17408
    ds_read_b128 v[36:39], v{ER} offset:16
    ds_read_b128 v[44:47], v{ER} offset:17424""")
    HP = 56
    for hf in range(2):
        a(f"s_waitcnt lgkmcnt({2 - 2*hf})")
        for p in range(2*hf, 2*hf + 2): a(f"v_pk_add_f32 v[{32+2*p}:{33+2*p}], v[{32+2*p}:{33+2*p}], v[{XU+2*p}:{XU+2*p+1}]")
        for p in range(2*hf, 2*hf + 2): a(f"v_pk_add_f32 v[{32+2*p}:{33+2*p}], v[{32+2*p}:{33+2*p}], v[{40+2*p}:{41+2*p}]")
        for p in range(2*hf, 2*hf + 2): a(f"v_cvt_pk_bf16_f32 v{HP+p}, v{32+2*p}, v{33+2*p}")
        for p in range(2*hf, 2*hf + 2):
            a(f"""v_dot2c_f32_bf16 v64, s{sONES}, v{HP+p}
            v_dot2c_f32_bf16 v65, v{HP+p}, v{HP+p}
            v_dot2c_f32_bf16 v66, v{WRP+p}, v{HP+p}""")
    red8((64, 65, 66))
    a("s_mov_b32 exec_lo, 0x01010101\ns_mov_b32 exec_hi, 0x01010101")
    g.dual([f"buffer_store_dwordx4 v[64:67], v104, {WSR}, s45 offen @"])
    a("s_mov_b64 exec, -1")
    stamp(10)
    HU = 32
    for p in range(4): a(f"v_lshlrev_b32 v{HU+2*p}, 16, v{HP+p}\nv_and_b32 v{HU+2*p+1}, 0xffff0000, v{HP+p}")
    a(f"""Lst:
    buffer_load_dwordx4 v[68:71], v105, {WSR}, s44 offen sc1""")
    g.spin_guard("Lstx")
    a(f"""s_waitcnt vmcnt(0)
    v_cmp_ne_u32 vcc, s{sTAG}, v71
    s_cbranch_vccnz Lst
    Lstx:
    s_waitcnt vmcnt(0)""")
    stamp(11)
    a(f"""s_mov_b32 exec_lo, 0x80808080
    s_mov_b32 exec_hi, 0x80808080
    v_mov_b32 v68, 0
    v_mov_b32 v69, 0
    v_mov_b32 v70, 0
    s_mov_b64 exec, -1""")
    red8((68, 69, 70))
    NMB, RSTD, RR, KEY = 72, 74, 76, 77
    g.ln_stats(68, 69, NMB, RSTD, 71)
    a(f"""v_fma_f32 v{RR}, v{NMB}, v{WSUM}, v70
    v_mul_f32 v{RR}, v{RR}, v{RSTD}
    v_ashrrev_i32 v3, 31, v{RR}
    v_or_b32 v3, 0x80000000, v3
    v_xor_b32 v3, v3, v{RR}
    v_and_b32 v3, 0xfffff800, v3
    v_or_b32 v{KEY}, v3, v{ROW}
    ds_write_b32 v106, v{KEY}""")
    D, HN, HNU, OP = 40, 80, 48, 88
    for p in range(4): a(f"v_pk_add_f32 v[{D+2*p}:{D+2*p+1}], v[{HU+2*p}:{HU+2*p+1}], v[{NMB}:{NMB+1}] op_sel_hi:[1,0]")
    for p in range(4): a(f"v_cvt_pk_bf16_f32 v{60+p}, v{D+2*p}, v{D+2*p+1}")
    a(f"s_waitcnt lgkmcnt(0)\ns_barrier\nds_read_b32 v24, v107")
    for p in range(4): a(f"v_lshlrev_b32 v{D+2*p}, 16, v{60+p}\nv_and_b32 v{D+2*p+1}, 0xffff0000, v{60+p}")
    for p in range(4): a(f"v_pk_mul_f32 v[{D+2*p}:{D+2*p+1}], v[{D+2*p}:{D+2*p+1}], v[{RSTD}:{RSTD+1}] op_sel_hi:[1,0]")
    hn = [HN, HN+1, HN+4, HN+5]
    fill = [f"v_cvt_pk_bf16_f32 v{hn[p]}, v{D+2*p}, v{D+2*p+1}" for p in range(4)] + [f"v_mov_b32 v{HN+2}, s{sTAG}", f"v_mov_b32 v{HN+6}, s{sTAG}"]
    a("s_waitcnt lgkmcnt(0)")
    top2(24, 25, 26, sK1, sK2, fill)
    a(f"""s_or_b32 s35, s{sCG}, s{sWAVE}
    s_cbranch_scc1 Lnosc
    v_mov_b32 v24, s{sK1}
    v_mov_b32 v25, s{sK2}
    v_mov_b32 v26, s{sTAG}
    s_lshl_b32 s35, s{sRB}, 7
    s_add_u32 s35, s35, {WS_SCORE}
    s_mov_b64 exec, 1
    buffer_store_dwordx3 v[24:26], v{ZR}, {WSR}, s35 offen sc1
    s_mov_b64 exec, -1
    Lnosc:
    v_cmp_le_u32 s[48:49], s{sK2}, v{KEY}
    v_cmp_eq_u32 vcc, s{sK2}, v{KEY}
    s_cmp_eq_u64 s[48:49], 0
    s_cbranch_scc1 Lnocand
    v_cndmask_b32 v3, v108, v109, vcc
    s_mov_b64 exec, s[48:49]
    buffer_store_dwordx3 v[{HN}:{HN+2}], v3, {WSR}, s46 offen sc1
    buffer_store_dwordx3 v[{HN+4}:{HN+6}], v3, {WSR}, s46 offen offset:16 sc1
    v_mov_b32 v92, v{HP}
    v_mov_b32 v93, v{HP+1}
    v_mov_b32 v94, s{sTAG}
    v_mov_b32 v95, v{RR}
    v_mov_b32 v96, v{HP+2}
    v_mov_b32 v97, v{HP+3}
    v_mov_b32 v98, s{sTAG}
    v_mov_b32 v99, v{RR}
    buffer_store_dwordx4 v[92:95], v3, {WSR}, s46 offen offset:2048 sc1
    buffer_store_dwordx4 v[96:99], v3, {WSR}, s46 offen offset:2064 sc1
    s_mov_b64 exec, -1
    Lnocand:""")
    stamp(12)
    for p in range(4): a(f"v_lshlrev_b32 v{HNU+2*p}, 16, v{hn[p]}\nv_and_b32 v{HNU+2*p+1}, 0xffff0000, v{hn[p]}")
    for p in range(4): a(f"v_pk_add_f32 v[{D+2*p}:{D+2*p+1}], v[{HU+2*p}:{HU+2*p+1}], v[{HNU+2*p}:{HNU+2*p+1}]")
    for p in range(4): a(f"v_cvt_pk_bf16_f32 v{OP+p}, v{D+2*p}, v{D+2*p+1}")
    a(f"""s_andn2_b64 exec, exec, s[48:49]
    buffer_store_dwordx4 v[{OP}:{OP+3}], v{XA}, s[{sOUT}:{sOUT+3}], s42 offen {OUTS}
    s_mov_b64 exec, -1
    s_cmp_eq_u64 s[48:49], 0
    s_cbranch_scc1 Lnocs
    s_movk_i32 s38, {WS_SEL}
    s_mov_b64 exec, s[48:49]
    Lsel:
    buffer_load_dwordx3 v[24:26], v{ZR}, {WSR}, s38 offen sc1""")
    g.spin_guard("Lselx")
    a(f"""s_waitcnt vmcnt(0)
    v_cmp_ne_u32 vcc, s{sTAG}, v26
    s_cbranch_vccnz Lsel
    Lselx:
    s_waitcnt vmcnt(0)""")
    stamp(13)
    a(f"""v_cmp_gt_u32 vcc, v25, v{KEY}
    s_cbranch_vccz Lnocs
    s_mov_b64 exec, vcc
    buffer_store_dwordx4 v[{OP}:{OP+3}], v{XA}, s[{sOUT}:{sOUT+3}], s42 offen {OUTS}
    Lnocs:
    s_mov_b64 exec, -1""")
    stamp(14)
    g.flush_stamps(8, 8)
    a("s_endpgm")
    a(f"""Lffn:
    s_cmp_ge_u32 s{sF}, 28
    s_cbranch_scc1 Lidle""")
    srd(a, sX, pWU, 1605632); srd(a, sW, pWD, 1605632); srd(a, sW2, pWG, 1605632)
    a(f"""s_lshl_b32 s40, s{sF}, 7
    s_mul_i32 s35, s{sWAVE}, {8*3584}
    s_add_u32 s40, s40, s35
    s_lshl_b32 s41, s{sWAVE}, 10
    s_and_b32 s36, s{sWAVE}, 1
    s_lshl_b32 s36, s36, 5
    v_and_b32 v3, 16, v2
    v_and_b32 v4, 0x70, v{GA}
    v_xor_b32 v3, v3, v4
    v_xor_b32 v3, s36, v3
    v_lshrrev_b32 v4, 3, v2
    v_mul_u32_u24 v4, 3584, v4
    v_add_u32 v5, v3, v4
    v_xor_b32 v6, 64, v5""")
    for n in range(7):
        a(f"""s_add_u32 m0, s41, {L_W2 + n*8192}
        s_add_u32 s35, s40, {n*64*3584}
        buffer_load_dwordx4 v5, s[{sW2}:{sW2+3}], s35 offen lds
        s_add_u32 m0, s41, {L_WU + n*8192}
        buffer_load_dwordx4 v6, s[{sX}:{sX+3}], s35 offen lds""")
    a(f"""v_lshrrev_b32 v3, 3, v2
    v_and_b32 v4, 7, v2
    v_mul_u32_u24 v3, 896, v3
    v_lshl_add_u32 v3, v4, 4, v3
    s_mul_i32 s40, s{sF}, {64*896}
    s_min_u32 s35, s{sWAVE}, 6
    s_lshl_b32 s35, s35, 7
    s_add_u32 s40, s40, s35""")
    for n in range(8):
        a(f"s_add_u32 s35, s40, {n*8*896}\nbuffer_load_dwordx4 v[{64+4*n}:{67+4*n}], v3, s[{sW}:{sW+3}], s35 offen")
    F1, F2 = 128, 192
    srd(a, sOUT, pOUT, 1835008)
    a(f"""v_lshrrev_b32 v3, 4, v2
    v_bfe_u32 v4, v2, 2, 2
    v_lshl_add_u32 v5, v3, 3, v4
    v_lshlrev_b32 v5, 7, v5
    v_lshrrev_b32 v4, 1, v4
    v_and_b32 v1, 1, v3
    v_lshl_add_u32 v4, v1, 1, v4
    v_and_b32 v6, 3, v2
    s_lshl_b32 s41, s{sWAVE}, 12
    v_lshl_add_u32 v9, v6, 3, v5
    v_lshl_add_u32 v9, v4, 5, v9
    v_add_u32 v9, s41, v9
    v_lshlrev_b32 v10, 5, v1
    v_xor_b32 v10, v10, v{GA}
    v_add_u32 v10, s41, v10
    v_xor_b32 v14, 64, v10
    v_bfe_u32 v15, v2, 1, 1
    v_lshl_add_u32 v4, v15, 2, v4
    v_xor_b32 v4, s{sWAVE}, v4
    v_and_b32 v6, 1, v2
    v_lshl_add_u32 v8, v6, 3, v5
    v_lshl_add_u32 v8, v4, 4, v8
    v_mul_u32_u24 v15, {L_W2 - L_WU}, v15
    v_sub_u32 v8, v8, v15
    v_add_u32 v8, {L_W2}, v8
    v_mul_u32_u24 v11, 896, v6
    v_lshl_add_u32 v11, v3, 4, v11
    v_add_u32 v11, {L_XS}, v11
    v_lshlrev_b32 v12, 7, v6
    v_add_u32 v12, {L_A}, v12
    s_lshl_b32 s35, s{sWAVE}, 4
    v_lshl_add_u32 v13, v1, 3, v12
    v_add_u32 v13, s35, v13
    v_lshl_add_u32 v12, v3, 4, v12
    v_cmp_eq_u32 s[44:45], 1, v3
    v_cmp_eq_u32 s[46:47], 2, v3
    v_cmp_eq_u32 s[48:49], 3, v3
    v_xor_b32 v16, 32, v9
    v_xor_b32 v17, 64, v9
    v_xor_b32 v18, 96, v9
    s_mul_i32 s35, s{sWAVE}, 56
    s_add_u32 s35, s35, s{sF}
    s_lshl_b32 s35, s35, 8
    s_add_u32 s42, s35, {WS_PART}
    s_add_u32 s43, s42, {14*28*256}
    v_lshrrev_b32 v15, 5, v2
    v_mul_u32_u24 v15, {28*256 - 256}, v15
    v_lshl_add_u32 v15, v2, 3, v15
    s_waitcnt vmcnt(8)
    s_barrier""")
    stamp(8)
    for ks in range(14):
        for s_ in range(2): a(f"ds_read_b64_tr_b16 v[{F1+4*ks+2*s_}:{F1+4*ks+2*s_+1}], v8 offset:{ks*4096 + s_*512}")
        if ks % 4 == 3: a("s_waitcnt lgkmcnt(4)")
    a(f"""s_cmp_eq_u32 s{sWAVE}, 7
    s_cbranch_scc1 Lf1""")
    for ks in range(2):
        a(f"s_waitcnt vmcnt({4 - 4*ks}) lgkmcnt(0)")
        for n in range(4): a(f"ds_write_b128 v{(10, 14)[n&1]}, v[{64+16*ks+4*n}:{67+16*ks+4*n}] offset:{1024*n}")
        for ct in range(4):
            for s_ in range(2):
                w = F2 + (ks*4 + ct)*4 + 2*s_
                a(f"ds_read_b64_tr_b16 v[{w}:{w+1}], v{(9, 16, 17, 18)[ct]} offset:{s_*512}")
    a(f"""s_branch Lf2
    Lf1:
    v_and_b32 v3, 31, v2
    v_lshlrev_b32 v3, 7, v3
    v_min_u32 v5, 55, v2
    v_lshlrev_b32 v4, 3, v5
    v_add_u32 v4, {L_XS}, v4
    v_lshlrev_b32 v5, 4, v5
    s_cmp_ge_u32 s{sF}, 14
    s_cselect_b32 s36, 14, 0
    s_cselect_b32 s37, 896, 0
    s_sub_u32 s36, s{sF}, s36
    s_lshl_b32 s43, s36, 6
    s_add_u32 s37, s37, s43
    s_add_u32 s37, s37, {L_XS}
    s_mul_i32 s41, s{sF}, {28*256}
    s_add_u32 s41, s41, {WS_PART}
    s_add_u32 s42, s41, 4096
    v_and_b32 v9, 15, v2
    v_lshlrev_b32 v10, 2, v9
    v_add_u32 v14, s37, v10
    v_lshrrev_b32 v9, 1, v9
    s_lshl_b32 s36, s36, 7
    v_lshl_add_u32 v9, v9, 4, s36
    v_and_b32 v6, 1, v2
    v_cmp_eq_u32 s[44:45], 1, v6
    s_movk_i32 s38, {WS_SCORE}""")
    stamp(9)
    def scores(l):
        a(f"""{l}:
        buffer_load_dwordx3 v[24:26], v3, {WSR}, s38 offen sc1""")
        g.spin_guard(l + "x")
        a(f"""s_waitcnt vmcnt(0)
        v_cmp_ne_u32 vcc, s{sTAG}, v26
        s_cbranch_vccnz {l}
        {l}x:
        s_waitcnt vmcnt(0)
        s_mov_b32 exec_lo, 0
        v_mov_b32 v24, v25
        s_mov_b32 exec_lo, -1""")
        top2(24, 25, 26, sK1, sK2)
    scores("Lfs")
    stamp(10)
    a(f"""v_cmp_eq_u32 vcc, s{sK2}, v24
    s_bfe_u32 s38, s{sK1}, 0x50006
    s_lshl_b32 s38, s38, 13
    s_add_u32 s38, s38, {WS_CAND}
    s_bfe_u32 s39, s{sK2}, 0x50006
    s_lshl_b32 s39, s39, 13
    s_cmp_eq_u32 vcc_hi, 0
    s_cselect_b32 s35, 0, 4096
    s_add_u32 s39, s39, s35
    s_add_u32 s39, s39, {WS_CAND}
    s_cmp_ge_u32 s{sF}, 14
    s_cselect_b32 s46, s39, s38
    s_cselect_b32 s40, s{sK2}, s{sK1}
    Lfc:
    buffer_load_dwordx3 v[16:18], v5, {WSR}, s38 offen sc1
    buffer_load_dwordx3 v[20:22], v5, {WSR}, s38 offen offset:896 sc1
    buffer_load_dwordx3 v[24:26], v5, {WSR}, s39 offen sc1
    buffer_load_dwordx3 v[28:30], v5, {WSR}, s39 offen offset:896 sc1
    buffer_load_dwordx4 v[40:43], v9, {WSR}, s46 offen offset:{0 if opt.get("pd") == "2" else 2048} sc1""")
    g.spin_guard("Lfcx")
    a(f"""s_waitcnt vmcnt(1)
    v_xor_b32 v18, s{sTAG}, v18
    v_xor_b32 v22, s{sTAG}, v22
    v_xor_b32 v26, s{sTAG}, v26
    v_xor_b32 v30, s{sTAG}, v30
    v_or3_b32 v18, v18, v22, v26
    v_or_b32 v18, v18, v30
    v_cmp_ne_u32 vcc, 0, v18
    s_cbranch_vccnz Lfc
    Lfcx:
    s_waitcnt vmcnt(1)
    ds_write_b64 v4, v[16:17]
    ds_write_b64 v4, v[20:21] offset:448
    ds_write_b64 v4, v[24:25] offset:896
    ds_write_b64 v4, v[28:29] offset:1344
    Lf2:
    s_waitcnt lgkmcnt(0)
    s_barrier""")
    stamp(11)
    for ks in range(14): a(f"ds_read_b128 v[{64+4*ks}:{67+4*ks}], v11 offset:{64*ks}")
    for ks in range(14):
        a(f"s_waitcnt lgkmcnt({13-ks})")
        a(f"{M16} v[16:19], v[{F1+4*ks}:{F1+4*ks+3}], v[{64+4*ks}:{67+4*ks}], {'0' if ks == 0 else 'v[16:19]'}")
    a("v_cvt_pk_bf16_f32 v20, v16, v17\nv_cvt_pk_bf16_f32 v21, v18, v19\nv_mov_b32 v22, v20\nv_mov_b32 v23, v21")
    a("v_permlane32_swap_b32 v22, v20\nv_permlane32_swap_b32 v23, v21")
    for p in range(2): a(f"v_lshlrev_b32 v{24+2*p}, 16, v{22+p}\nv_and_b32 v{25+2*p}, 0xffff0000, v{22+p}")
    for i in range(4): a(f"v_mul_f32 v{28+i}, {hex(f2u(-math.log2(math.e)))}, v{24+i}")
    for i in range(4): a(f"v_exp_f32 v{28+i}, v{28+i}")
    for p in range(2): a(f"v_lshlrev_b32 v{16+2*p}, 16, v{20+p}\nv_and_b32 v{17+2*p}, 0xffff0000, v{20+p}")
    for i in range(4): a(f"v_add_f32 v{28+i}, 1.0, v{28+i}")
    for i in range(4): a(f"v_rcp_f32 v{28+i}, v{28+i}")
    for i in range(4): a(f"v_mul_f32 v{24+i}, v{24+i}, v{28+i}")
    a("v_cvt_pk_bf16_f32 v22, v24, v25\nv_cvt_pk_bf16_f32 v23, v26, v27")
    for p in range(2): a(f"v_lshlrev_b32 v{24+2*p}, 16, v{22+p}\nv_and_b32 v{25+2*p}, 0xffff0000, v{22+p}")
    for i in range(4): a(f"v_mul_f32 v{24+i}, v{24+i}, v{16+i}")
    a(f"""v_cvt_pk_bf16_f32 v22, v24, v25
    v_cvt_pk_bf16_f32 v23, v26, v27
    ds_write_b64 v13, v[22:23]
    v_mov_b32 v49, s{sTAG}
    v_mov_b32 v51, s{sTAG}
    s_cmp_eq_u32 s{sWAVE}, 7
    s_waitcnt lgkmcnt(0)
    s_barrier""")
    stamp(12)
    a(f"""s_cbranch_scc1 Lfin
    ds_read_b128 v[64:67], v12
    ds_read_b128 v[68:71], v12 offset:64""")
    for ks in range(2):
        a(f"s_waitcnt lgkmcnt({1-ks})")
        for ct in range(4):
            w = F2 + (ks*4 + ct)*4; c = 32 + 4*ct
            a(f"{M16} v[{c}:{c+3}], v[{64+4*ks}:{67+4*ks}], v[{w}:{w+3}], {'0' if ks == 0 else f'v[{c}:{c+3}]'}")
    for t in range(2): a(f"v_cndmask_b32 v{48+2*t}, v{32+t}, v{36+t}, s[44:45]")
    for t in range(2): a(f"v_cndmask_b32 v{48+2*t}, v{48+2*t}, v{40+t}, s[46:47]")
    for t in range(2):
        a(f"""v_cndmask_b32 v{48+2*t}, v{48+2*t}, v{44+t}, s[48:49]
        buffer_store_dwordx2 v[{48+2*t}:{49+2*t}], v15, {WSR}, s{42+t} offen sc1""")
    if opt.get("pd") == "2": a("s_barrier")
    a("Lfend:")
    stamp(13)
    g.flush_stamps(8, 8)
    a("s_endpgm")
    PD = int(opt.get("pd", 1))
    if PD == 2: a("Lfin:\ns_barrier")
    a(f"""Lfh:
    buffer_load_dwordx4 v[40:43], v9, {WSR}, s46 offen offset:2048 sc1""")
    g.spin_guard("Lfhx")
    a(f"""{"Lfin:" if PD < 2 else ""}
    ds_read_b32 v20, v14
    s_waitcnt vmcnt(0)
    v_cmp_ne_u32 vcc, s{sTAG}, v42
    s_cbranch_vccnz Lfh
    Lfhx:
    s_and_b32 s40, s40, 0x7ff
    s_mul_i32 s40, s40, 896
    s_add_u32 s40, s40, s43
    s_waitcnt vmcnt(0) lgkmcnt(0)
    v_cndmask_b32 v16, v40, v41, s[44:45]""")
    g.rbf(19, 43)
    a(f"""v_mul_f32 v19, {hex(f2u(-math.log2(math.e)))}, v19
    v_exp_f32 v19, v19
    v_lshlrev_b32 v22, 16, v20
    v_add_f32 v19, 1.0, v19
    v_rcp_f32 v19, v19
    v_and_b32 v23, 0xffff0000, v20
    v_cvt_pk_bf16_f32 v18, v19, v19
    v_and_b32 v17, 0xffff0000, v16
    v_lshlrev_b32 v16, 16, v16
    v_lshlrev_b32 v18, 16, v18""")
    if PD == 1: a("s_barrier")
    stamp(15)
    a("Lfp:")
    for n in range(7): a(f"buffer_load_dwordx4 v[{64+4*n}:{67+4*n}], v{GA}, {WSR}, s{41 + n // 4} offen offset:{1024*(n % 4)} sc1")
    g.spin_guard("Lfpx")
    for n in range(7):
        a(f"s_waitcnt vmcnt({6-n})")
        b = 64 + 4*n
        if n == 0: a(f"v_and_b32 v24, v{b+1}, v{b+3}\nv_or_b32 v25, v{b+1}, v{b+3}")
        else:
            a(f"""v_bitop3_b32 v24, v24, v{b+1}, v{b+3} bitop3:0x80
            v_or3_b32 v25, v25, v{b+1}, v{b+3}
            v_add_f32 v64, v64, v{b}
            v_add_f32 v66, v66, v{b+2}""")
    a(f"""v_cmp_ne_u32 vcc, s{sTAG}, v24
    v_cmp_ne_u32 s[46:47], s{sTAG}, v25
    v_mov_b32 v65, v64
    v_mov_b32 v67, v66
    s_or_b64 vcc, vcc, s[46:47]
    s_cbranch_scc1 Lfp
    Lfpx:
    s_waitcnt vmcnt(0)
    v_permlane32_swap_b32 v65, v64
    v_permlane32_swap_b32 v67, v66
    v_add_f32 v64, v64, v65
    v_add_f32 v66, v66, v67
    v_mov_b32 v65, v64
    v_mov_b32 v67, v66
    v_permlane16_swap_b32 v65, v64
    v_permlane16_swap_b32 v67, v66
    v_add_f32 v64, v64, v65
    v_add_f32 v66, v66, v67
    v_cvt_pk_bf16_f32 v65, v64, v66
    v_lshlrev_b32 v64, 16, v65
    v_and_b32 v65, 0xffff0000, v65
    v_mul_f32 v64, v64, v18
    v_mul_f32 v65, v65, v18
    v_cvt_pk_bf16_f32 v65, v64, v65
    v_lshlrev_b32 v64, 16, v65
    v_and_b32 v65, 0xffff0000, v65
    v_add_f32 v64, v64, v22
    v_add_f32 v65, v65, v23
    v_cvt_pk_bf16_f32 v65, v64, v65
    v_lshlrev_b32 v64, 16, v65
    v_and_b32 v65, 0xffff0000, v65
    v_add_f32 v64, v64, v16
    v_add_f32 v65, v65, v17
    v_cvt_pk_bf16_f32 v64, v64, v65
    s_mov_b64 exec, 0xffff
    buffer_store_dword v64, v10, s[{sOUT}:{sOUT+3}], s40 offen {OUTS}
    s_mov_b64 exec, -1""")
    stamp(14)
    g.flush_stamps(8, 8)
    a("s_endpgm")
    a(f"""Lidle:
    s_lshl_b32 s35, s{sF}, 3
    s_add_u32 s35, s35, s{sWAVE}
    s_cmp_eq_u32 s35, {28*8}
    s_cbranch_scc0 Lfend
    v_and_b32 v3, 31, v2
    v_lshlrev_b32 v3, 7, v3
    s_movk_i32 s38, {WS_SCORE}""")
    scores("Lan")
    a(f"""v_mov_b32 v32, s{sK1}
    v_mov_b32 v33, s{sK2}
    v_mov_b32 v34, s{sTAG}
    s_mov_b64 exec, 1
    buffer_store_dwordx3 v[32:34], v{ZR}, {WSR}, 0 offen offset:{WS_SEL} sc1
    buffer_store_dword v34, v{ZR}, {WSR}, 0 offen
    s_mov_b64 exec, -1
    s_branch Lfend""")
```

```python
import math
from asmlib import *
from gen import *

S16 = "v_smfmac_f32_16x16x64_bf16"
def emit(g):
    A = [g.a]
    a = lambda s: A[0](s)
    stamp = g.stamp; opt = g.opt
    OUTS = opt.get("outs", "sc1").replace("plain", "")
    def red8(regs):
        for m in ("quad_perm:[1,0,3,2]", "quad_perm:[2,3,0,1]", "row_half_mirror"):
            for r in regs: a(f"v_add_f32_dpp v{r}, v{r}, v{r} {m} row_mask:0xf bank_mask:0xf")
    DM = "row_mask:0xf bank_mask:0xf"
    def merge16(m1, m2, t, fill=()):
        fill = list(fill)
        for k in (1, 2, 4, 8):
            a(f"""v_min_u32_dpp v{t}, v{m1}, v{m1} row_ror:{k} {DM}
            v_max_u32_dpp v{m1}, v{m1}, v{m1} row_ror:{k} {DM}
            v_max_u32_dpp v{m2}, v{m2}, v{m2} row_ror:{k} {DM}""")
            a(f"v_max_u32 v{m2}, v{m2}, v{t}")
            if fill: a(fill.pop(0))
        for x in fill: a(x)
    def top2(m1, m2, t, k1, k2):
        merge16(m1, m2, t)
        a(f"""v_readlane_b32 s{k1}, v{m1}, 0
        v_readlane_b32 s35, v{m1}, 16
        v_readlane_b32 s{k2}, v{m2}, 0
        v_readlane_b32 s36, v{m2}, 16
        s_min_u32 s37, s{k1}, s35
        s_max_u32 s{k1}, s{k1}, s35
        s_max_u32 s{k2}, s{k2}, s36
        s_max_u32 s{k2}, s{k2}, s37""")
    a(f"s_cmp_ge_u32 s{sJ}, 28\ns_cbranch_scc1 Lffn")
    WOF, OF, ACC = 128, 32, 16
    XP, WRP, WRA, XU, WSUM = PF, PF + 4, PF + 8, 64, 72
    GS = opt.get("gstamps")
    g.ool.append(f"""Lclr:
    buffer_load_dword v{F2V}, v{F2A}, {WSR}, s{sF2C} offen sc1
    s_sub_u32 s{sSPIN}, s{sSPIN}, 1
    s_bitcmp1_b32 s{sSPIN}, 31
    s_cbranch_scc1 Lclr_ok
    s_waitcnt vmcnt(0)
    v_cmp_ne_u32 vcc, s{sTAG}, v{F2V}
    s_cbranch_vccnz Lclr
    s_branch Lclr_ok""")
    stamp(8)
    def oload(hl): a(f"s_add_u32 s35, s{sOA if hl < 4 else sOB}, {hl*131072}\nbuffer_load_dwordx4 v[{OF+4*hl}:{OF+4*hl+3}], v{OA}, {WSR}, s35 offen sc1")
    NO0 = int(opt.get("no0", 4)); NO1 = int(opt.get("no1", 8))
    OD = int(opt.get("od", 4))
    def trs(hl):
        if hl == 4:
            for k in range(8): a(f"v_subrev_u32 v{TA+k}, s{sTS}, v{TA+k}")
        for ct in range(4):
            w = WOF + (hl*4 + ct)*4
            a(f"ds_read_b64_tr_b16 v[{w}:{w+1}], v{TA+ct} offset:{hl*3584}")
            a(f"ds_read_b64_tr_b16 v[{w+2}:{w+3}], v{TA+4+ct} offset:{hl*3584 + 512}")
    def mf4(hl, first):
        return [f"{M16} v[{ACC+4*ct}:{ACC+4*ct+3}], v[{WOF+(hl*4+ct)*4}:{WOF+(hl*4+ct)*4+3}], v[{OF+4*hl}:{OF+4*hl+3}], {'0' if first else f'v[{ACC+4*ct}:{ACC+4*ct+3}]'}" for ct in range(4)]
    vm = Vm()
    PFT = opt.get("pf", "tail") == "tail"
    if PFT: a("\n".join(g.pf))
    for hl in range(8):
        trs(hl)
        if hl == 0:
            a(f"v_mov_b32 v{WSUM}, 0\nv_cmp_ne_u32 vcc, s{sTAG}, v{F2V}\ns_cbranch_vccnz Lclr\nLclr_ok:")
            a("s_barrier")
        if hl == 1 and not PFT:
            for p in range(4): a(f"v_dot2c_f32_bf16 v{WSUM}, s{sONES}, v{WRA+p}")
        if hl < 7: a("s_waitcnt lgkmcnt(6)")
        if hl == OD:
            for k in range(NO0): oload(k); vm.add(k)
    if GS: stamp(10); a(f"s_waitcnt vmcnt({NO0})"); stamp(11)
    nxt = NO0
    while nxt < NO1: oload(nxt); vm.add(nxt); nxt += 1
    F = Asm()
    for k in (1, 2, 4, 8): F(f"v_add_f32_dpp v{WSUM}, v{WSUM}, v{WSUM} row_ror:{k} {DM}\nv_mov_b32 v{76 + (1, 2, 4, 8).index(k)}, {'0' if k < 8 else f's{sTAG}'}")
    F(f"""v_mov_b32 v1, v{WSUM}
    v_lshlrev_b32 v{XU}, 16, v{XP}
    v_permlane16_swap_b32 v1, v{WSUM}
    v_add_f32 v{WSUM}, v1, v{WSUM}
    v_mov_b32 v1, v{WSUM}
    v_and_b32 v{XU+1}, 0xffff0000, v{XP}
    v_permlane32_swap_b32 v1, v{WSUM}
    v_add_f32 v{WSUM}, v1, v{WSUM}""")
    for p in range(1, 4): F(f"v_lshlrev_b32 v{XU+2*p}, 16, v{XP+p}\nv_and_b32 v{XU+2*p+1}, 0xffff0000, v{XP+p}")
    srd(F, sOUT, pOUT, 1835008)
    FL = list(F.L)
    for hl in range(8):
        a(f"s_waitcnt vmcnt({vm.wait(hl)})" + (" lgkmcnt(0)" if hl == 6 else ""))
        if hl == 0 and PFT:
            for p in range(4): a(f"v_dot2c_f32_bf16 v{WSUM}, s{sONES}, v{WRA+p}")
        if GS and hl in (0, 4): stamp(12 + hl // 4)
        if nxt < 8: oload(nxt); vm.add(nxt); nxt += 1
        for m in mf4(hl, hl == 0):
            a(m)
            if FL: a(FL.pop(0))
        if hl == 1: a(f"v_and_b32 v3, v{OF+3}, v{OF+7}")
        elif hl > 1: a(f"v_and_b32 v3, v3, v{OF+4*hl+3}")
    assert not FL
    stamp(15)
    a(f"""v_cmp_le_i32 vcc, 0, v3
    s_cbranch_vccnz Lre
    Lrex:""")
    r = "Lre:\n"
    for hl in range(8): r += f"v_cmp_le_i32 s[{64+2*hl}:{65+2*hl}], 0, v{OF+4*hl+3}\n"
    r += "Lre1:\n"
    for hl in range(8):
        r += f"""s_cmp_eq_u64 s[{64+2*hl}:{65+2*hl}], 0
        s_cbranch_scc1 Lre2_{hl}
        v_mov_b32 v{OF+4*hl}, 0
        v_mov_b32 v{OF+4*hl+1}, 0
        v_mov_b32 v{OF+4*hl+2}, 0
        v_mov_b32 v{OF+4*hl+3}, 0
        s_add_u32 s35, s{sOA if hl < 4 else sOB}, {hl*131072}
        s_mov_b64 exec, s[{64+2*hl}:{65+2*hl}]
        buffer_load_dwordx4 v[{OF+4*hl}:{OF+4*hl+3}], v{OA}, {WSR}, s35 offen sc1
        s_mov_b64 exec, -1
        Lre2_{hl}:
        """
    r += "s_mov_b64 s[36:37], 0\ns_waitcnt vmcnt(0)\n"
    NL = "\n"
    for hl in range(8):
        r += f"""s_cmp_eq_u64 s[{64+2*hl}:{65+2*hl}], 0
        s_cbranch_scc1 Lre3_{hl}
        v_cmp_le_i32 vcc, 0, v{OF+4*hl+3}
        {NL.join(mf4(hl, False))}
        s_and_b64 s[{64+2*hl}:{65+2*hl}], s[{64+2*hl}:{65+2*hl}], vcc
        s_or_b64 s[36:37], s[36:37], s[{64+2*hl}:{65+2*hl}]
        Lre3_{hl}:
        """
    r += f"""s_cmp_eq_u64 s[36:37], 0
    s_cbranch_scc1 Lrex
    s_sub_u32 s{sSPIN}, s{sSPIN}, 1
    s_bitcmp1_b32 s{sSPIN}, 31
    s_cbranch_scc0 Lre1
    s_branch Lrex"""
    g.ool.insert(0, r)
    stamp(9)
    for ct in range(4): a(f"ds_write_b128 v{EW}, v[{ACC+4*ct}:{ACC+4*ct+3}] offset:{64*ct}")
    HG, HN = 48, 56
    hp = [HG, HG+1, HG+4, HG+5]; hn = [HN, HN+1, HN+4, HN+5]
    a(f"""s_lshr_b32 s45, s42, 3
    s_add_u32 s45, s45, s{sSTA}
    s_mov_b32 s46, 0x7f7f7f7f
    s_mov_b32 s47, 0x7f7f7f7f
    s_waitcnt lgkmcnt(0)
    s_barrier
    ds_read_b128 v[32:35], v{ER}
    ds_read_b128 v[40:43], v{ER} offset:17408
    ds_read_b128 v[36:39], v{ER} offset:16
    ds_read_b128 v[44:47], v{ER} offset:17424""")
    for hf in range(2):
        a(f"s_waitcnt lgkmcnt({3 - 2*hf})")
        for p in range(2*hf, 2*hf + 2): a(f"v_pk_add_f32 v[{32+2*p}:{33+2*p}], v[{32+2*p}:{33+2*p}], v[{XU+2*p}:{XU+2*p+1}]")
        a(f"s_waitcnt lgkmcnt({2 - 2*hf})")
        for p in range(2*hf, 2*hf + 2): a(f"v_pk_add_f32 v[{32+2*p}:{33+2*p}], v[{32+2*p}:{33+2*p}], v[{40+2*p}:{41+2*p}]")
        for p in range(2*hf, 2*hf + 2): a(f"v_cvt_pk_bf16_f32 v{hp[p]}, v{32+2*p}, v{33+2*p}")
        for p in range(2*hf, 2*hf + 2):
            a(f"""v_dot2c_f32_bf16 v76, s{sONES}, v{hp[p]}
            v_dot2c_f32_bf16 v77, v{hp[p]}, v{hp[p]}
            v_dot2c_f32_bf16 v78, v{WRP+p}, v{hp[p]}""")
    red8((76, 77, 78))
    a("s_mov_b32 exec_lo, 0x01010101\ns_mov_b32 exec_hi, 0x01010101")
    g.dual([f"buffer_store_dwordx4 v[76:79], v{STS}, {WSR}, s45 offen @"])
    a("s_mov_b64 exec, -1")
    if not GS: stamp(10)
    HU, D, OP = 32, 40, 64
    NP = int(opt.get("np", 1))
    sl = lambda r_: f"buffer_load_dwordx4 v[{r_}:{r_+3}], v{STL}, {WSR}, s{sSTA} offen sc1"
    a(sl(16))
    for p in range(4): a(f"v_lshlrev_b32 v{HU+2*p}, 16, v{hp[p]}\nv_and_b32 v{HU+2*p+1}, 0xffff0000, v{hp[p]}")
    for r_ in (HG+2, HG+6, HN+2, HN+6, 26): a(f"v_mov_b32 v{r_}, s{sTAG}")
    a(f"""v_add_u32 v5, 4096, v{CA}
    s_lshl_b32 s41, s{sRB}, 7
    s_add_u32 s41, s41, {WS_SCORE}""")
    if NP == 1:
        a(f"s_branch Lst1\nLst:\n{sl(16)}")
        g.spin_guard("Lstx")
        a(f"""Lst1:
        s_waitcnt vmcnt(0)
        v_cmp_ne_u32 vcc, s{sTAG}, v19""")
        red8((16, 17, 18))
        a("s_and_b64 vcc, vcc, s[46:47]\ns_cbranch_scc1 Lst\nLstx:")
        SA = 16
    else:
        SA = 92
        m0 = "quad_perm:[1,0,3,2] " + DM
        first = lambda r_: "\n".join(f"v_add_f32_dpp v{SA+i}, v{r_+i}, v{r_+i} {m0}" for i in range(3))
        a(f"""Lst:
        {sl(28)}
        s_waitcnt vmcnt(1)
        v_cmp_ne_u32 vcc, s{sTAG}, v19
        {first(16)}
        s_and_b64 vcc, vcc, s[46:47]
        s_cbranch_scc0 Lstx
        {sl(16)}""")
        g.spin_guard("Lstx")
        a(f"""s_waitcnt vmcnt(1)
        v_cmp_ne_u32 vcc, s{sTAG}, v31
        {first(28)}
        s_and_b64 vcc, vcc, s[46:47]
        s_cbranch_scc1 Lst
        Lstx:""")
        for m in ("quad_perm:[2,3,0,1]", "row_half_mirror"):
            for i in range(3): a(f"v_add_f32_dpp v{SA+i}, v{SA+i}, v{SA+i} {m} {DM}")
    if not GS: stamp(11)
    NMB, RSTD, RR, KEY = 20, 22, HG + 3, 73
    g.ln_stats(SA, SA + 1, NMB, RSTD, SA + 3)
    a(f"""v_fma_f32 v{RR}, v{NMB}, v{WSUM}, v{SA+2}
    v_mul_f32 v{RR}, v{RR}, v{RSTD}
    v_ashrrev_i32 v3, 31, v{RR}
    v_bitop3_b32 v3, v3, v{RR}, s{sSGN} bitop3:0x36
    v_and_or_b32 v{KEY}, v3, s{sKM}, v{ROW}
    ds_write_b32 v{KW}, v{KEY}""")
    for p in range(4): a(f"v_pk_add_f32 v[{D+2*p}:{D+2*p+1}], v[{HU+2*p}:{HU+2*p+1}], v[{NMB}:{NMB+1}] op_sel_hi:[1,0]")
    for p in range(4): a(f"v_cvt_pk_bf16_f32 v{SA+p}, v{D+2*p}, v{D+2*p+1}")
    a(f"s_waitcnt lgkmcnt(0)\ns_barrier\nds_read_b128 v[68:71], v{KR}")
    for p in range(4): a(f"v_lshlrev_b32 v{D+2*p}, 16, v{SA+p}\nv_and_b32 v{D+2*p+1}, 0xffff0000, v{SA+p}")
    for p in range(4): a(f"v_pk_mul_f32 v[{D+2*p}:{D+2*p+1}], v[{D+2*p}:{D+2*p+1}], v[{RSTD}:{RSTD+1}] op_sel_hi:[1,0]")
    a(f"""s_or_b32 s35, s{sCG}, s{sWAVE}
    s_waitcnt lgkmcnt(0)
    v_max3_u32 v27, v68, v69, v70
    v_med3_u32 v25, v68, v69, v70
    v_max_u32 v24, v27, v71
    v_med3_u32 v25, v27, v25, v71
    v_mov_b32 v{HG+7}, v{RR}""")
    merge16(24, 25, 27, [f"v_cvt_pk_bf16_f32 v{hn[p]}, v{D+2*p}, v{D+2*p+1}" for p in range(4)])
    a(f"""s_cbranch_scc1 Lnosc
    s_mov_b64 exec, 1
    buffer_store_dwordx3 v[24:26], v{ZR}, {WSR}, s41 offen sc1
    s_mov_b64 exec, -1
    Lnosc:
    v_cmp_le_u32 s[48:49], v25, v{KEY}
    v_cmp_eq_u32 vcc, v25, v{KEY}
    s_cmp_eq_u64 s[48:49], 0
    s_cbranch_scc1 Lnocand
    v_cndmask_b32 v3, v{CA}, v5, vcc
    s_mov_b64 exec, s[48:49]
    buffer_store_dwordx3 v[{HN}:{HN+2}], v3, {WSR}, s{sCND} offen sc1
    buffer_store_dwordx3 v[{HN+4}:{HN+6}], v3, {WSR}, s{sCND} offen offset:16 sc1
    buffer_store_dwordx4 v[{HG}:{HG+3}], v3, {WSR}, s{sCND} offen offset:2048 sc1
    buffer_store_dwordx4 v[{HG+4}:{HG+7}], v3, {WSR}, s{sCND} offen offset:2064 sc1
    s_mov_b64 exec, -1
    Lnocand:""")
    if not GS: stamp(12)
    for p in range(4): a(f"v_lshlrev_b32 v{D+2*p}, 16, v{hn[p]}\nv_and_b32 v{D+2*p+1}, 0xffff0000, v{hn[p]}")
    for p in range(4): a(f"v_pk_add_f32 v[{D+2*p}:{D+2*p+1}], v[{HU+2*p}:{HU+2*p+1}], v[{D+2*p}:{D+2*p+1}]")
    for p in range(4): a(f"v_cvt_pk_bf16_f32 v{OP+p}, v{D+2*p}, v{D+2*p+1}")
    if opt.get("ow", "ack") == "ack": a("s_waitcnt vmcnt(0)\ns_barrier")
    a(f"""s_andn2_b64 exec, exec, s[48:49]
    {"" if opt.get("ow") == "none" else f"buffer_store_dwordx4 v[{OP}:{OP+3}], v{XA}, s[{sOUT}:{sOUT+3}], s42 offen {OUTS}"}
    s_mov_b64 exec, -1
    s_cmp_eq_u64 s[48:49], 0
    s_cbranch_scc1 Lnocs
    s_movk_i32 s38, {WS_SEL}
    s_mov_b64 exec, s[48:49]
    Lsel:
    buffer_load_dwordx3 v[24:26], v{ZR}, {WSR}, s38 offen sc1""")
    g.spin_guard("Lselx")
    a(f"""s_waitcnt vmcnt(0)
    v_cmp_ne_u32 vcc, s{sTAG}, v26
    s_cbranch_vccnz Lsel
    Lselx:
    s_waitcnt vmcnt(0)""")
    if not GS: stamp(13)
    a(f"""v_cmp_gt_u32 vcc, v25, v{KEY}
    s_cbranch_vccz Lnocs
    s_mov_b64 exec, vcc
    buffer_store_dwordx4 v[{OP}:{OP+3}], v{XA}, s[{sOUT}:{sOUT+3}], s42 offen {OUTS}
    Lnocs:
    s_mov_b64 exec, -1""")
    stamp(14)
    g.flush_stamps(8, 8)
    a("s_endpgm")
    a(f"""Lffn:
    s_cmp_ge_u32 s{sF}, 28
    s_cbranch_scc1 Lidle""")
    srd(a, sX, pWU, 1605632); srd(a, sW, pWD, 1605632); srd(a, sW2, pWG, 1605632)
    a(f"""s_lshl_b32 s40, s{sF}, 7
    s_mul_i32 s35, s{sWAVE}, {8*3584}
    s_add_u32 s40, s40, s35
    s_lshl_b32 s41, s{sWAVE}, 10
    s_and_b32 s36, s{sWAVE}, 1
    s_lshl_b32 s36, s36, 5
    v_and_b32 v3, 16, v2
    v_and_b32 v4, 0x70, v{GA}
    v_xor_b32 v3, v3, v4
    v_xor_b32 v3, s36, v3
    v_lshrrev_b32 v4, 3, v2
    v_mul_u32_u24 v4, 3584, v4
    v_add_u32 v5, v3, v4
    v_xor_b32 v6, 64, v5
    s_barrier""")
    for n in range(7):
        a(f"""s_add_u32 m0, s41, {L_W2 + n*8192}
        s_add_u32 s35, s40, {n*64*3584}
        buffer_load_dwordx4 v5, s[{sW2}:{sW2+3}], s35 offen lds
        s_add_u32 m0, s41, {L_WU + n*8192}
        buffer_load_dwordx4 v6, s[{sX}:{sX+3}], s35 offen lds""")
    a(f"""v_lshrrev_b32 v3, 3, v2
    v_and_b32 v4, 7, v2
    v_mul_u32_u24 v3, 896, v3
    v_lshl_add_u32 v3, v4, 4, v3
    s_mul_i32 s40, s{sF}, {64*896}
    s_min_u32 s35, s{sWAVE}, 6
    s_lshl_b32 s35, s35, 7
    s_add_u32 s40, s40, s35""")
    for n in range(8):
        a(f"s_add_u32 s35, s40, {n*8*896}\nbuffer_load_dwordx4 v[{64+4*n}:{67+4*n}], v3, s[{sW}:{sW+3}], s35 offen")
    F1, F2 = 128, 192
    srd(a, sOUT, pOUT, 1835008)
    a(f"""v_lshrrev_b32 v3, 4, v2
    v_bfe_u32 v4, v2, 2, 2
    v_lshl_add_u32 v5, v3, 3, v4
    v_lshlrev_b32 v5, 7, v5
    v_lshrrev_b32 v4, 1, v4
    v_and_b32 v1, 1, v3
    v_lshl_add_u32 v4, v1, 1, v4
    v_and_b32 v6, 3, v2
    s_lshl_b32 s41, s{sWAVE}, 12
    v_lshl_add_u32 v9, v6, 3, v5
    v_lshl_add_u32 v9, v4, 5, v9
    v_add_u32 v9, s41, v9
    v_lshlrev_b32 v10, 5, v1
    v_xor_b32 v10, v10, v{GA}
    v_add_u32 v10, s41, v10
    v_xor_b32 v14, 64, v10
    v_bfe_u32 v15, v2, 1, 1
    v_lshl_add_u32 v4, v15, 2, v4
    v_xor_b32 v4, s{sWAVE}, v4
    v_and_b32 v6, 1, v2
    v_lshl_add_u32 v8, v6, 3, v5
    v_lshl_add_u32 v8, v4, 4, v8
    v_mul_u32_u24 v15, {L_W2 - L_WU}, v15
    v_sub_u32 v8, v8, v15
    v_add_u32 v8, {L_W2}, v8
    v_bfe_u32 v15, v2, 2, 1
    v_lshl_add_u32 v15, v15, 1, v6
    v_mul_u32_u24 v11, 448, v15
    v_lshl_add_u32 v11, v3, 4, v11
    v_add_u32 v11, {L_XS}, v11
    v_mul_u32_u24 v44, 0xaaaa, v6
    v_add_u32 v44, 0x4444, v44
    v_bfe_u32 v15, v2, 1, 1
    v_lshl_add_u32 v13, v1, 1, v15
    v_lshlrev_b32 v13, 6, v13
    v_lshl_add_u32 v13, v6, 1, v13
    v_and_b32 v15, 4, v2
    s_lshl_b32 s35, s{sWAVE}, 3
    s_add_u32 s35, s35, {L_A}
    v_add3_u32 v13, v13, v15, s35
    v_and_b32 v15, 3, v2
    v_lshlrev_b32 v15, 6, v15
    v_lshl_add_u32 v15, v3, 4, v15
    v_add_u32 v15, {L_A}, v15
    v_mov_b32 v52, {L_A + 256}
    v_mov_b32 v53, v52
    v_mov_b32 v54, v52
    v_mov_b32 v55, v52
    ds_write_b128 v52, v[{ZR}:{ZR+3}]
    s_mov_b32 exec_lo, 0x000f000f
    s_mov_b32 exec_hi, 0x000f000f
    v_mov_b32 v52, v15
    s_lshl_b64 exec, exec, 4
    v_mov_b32 v53, v15
    s_lshl_b64 exec, exec, 4
    v_mov_b32 v54, v15
    s_lshl_b64 exec, exec, 4
    v_mov_b32 v55, v15
    s_mov_b64 exec, -1
    v_mov_b32 v32, 0
    v_mov_b32 v33, 0
    v_mov_b32 v34, 0
    v_mov_b32 v35, 0
    v_mov_b32 v36, 0
    v_mov_b32 v37, 0
    v_mov_b32 v38, 0
    v_mov_b32 v39, 0
    v_mov_b32 v49, s{sTAG}
    v_mov_b32 v51, s{sTAG}
    v_xor_b32 v16, 32, v9
    v_xor_b32 v17, 64, v9
    v_xor_b32 v18, 96, v9
    s_mul_i32 s35, s{sWAVE}, 56
    s_add_u32 s35, s35, s{sF}
    s_lshl_b32 s35, s35, 8
    s_add_u32 s42, s35, {WS_PART}
    s_add_u32 s43, s42, {14*28*256}
    v_lshrrev_b32 v15, 5, v2
    v_mul_u32_u24 v15, {28*256 - 256}, v15
    v_lshl_add_u32 v15, v2, 3, v15
    s_waitcnt vmcnt(8)
    s_barrier""")
    stamp(8)
    for ks in range(14):
        for s_ in range(2): a(f"ds_read_b64_tr_b16 v[{F1+4*ks+2*s_}:{F1+4*ks+2*s_+1}], v8 offset:{ks*4096 + s_*512}")
        if ks % 4 == 3: a("s_waitcnt lgkmcnt(4)")
    a(f"""s_cmp_eq_u32 s{sWAVE}, 7
    s_cbranch_scc1 Lf1""")
    for ks in range(2):
        a(f"s_waitcnt vmcnt({4 - 4*ks}) lgkmcnt(0)")
        for n in range(4): a(f"ds_write_b128 v{(10, 14)[n&1]}, v[{64+16*ks+4*n}:{67+16*ks+4*n}] offset:{1024*n}")
        for ct in range(4):
            for s_ in range(2):
                w = F2 + ct*8 + ks*4 + 2*s_
                a(f"ds_read_b64_tr_b16 v[{w}:{w+1}], v{(9, 16, 17, 18)[ct]} offset:{s_*512}")
    a(f"""s_branch Lf2
    Lf1:
    v_and_b32 v3, 31, v2
    v_lshlrev_b32 v3, 7, v3
    v_min_u32 v5, 55, v2
    v_lshlrev_b32 v4, 2, v5
    v_add_u32 v4, {L_XS}, v4
    v_add_u32 v12, 896, v4
    v_lshlrev_b32 v5, 4, v5
    s_cmp_ge_u32 s{sF}, 14
    s_cselect_b32 s36, 14, 0
    s_cselect_b32 s37, 896, 0
    s_sub_u32 s36, s{sF}, s36
    s_lshl_b32 s43, s36, 6
    s_lshr_b32 s35, s43, 1
    s_add_u32 s37, s37, s35
    s_add_u32 s37, s37, {L_XS}
    s_mul_i32 s41, s{sF}, {28*256}
    s_add_u32 s41, s41, {WS_PART}
    s_add_u32 s42, s41, 4096
    v_and_b32 v9, 15, v2
    v_lshlrev_b32 v10, 2, v9
    v_lshrrev_b32 v9, 1, v9
    v_and_b32 v6, 1, v2
    v_mul_u32_u24 v14, 448, v6
    v_lshl_add_u32 v14, v9, 2, v14
    v_add_u32 v14, s37, v14
    s_lshl_b32 s36, s36, 7
    v_lshl_add_u32 v9, v9, 4, s36
    v_cmp_eq_u32 s[44:45], 1, v6
""")
    stamp(9)
    def scores(l):
        a(f"""{l}:
        buffer_load_dwordx3 v[24:26], v3, {WSR}, s38 offen sc1""")
        g.spin_guard(l + "x")
        a(f"""s_waitcnt vmcnt(0)
        v_cmp_ne_u32 vcc, s{sTAG}, v26
        s_cbranch_vccnz {l}
        {l}x:
        s_waitcnt vmcnt(0)""")
        top2(24, 25, 26, sK1, sK2)
    NQ = int(opt.get("nq", 1))
    ld = lambda k: f"buffer_load_dwordx3 v[{96+4*k}:{98+4*k}], v3, {WSR}, s47 offen sc1"
    a(f"""s_mov_b32 s{sK1}, 0
    s_mov_b32 s{sK2}, 0
    s_movk_i32 s47, {WS_SCORE}
    s_movk_i32 s70, {opt.get("th", 28)}
    Lfs:
    s_mov_b32 exec_hi, 0""")
    for k in range(NQ - 1): a(ld(k))
    a("Lfs0:")
    g.spin_guard("Lfs_0")
    for k in range(NQ):
        a(f"""{ld((k + NQ - 1) % NQ)}
        s_waitcnt vmcnt({NQ - 1})
        v_cmp_eq_u32 vcc, s{sTAG}, v{98+4*k}
        s_bcnt1_i32_b32 s35, vcc_lo
        s_cmp_ge_u32 s35, s70
        {f"s_cbranch_scc1 Lfs_{k}" if k < NQ - 1 else "s_cbranch_scc0 Lfs0"}""")
    for k in reversed(range(NQ)):
        a(f"""Lfs_{k}:
        v_cndmask_b32 v56, 0, v{96+4*k}, vcc
        v_cndmask_b32 v57, 0, v{97+4*k}, vcc
        {"s_branch Lfs1" if k else ""}""")
    a(f"""Lfs1:
    s_add_u32 s70, s35, 1
    v_cmp_lt_u32 vcc, s{sK2}, v56
    v_cmp_ne_u32 s[68:69], s{sK1}, v56
    s_mov_b32 exec_hi, -1
    s_and_b64 vcc, vcc, s[68:69]
    s_cbranch_scc1 Lfnew
    Lfs2:
    s_bitcmp1_b32 s{sSPIN}, 31
    s_cbranch_scc1 Lf2
    s_cmp_le_u32 s70, 32
    s_cbranch_scc1 Lfs
    Lf2:
    s_waitcnt lgkmcnt(0)
    s_barrier""")
    o = g.a; g.a = a2 = Asm(); A[0] = a2
    a2("Lfnew:")
    top2(56, 57, 58, sK1, sK2)
    stamp(10)
    a2(f"""s_bfe_u32 s38, s{sK1}, 0x50006
    s_bfe_u32 s39, s{sK2}, 0x50006
    s_cmp_eq_u32 s38, s39
    s_cselect_b32 s35, 4096, 0
    s_lshl_b32 s38, s38, 13
    s_add_u32 s38, s38, {WS_CAND}
    s_lshl_b32 s39, s39, 13
    s_add_u32 s39, s39, s35
    s_add_u32 s39, s39, {WS_CAND}
    s_cmp_ge_u32 s{sF}, 14
    s_cselect_b32 s46, s39, s38
    s_cselect_b32 s40, s{sK2}, s{sK1}
    Lfc:
    buffer_load_dwordx3 v[16:18], v5, {WSR}, s38 offen sc1
    buffer_load_dwordx3 v[20:22], v5, {WSR}, s38 offen offset:896 sc1
    buffer_load_dwordx3 v[24:26], v5, {WSR}, s39 offen sc1
    buffer_load_dwordx3 v[28:30], v5, {WSR}, s39 offen offset:896 sc1
    buffer_load_dwordx4 v[40:43], v9, {WSR}, s46 offen offset:2048 sc1
    buffer_load_dwordx3 v[60:62], v3, {WSR}, s47 offen sc1""")
    g.spin_guard("Lf2")
    a2(f"""s_waitcnt vmcnt(2)
    v_xor_b32 v18, s{sTAG}, v18
    v_xor_b32 v22, s{sTAG}, v22
    v_xor_b32 v26, s{sTAG}, v26
    v_xor_b32 v30, s{sTAG}, v30
    v_or3_b32 v18, v18, v22, v26
    v_or_b32 v18, v18, v30
    v_cmp_ne_u32 vcc, 0, v18
    s_cbranch_vccnz Lfc
    ds_write2_b32 v4, v16, v17 offset1:112
    ds_write2_b32 v4, v20, v21 offset0:56 offset1:168
    ds_write2_b32 v12, v24, v25 offset1:112
    ds_write2_b32 v12, v28, v29 offset0:56 offset1:168
    s_cmp_gt_u32 s70, 32
    s_cbranch_scc1 Lf2
    s_waitcnt vmcnt(0)
    s_mov_b32 exec_hi, 0
    v_cmp_eq_u32 vcc, s{sTAG}, v62
    s_bcnt1_i32_b32 s35, vcc_lo
    v_cndmask_b32 v56, 0, v60, vcc
    v_cndmask_b32 v57, 0, v61, vcc
    s_branch Lfs1""")
    g.a = o; A[0] = o; newcode = "\n".join(a2.L)
    stamp(11)
    for s_ in range(7): a(f"ds_read_b128 v[{64+4*s_}:{67+4*s_}], v11 offset:{64*s_}")
    for s_ in range(7):
        a(f"s_waitcnt lgkmcnt({6-s_})")
        a(f"{S16} v[32:35], v[{64+4*s_}:{67+4*s_}], v[{F1+8*s_}:{F1+8*s_+7}], v44")
    a(f"""s_cmp_eq_u32 s{sWAVE}, 7
    v_add_f32 v20, v32, v33""")
    g.rbf(20, 20)
    a(f"""v_mul_f32 v21, {hex(f2u(-math.log2(math.e)))}, v20
    v_exp_f32 v21, v21
    v_mov_b32_dpp v22, v20 row_ror:8 row_mask:0xf bank_mask:0xf
    v_add_f32 v21, 1.0, v21
    v_rcp_f32 v21, v21
    s_mov_b32 exec_lo, 0x00ff00ff
    v_mul_f32 v20, v20, v21""")
    g.rbf(20, 20)
    a(f"""s_mov_b32 exec_hi, 0
    v_mul_f32 v20, v20, v22
    v_cvt_pk_bf16_f32 v20, v20, v20
    ds_write_b16 v13, v20
    s_mov_b64 exec, -1
    s_waitcnt lgkmcnt(0)
    s_barrier""")
    stamp(12)
    a("s_cbranch_scc1 Lfin")
    for ct in range(4): a(f"ds_read_b128 v[{64+4*ct}:{67+4*ct}], v{52+ct}")
    for ct in range(4):
        a(f"s_waitcnt lgkmcnt({3-ct})\n{S16} v[36:39], v[{64+4*ct}:{67+4*ct}], v[{F2+8*ct}:{F2+8*ct+7}], v44")
    for t in range(2):
        a(f"""v_add_f32 v{48+2*t}, v{36+2*t}, v{37+2*t}
        buffer_store_dwordx2 v[{48+2*t}:{49+2*t}], v15, {WSR}, s{42+t} offen sc1""")
    if opt.get("pd") == "2": a("s_barrier")
    a("Lfend:")
    stamp(13)
    g.flush_stamps(8, 8)
    a("s_endpgm")
    a(newcode)
    PD = int(opt.get("pd", 1))
    if PD == 2: a("Lfin:\ns_barrier")
    a(f"""Lfh:
    buffer_load_dwordx4 v[40:43], v9, {WSR}, s46 offen offset:2048 sc1""")
    g.spin_guard("Lfhx")
    a(f"""{"Lfin:" if PD < 2 else ""}
    ds_read_b32 v20, v14
    s_waitcnt vmcnt(0)
    v_cmp_ne_u32 vcc, s{sTAG}, v42
    s_cbranch_vccnz Lfh
    Lfhx:
    s_and_b32 s40, s40, 0x7ff
    s_mul_i32 s40, s40, 896
    s_add_u32 s40, s40, s43
    s_waitcnt vmcnt(0) lgkmcnt(0)
    v_cndmask_b32 v16, v40, v41, s[44:45]""")
    g.rbf(19, 43)
    a(f"""v_mul_f32 v19, {hex(f2u(-math.log2(math.e)))}, v19
    v_exp_f32 v19, v19
    v_lshlrev_b32 v22, 16, v20
    v_add_f32 v19, 1.0, v19
    v_rcp_f32 v19, v19
    v_and_b32 v23, 0xffff0000, v20
    v_cvt_pk_bf16_f32 v18, v19, v19
    v_and_b32 v17, 0xffff0000, v16
    v_lshlrev_b32 v16, 16, v16
    v_lshlrev_b32 v18, 16, v18""")
    if PD == 1: a("s_barrier")
    stamp(15)
    a("Lfp:")
    for n in range(7): a(f"buffer_load_dwordx4 v[{64+4*n}:{67+4*n}], v{GA}, {WSR}, s{41 + n // 4} offen offset:{1024*(n % 4)} sc1")
    g.spin_guard("Lfpx")
    for n in range(7):
        a(f"s_waitcnt vmcnt({6-n})")
        b = 64 + 4*n
        if n == 0: a(f"v_and_b32 v24, v{b+1}, v{b+3}\nv_or_b32 v25, v{b+1}, v{b+3}")
        else:
            a(f"""v_bitop3_b32 v24, v24, v{b+1}, v{b+3} bitop3:0x80
            v_or3_b32 v25, v25, v{b+1}, v{b+3}
            v_add_f32 v64, v64, v{b}
            v_add_f32 v66, v66, v{b+2}""")
    a(f"""v_cmp_ne_u32 vcc, s{sTAG}, v24
    v_cmp_ne_u32 s[46:47], s{sTAG}, v25
    v_mov_b32 v65, v64
    v_mov_b32 v67, v66
    s_or_b64 vcc, vcc, s[46:47]
    s_cbranch_scc1 Lfp
    Lfpx:
    s_waitcnt vmcnt(0)
    v_permlane32_swap_b32 v65, v64
    v_permlane32_swap_b32 v67, v66
    v_add_f32 v64, v64, v65
    v_add_f32 v66, v66, v67
    v_mov_b32 v65, v64
    v_mov_b32 v67, v66
    v_permlane16_swap_b32 v65, v64
    v_permlane16_swap_b32 v67, v66
    v_add_f32 v64, v64, v65
    v_add_f32 v66, v66, v67
    v_cvt_pk_bf16_f32 v65, v64, v66
    v_lshlrev_b32 v64, 16, v65
    v_and_b32 v65, 0xffff0000, v65
    v_mul_f32 v64, v64, v18
    v_mul_f32 v65, v65, v18
    v_cvt_pk_bf16_f32 v65, v64, v65
    v_lshlrev_b32 v64, 16, v65
    v_and_b32 v65, 0xffff0000, v65
    v_add_f32 v64, v64, v22
    v_add_f32 v65, v65, v23
    v_cvt_pk_bf16_f32 v65, v64, v65
    v_lshlrev_b32 v64, 16, v65
    v_and_b32 v65, 0xffff0000, v65
    v_add_f32 v64, v64, v16
    v_add_f32 v65, v65, v17
    v_cvt_pk_bf16_f32 v64, v64, v65
    s_mov_b64 exec, 0xffff
    buffer_store_dword v64, v10, s[{sOUT}:{sOUT+3}], s40 offen {OUTS}
    s_mov_b64 exec, -1""")
    stamp(14)
    g.flush_stamps(8, 8)
    a("s_endpgm")
    a(f"""Lidle:
    s_lshl_b32 s35, s{sF}, 3
    s_add_u32 s35, s35, s{sWAVE}
    s_cmp_eq_u32 s35, {28*8}
    s_cbranch_scc0 Lfend
    v_and_b32 v3, 31, v2
    v_lshlrev_b32 v3, 7, v3
    s_movk_i32 s38, {WS_SCORE}""")
    scores("Lan")
    a(f"""v_mov_b32 v32, s{sK1}
    v_mov_b32 v33, s{sK2}
    v_mov_b32 v34, s{sTAG}
    s_mov_b64 exec, 1
    buffer_store_dwordx3 v[32:34], v{ZR}, {WSR}, 0 offen offset:{WS_SEL} sc1
    buffer_store_dword v34, v{ZR}, {WSR}, 0 offen
    s_mov_b64 exec, -1
    s_branch Lfend""")
```

```python
import sys, math, struct
sys.path.insert(0, "gen")
from asmlib import *
import hazard

NAME = "sequential_preLN__mha_block__moe_arch_mod__prompt"
MF = "v_mfma_f32_32x32x16_bf16"
M16 = "v_mfma_f32_16x16x32_bf16"
SM = "v_smfmac_f32_32x32x32_bf16"
WS_SEL = 0x800; WS_SCORE = 0x1000; WS_XCC = 0x2000; WS_FLAG = 0x3000
WS_PART = 0x8000; WS_CAND = 0x40000; WS_STAT = 0x80000; WS_FLAG2 = 0xC0000
WS_KV = 0x100000; WS_O = 0x600000; WS_DBG = 0xC00000; WS_SIZE = 0x1000000
L_W = 65536
L_W2 = 98304
L_QX = 0
L_MISC = 155648
L_SCR = L_MISC
L_BAD = L_MISC + 1024
L_KEY = L_MISC + 1280
L_SEL = L_MISC + 1536
L_LOC = L_MISC + 1600
L_CNT = L_BAD + 4
L_ST = L_MISC + 2048
L_CS = L_MISC + 4608
L_XS = L_MISC + 2048
L_A = L_MISC + 4096
L_EX = 32768
L_WU = 32768
sOO, sF2, sF2C, sTCH, sLOC = 3, 4, 5, 6, 7
sX, sW, sWS, sW2, sOUT = 8, 12, 16, 20, 24
sWAVE, sRT, sGRP, sQB, sH, sTAG, sROT = 28, 29, 30, 31, 32, 33, 34
sKVS, sKVL, sXCC, sFLG, sFLS, sEARLY = 39, 40, 50, 38, 61, 62
sJ, sXCD, sRB, sCG, sF, sRETRY, sONES, sSPIN = 51, 52, 53, 54, 55, 56, 57, 58
sK1, sK2, sW2X, sW2M, sG = 59, 60, 61, 62, 63
pX, pW, pWO, pWR, pWG, pWU, pWD, pOUT, pWS = 64, 66, 68, 72, 74, 76, 78, 80, 84
sW2L, sW2G, sW2Ls, sW2Gs = 70, 71, 82, 83
GA = 7
W2A, CW, TCH, F2A, F2V, TC2, ZR = 112, 113, 114, 115, 116, 117, 120
TA, EW, ER, STS, STL, KW, ROW, CA, KR = 96, 104, 105, 106, 107, 108, 109, 110, 111
sOA, sOB, sTS, sSTA, sCND, sSGN, sKM = 6, 34, 48, 49, 50, 82, 83
OA, XA, PF = 124, 127, 80
SPIN = 50000
EPS = 0x3727C5AC
WSR = f"s[{sWS}:{sWS+3}]"
def f2u(x): return struct.unpack("<I", struct.pack("<f", x))[0]

class Vm:
    def __init__(self): self.q = []
    def add(self, tag, n=1): self.q += [tag] * n
    def wait(self, tag):
        idx = max(i for i, t in enumerate(self.q) if t == tag)
        n = len(self.q) - 1 - idx
        self.q = self.q[idx + 1:]
        return n

class G:
    def __init__(self, opt):
        self.opt = opt; self.a = Asm(); self.stamps = opt.get("stamps", False); self.n = 0
    def lab(self, p):
        self.n += 1
        return f"L{p}_{self.n}"
    def stamp(self, k, att=False):
        mode = "a" if self.opt.get("astamps") else "c" if self.opt.get("cstamps") else "s" if self.opt.get("sstamps") else "e" if self.opt.get("estamps") else False
        if att is True: att = "a"
        if 0 < k < 8 and att != mode: return
        if self.stamps: self.a(f"{'s_memtime' if self.opt.get('cyc') else 's_memrealtime'} s[{86+2*(k%8)}:{87+2*(k%8)}]")
    def flush_stamps(self, base, n, final=True):
        a = self.a
        if not self.stamps: return
        a("s_waitcnt lgkmcnt(0)")
        for k in range(base, base + n): a(f"v_writelane_b32 v125, s{86+2*(k%8)}, {k}")
        if not final: return
        if self.opt.get("probe"):
            k, wv, wg = [int(x) for x in self.opt["probe"].split(",")]
            l1, l2 = self.lab("pr"), self.lab("prx")
            a(f"""s_cmp_eq_u32 s2, {wg}
            s_cbranch_scc0 {l2}
            s_cmp_eq_u32 s{sWAVE}, {wv}
            s_cbranch_scc0 {l2}
            s_nop 4
            v_readlane_b32 s35, v125, 0
            v_readlane_b32 s36, v125, {k}
            s_sub_u32 s36, s36, s35
            s_min_u32 s36, s36, 6000
            s_lshl_b32 s36, s36, 2
            s_add_u32 s36, s36, {self.opt.get("pspan", 4000)}
            {l1}:
            s_memrealtime s[86:87]
            s_waitcnt lgkmcnt(0)
            s_sub_u32 s37, s86, s35
            s_cmp_lt_u32 s37, s36
            s_cbranch_scc1 {l1}
            {l2}:""")
            return
        a(f"s_lshl_b32 s35, s2, 3\ns_add_u32 s35, s35, s{sWAVE}\ns_lshl_b32 s35, s35, 7\ns_add_u32 s35, s35, {WS_DBG + 0x300000}")
        a(f"v_lshlrev_b32 v126, 2, v2\ns_mov_b32 exec_hi, 0\nbuffer_store_dword v125, v126, {WSR}, s35 offen")
    def spin_guard(self, out):
        self.a(f"s_sub_u32 s{sSPIN}, s{sSPIN}, 1\ns_bitcmp1_b32 s{sSPIN}, 31\ns_cbranch_scc1 {out}")
    def rbf(self, dst, src):
        self.a(f"v_cvt_pk_bf16_f32 v{dst}, v{src}, v{src}\nv_lshlrev_b32 v{dst}, 16, v{dst}")
    def ln_stats(self, s1, s2, nmb, rstd, t):
        a = self.a
        a(f"""v_mul_f32 v{s1}, {hex(f2u(1/448))}, v{s1}
        v_mul_f32 v{s2}, {hex(f2u(1/448))}, v{s2}
        v_fma_f32 v{s2}, -v{s1}, v{s1}, v{s2}
        v_max_f32 v{s2}, 0, v{s2}
        v_cvt_pk_bf16_f32 v{t}, v{s2}, -v{s1}
        v_lshlrev_b32 v{s2}, 16, v{t}
        v_add_f32 v{s2}, {hex(EPS)}, v{s2}""")
        self.rbf(s2, s2)
        a(f"v_sqrt_f32 v{s2}, v{s2}\nv_and_b32 v{nmb}, 0xffff0000, v{t}")
        self.rbf(s2, s2)
        a(f"v_rcp_f32 v{rstd}, v{s2}")
    def allred32(self, pairs):
        a = self.a
        for r, t in pairs: a(f"v_mov_b32 v{t}, v{r}")
        for r, t in pairs: a(f"v_permlane32_swap_b32 v{t}, v{r}")
        for r, t in pairs: a(f"v_add_f32 v{r}, v{t}, v{r}")
    def dual(self, lines, cond=sLOC):
        a = self.a
        if self.opt.get("force") == "global":
            for l in lines: a(l.replace("@", "sc1").replace("#", "128"))
            return
        l1, l2 = self.lab("glob"), self.lab("join")
        a(f"s_cmp_eq_u32 s{cond}, 0\ns_cbranch_scc1 {l1}")
        for l in lines: a(l.replace("@", self.opt.get("lst", "").replace("_", " ")).replace("#", "0"))
        a(f"{l2}:")
        self.ool.append(f"{l1}:\n" + "\n".join(l.replace("@", "sc1").replace("#", "128") for l in lines) + f"\ns_branch {l2}")
    def xcc_load(self, d, t):
        self.a(f"""v_and_b32 v{t}, 31, v2
        v_lshlrev_b32 v{t}, 3, v{t}
        s_lshl_b32 s35, s{sXCD}, 8
        s_add_u32 s35, s35, {WS_XCC}
        buffer_load_dwordx2 v[{d}:{d+1}], v{t}, {WSR}, s35 offen sc1""")
    def xcc_eval(self, d):
        self.a(f"""v_cmp_ne_u32 vcc, s{sTAG}, v{d}
        v_cmp_ne_u32 s[36:37], s{sXCC}, v{d+1}
        s_or_b64 vcc, vcc, s[36:37]
        s_cselect_b32 s{sLOC}, 0, 1""")
    def tr_addr(self, d):
        self.a(f"""v_lshrrev_b32 v4, 5, v2
        v_bfe_u32 v5, v2, 2, 2
        v_lshl_add_u32 v6, v4, 3, v5
        v_bfe_u32 v{d}, v2, 4, 1
        v_and_b32 v25, 3, v2
        v_lshl_add_u32 v{d}, v{d}, 2, v25
        v_add_u32 v25, 2, v{d}
        v_lshrrev_b32 v25, 3, v25
        v_xor_b32 v{d}, v{d}, v25
        v_lshlrev_b32 v25, 3, v{d}
        v_lshl_add_u32 v{d}, v6, 7, v25
        v_lshrrev_b32 v5, 1, v5
        v_lshl_add_u32 v{d}, v5, 6, v{d}""")
    def x_addr(self, XR):
        self.a(f"""v_and_b32 v3, 31, v2
        v_lshrrev_b32 v4, 5, v2
        v_bfe_u32 v5, v2, 1, 3
        v_xor_b32 v5, v5, v4
        v_lshlrev_b32 v5, 4, v5
        v_lshl_add_u32 v5, v3, 7, v5
        v_add_u32 v{XR}, s43, v5
        v_xor_b32 v{XR+1}, 32, v{XR}
        v_xor_b32 v{XR+2}, 64, v{XR}
        v_xor_b32 v{XR+3}, 96, v{XR}
        v_lshlrev_b32 v119, 4, v4
        v_lshl_add_u32 v119, v3, 5, v119
        v_add_u32 v119, {L_CS}, v119""")
    def scale_pack(self, c, mul, mul_vec, out, pk=True):
        a = self.a
        if not pk:
            for p in range(8):
                for e in (2*p, 2*p + 1): a(f"v_mul_f32 v{c+e}, v{c+e}, v{mul + e if mul_vec else mul}")
                a(f"v_cvt_pk_bf16_f32 v{out+p}, v{c+2*p}, v{c+2*p+1}")
            return
        for p in range(8):
            if mul_vec: a(f"v_pk_mul_f32 v[{c+2*p}:{c+2*p+1}], v[{c+2*p}:{c+2*p+1}], v[{mul+2*p}:{mul+2*p+1}]")
            else: a(f"v_pk_mul_f32 v[{c+2*p}:{c+2*p+1}], v[{c+2*p}:{c+2*p+1}], v[{mul}:{mul+1}] op_sel_hi:[1,0]")
        for p in range(8): a(f"v_cvt_pk_bf16_f32 v{out+p}, v{c+2*p}, v{c+2*p+1}")
    def roles(self, grp, t=3):
        a = self.a
        a(f"""s_mul_i32 s35, s{sJ}, 37
        s_lshr_b32 s35, s35, 8
        s_mul_i32 s36, s35, 7
        s_sub_u32 s{sCG}, s{sJ}, s36
        s_lshl_b32 s36, s{sXCD}, 2
        s_add_u32 s{sF}, s36, s{sCG}
        s_min_u32 s35, s35, 3
        s_add_u32 s{sRB}, s36, s35
        s_lshl_b32 s35, s{sH}, 6
        s_add_u32 s35, s35, s{sRT}
        s_lshl_b32 s36, s35, 12
        s_add_u32 s{sKVS}, s36, {WS_KV + grp*32*4096}
        s_lshl_b32 s36, s{sQB}, 2
        s_add_u32 s35, s35, s36
        s_lshl_b32 s36, s35, 11
        s_add_u32 s{sOO}, s36, {WS_O + grp*1024}
        s_lshl_b32 s36, s35, 8
        s_add_u32 s{sF2}, s36, {WS_FLAG2 + grp*128}
        s_lshl_b32 s36, s{sRB}, 1
        s_lshr_b32 s35, s{sRT}, 1
        s_add_u32 s35, s35, s36
        s_lshl_b32 s35, s35, 8
        s_add_u32 s{sF2C}, s35, {WS_FLAG2 + grp*8*64*256}
        v_bfe_u32 v1, v2, 1, 3
        v_and_b32 v{t}, 1, v2
        v_lshlrev_b32 v1, 14, v1
        v_lshl_add_u32 v{F2A}, v{t}, 7, v1
        s_mul_i32 s35, s{sWAVE}, 12288
        v_add_u32 v{CW}, s35, v{GA}
        v_mov_b32 v{ZR}, 0
        v_mov_b32 v{ZR+1}, 0
        v_mov_b32 v{ZR+2}, 0
        v_mov_b32 v{ZR+3}, 0
        s_lshl_b32 s35, s{sXCD}, 2
        s_add_u32 s35, s35, s{sRT}
        s_lshl_b32 s35, s35, 8
        s_add_u32 s{sFLG}, s35, {WS_FLAG}
        s_mul_i32 s35, s{sQB}, 43
        s_lshr_b32 s35, s35, 8
        s_mul_i32 s35, s35, 6
        s_sub_u32 s{sKVL}, s{sQB}, s35
        s_lshl_b32 s35, s{sRB}, 2
        s_add_u32 s35, s35, s{sRT}
        s_lshl_b32 s36, s35, 4
        s_add_u32 s36, s36, {8*grp}
        v_lshrrev_b32 v1, 3, v2
        v_mul_u32_u24 v{W2A}, 896, v1
        s_mulk_i32 s36, 896
        v_and_b32 v{t}, 0x70, v{GA}
        v_add3_u32 v{XA}, v{W2A}, v{t}, s36
        s_and_b32 s36, s{sRT}, 1
        s_lshl_b32 s37, s36, 6
        v_xor_b32 v{t}, s37, v{t}
        v_and_b32 v1, 16, v2
        v_lshlrev_b32 v1, 1, v1
        v_xor_b32 v{t}, v1, v{t}
        v_add_u32 v{W2A}, v{W2A}, v{t}
        s_lshl_b32 s36, s36, 8
        v_and_b32 v1, 0xf0, v{GA}
        v_and_b32 v{t}, 0x300, v{GA}
        v_lshl_add_u32 v1, v{t}, 1, v1
        v_add_u32 v{OA}, s36, v1
        s_lshl_b32 s{sW2G}, s{sCG}, 7
        s_mul_i32 s36, s{sWAVE}, {7*896}
        s_mul_i32 s{sW2L}, s{sWAVE}, 896""")
        srd(a, sW2, pWO, 401408)
        a(f"""s_lshl_b32 s37, s{sJ}, 3
        s_add_u32 s37, s37, s{sWAVE}
        s_mulk_i32 s37, {13*128}
        v_min_u32 v1, 12, v2
        v_lshl_add_u32 v{TC2}, v1, 7, s37""")
        if grp == 0:
            a(f"""s_lshl_b32 s35, s35, 11
            s_add_u32 s35, s35, s{sW2G}
            s_add_u32 s35, s35, {WS_STAT}
            s_lshl_b32 s37, s2, 2
            s_add_u32 s37, s37, s{sRT}
            s_lshl_b32 s37, s37, 9
            v_and_b32 v1, 3, v2
            v_lshl_add_u32 v{TCH}, v1, 7, s37
            v_and_b32 v1, 1, v2
            v_lshl_add_u32 v1, v1, 10, s35
            s_mov_b32 exec_lo, 0
            v_mov_b32 v{TCH}, v1
            s_mov_b32 exec_hi, 0xffff
            v_or_b32 v{TCH}, 0x380, v1
            s_mov_b64 exec, -1
            s_add_u32 s{sW2G}, s{sW2G}, s36""")
            srd(a, sOUT, pWS, WS_SIZE)
            return
        a(f"""s_add_u32 s{sW2G}, s{sW2G}, s36
        s_lshr_b32 s35, s{sJ}, 3
        s_lshl_b32 s36, s{sXCD}, 2
        s_add_u32 s35, s35, s36
        s_min_u32 s35, s35, 27
        s_cmp_eq_u32 s{sRT}, 1
        s_cselect_b64 s[{sOUT}:{sOUT+1}], s[{pWG}:{pWG+1}], s[{pWU}:{pWU+1}]
        s_add_u32 s36, s{sRT}, 1
        s_bitcmp0_b32 s36, 1
        s_cselect_b64 s[{sOUT}:{sOUT+1}], s[{pWD}:{pWD+1}], s[{sOUT}:{sOUT+1}]
        s_mov_b32 s{sOUT+2}, 1605632
        s_mov_b32 s{sOUT+3}, 0x00020000
        s_movk_i32 s36, 128
        s_cselect_b32 s37, s36, 3584
        s_cselect_b32 s36, 57344, s36
        s_mul_i32 s36, s35, s36
        s_and_b32 s35, s{sJ}, 7
        s_mul_i32 s35, s35, 56
        s_mul_i32 s35, s35, s37
        s_add_u32 s36, s36, s35
        v_min_u32 v1, 55, v2
        v_mul_u32_u24 v1, s37, v1
        v_add_u32 v{TCH}, s36, v1""")

    def head(self):
        a = self.a; opt = self.opt
        ra, rb_, rc = [int(x) for x in opt.get("rot", "1,3,1").split(",")]
        EMU = ""
        if opt.get("emu"):
            nq = int(opt["emu"]); lq = nq.bit_length() - 1; gx = 16 // nq; lg = gx.bit_length() - 1
            EMU = f"""s_and_b32 s36, s{sXCD}, {gx - 1}
            s_lshl_b32 s36, s36, {lq}
            s_and_b32 s{sQB}, s{sJ}, {nq - 1}
            s_add_u32 s{sQB}, s{sQB}, s36
            s_lshr_b32 s36, s{sXCD}, {lg}
            s_lshr_b32 s35, s{sJ}, {lq}
            s_mul_i32 s{sH}, s36, {32 // nq}
            s_add_u32 s{sH}, s{sH}, s35
            s_lshr_b32 s{sG}, s{sH}, 1
            s_and_b32 s36, s{sH}, 1
            s_lshl_b32 s36, s36, 3
            s_add_u32 s{sG}, s{sG}, s36"""
        a(khead(NAME + "_kernel"))
        a("s_cmp_ge_u32 s2, 256\ns_cbranch_scc1 Lexit")
        self.stamp(0)
        a(f"""s_load_dwordx16 s[64:79], s[0:1], 0
        s_load_dwordx2 s[80:81], s[0:1], 64
        s_load_dwordx2 s[84:85], s[0:1], 80
        v_lshrrev_b32 v1, 6, v0
        v_and_b32 v2, 63, v0
        v_readfirstlane_b32 s{sWAVE}, v1
        s_and_b32 s{sXCD}, s2, 7
        s_lshr_b32 s{sJ}, s2, 3
        s_and_b32 s{sQB}, s{sJ}, 15
        s_lshr_b32 s35, s{sJ}, 4
        s_lshl_b32 s36, s{sXCD}, 1
        s_add_u32 s{sH}, s36, s35
        s_lshl_b32 s36, s35, 3
        s_add_u32 s{sG}, s36, s{sXCD}
        {EMU}
        s_and_b32 s{sRT}, s{sWAVE}, 3
        s_lshr_b32 s{sGRP}, s{sWAVE}, 2
        s_cmp_eq_u32 s{sGRP}, 0
        s_cbranch_scc1 Lload
        @TOUR
        s_branch Lcomp
        Lload:
        s_mul_i32 s36, s{sXCD}, {ra}
        s_mul_i32 s35, s35, {rb_}
        s_add_u32 s36, s36, s35
        s_mul_i32 s35, s{sQB}, {rc}
        s_add_u32 s36, s36, s35
        s_mul_i32 s37, s36, 37
        s_lshr_b32 s37, s37, 8
        s_mul_i32 s37, s37, 7
        s_sub_u32 s{sROT}, s36, s37""")
    def consts(self):
        self.a(f"""s_mov_b32 s{sSPIN}, {self.opt.get("spin", SPIN)}
        s_mov_b32 s{sRETRY}, {-1 if self.opt.get('linst') else 0}
        s_mov_b32 s{sONES}, 0x3f803f80
        v_lshlrev_b32 v{GA}, 4, v2""")
        if self.stamps: self.a("v_mov_b32 v125, 0")
    def epoch_to_tag(self):
        self.a(f"s_mul_i32 s{sTAG}, s{sTAG}, 0x9e3779b1\ns_add_u32 s{sTAG}, s{sTAG}, 0x7f4a7c15")

    def loader(self):
        a = self.a; stamp = self.stamp
        XA, WA, QA = 8, 12, 14
        a(f"""v_lshrrev_b32 v3, 3, v2
        v_and_b32 v4, 7, v2
        v_lshrrev_b32 v5, 4, v2
        v_xor_b32 v6, v4, v5
        v_mul_u32_u24 v15, 896, v3
        v_lshl_add_u32 v{XA}, v6, 4, v15
        v_xor_b32 v6, 4, v6
        v_lshl_add_u32 v{XA+1}, v6, 4, v15
        v_add_u32 v{XA+2}, {2*6144}, v{XA}
        v_add_u32 v{XA+3}, {3*6144}, v{XA+1}
        v_add_u32 v{XA+1}, {6144}, v{XA+1}
        v_and_b32 v4, 3, v2
        v_lshlrev_b32 v4, 4, v4
        v_min_u32 v4, 40, v4
        v_lshrrev_b32 v6, 2, v2
        v_mul_u32_u24 v15, 2688, v6
        v_add_u32 v{QA}, v15, v4
        v_xor_b32 v6, v6, v5
        v_and_b32 v6, 1, v6
        v_mul_u32_u24 v6, 56, v6
        v_mul_u32_u24 v15, 2688, v3
        v_add3_u32 v{WA}, v15, v6, v4
        v_add_u32 v{WA+1}, {8*2688-1024}, v{WA}
        s_mul_i32 s48, s{sQB}, 114688
        s_mul_i32 s35, s{sRT}, 28672
        s_add_u32 s48, s48, s35
        s_mul_i32 s41, s{sRT}, {16*2688}
        s_mul_i32 s42, s{sH}, 56
        s_add_u32 s42, s42, s41
        s_mul_i32 s35, s{sG}, 112
        s_add_u32 s41, s41, s35
        s_add_u32 s41, s41, 896
        s_lshl_b32 s43, s{sRT}, 12
        s_lshl_b32 s44, s{sRT}, 11
        s_lshl_b32 s45, s{sRT}, 10
        s_mov_b32 s46, s{sROT}
        s_mov_b32 s{sX+2}, 1835008
        s_mov_b32 s{sX+3}, 0x00020000
        s_mov_b32 s{sW+2}, 1204224
        s_mov_b32 s{sW+3}, 0x00020000""")
        def touch_addr():
            a(f"""s_lshl_b32 s35, s{sXCD}, 19
            s_bfe_u32 s36, s{sJ}, 0x20003
            s_lshl_b32 s36, s36, 17
            s_add_u32 s35, s35, s36
            s_and_b32 s36, s{sJ}, 7
            s_lshl_b32 s36, s36, 12
            s_add_u32 s35, s35, s36
            s_add_u32 s35, s35, s45
            s_add_u32 s35, s35, {WS_KV}
            v_and_b32 v28, 7, v2
            v_lshl_add_u32 v29, v28, 7, s35
            s_lshl_b32 s35, s{sXCD}, 2
            s_add_u32 s35, s35, s{sRT}
            s_lshl_b32 s35, s35, 8
            s_add_u32 s49, s35, {WS_FLAG}
            s_lshl_b32 s36, s{sXCD}, 8
            s_add_u32 s47, s36, {WS_XCC}
            v_and_b32 v28, 1, v2
            s_mov_b32 exec_lo, 0
            v_lshl_add_u32 v29, v28, 7, s49
            s_mov_b32 exec_hi, 0xffff
            v_lshl_add_u32 v29, v28, 7, s47
            s_mov_b64 exec, -1""")
        PRE = self.opt.get("pre", "first")
        if PRE == "first": touch_addr()
        a(f"s_mov_b32 s{sWS+2}, {WS_SIZE}\ns_mov_b32 s{sWS+3}, 0x00020000")
        stamp(1, "s")
        a(f"s_waitcnt lgkmcnt(0)\ns_mov_b64 s[{sX}:{sX+1}], s[{pX}:{pX+1}]\ns_mov_b64 s[{sW}:{sW+1}], s[{pW}:{pW+1}]\ns_mov_b64 s[{sWS}:{sWS+1}], s[{pWS}:{pWS+1}]")
        stamp(2, "s")
        vm = Vm()
        def touch():
            if not self.opt.get("nokvt"): a(f"buffer_load_dword v118, v29, {WSR}, 0 offen sc1"); vm.add("pre")
        def adv(r): a(f"s_add_u32 s{r}, s{r}, 1\ns_cmp_eq_u32 s{r}, 7\ns_cselect_b32 s{r}, 0, s{r}")
        def issue_chunk(i):
            a(f"""s_mul_i32 s35, s46, {64*2688}
            s_add_u32 s35, s35, s41
            s_add_u32 m0, s44, {L_W + (i % 4) * 8192}
            s_lshl_b32 s36, s46, 7
            buffer_load_dwordx4 v{WA}, s[{sW}:{sW+3}], s35 offen lds
            buffer_load_dwordx4 v{WA+1}, s[{sW}:{sW+3}], s35 offen offset:1024 lds
            s_add_u32 m0, s43, {(i % 4) * 16384}
            s_add_u32 s36, s36, s48""")
            for n in range(4): a(f"buffer_load_dwordx4 v{XA+n}, s[{sX}:{sX+3}], s36 offen offset:{n*1024} lds")
            if i < 6: adv(46)
            vm.add(("c", i), 6)
        def issue_q(i):
            a(f"""s_mul_i32 s35, s{sROT}, {64*2688}
            s_add_u32 m0, s45, {L_W2 + i * 4096}
            s_add_u32 s35, s35, s42
            buffer_load_dwordx4 v{QA}, s[{sW}:{sW+3}], s35 offen lds""")
            if i < 6: adv(sROT)
            vm.add(("q", i))
        LA = 2
        XF, QW, QC = 128, 80, 64
        def qchunks(i0, i1, hook=lambda n: None):
            steps = [(i, j) for i in range(i0, i1) for j in range(4)]
            def rd(n):
                i, j = steps[n]; w = (80, 84, 88, 92, 240, 244, 248, 252)[n % 8]
                for s in range(2): a(f"ds_read_b64_tr_b16 v[{w+2*s}:{w+2*s+1}], v26 offset:{i*4096 + j*1024 + s*256}")
            AH = 6
            for n in range(min(AH, len(steps))): rd(n)
            for n, (i, j) in enumerate(steps):
                left = min(AH - 1, len(steps) - 1 - n)
                a(f"s_waitcnt lgkmcnt({2*left})")
                w = (80, 84, 88, 92, 240, 244, 248, 252)[n % 8]; x = XF + 16*i + 4*j
                a(f"{MF} v[{QC}:{QC+15}], v[{w}:{w+3}], v[{x}:{x+3}], {'0' if i + j == 0 else f'v[{QC}:{QC+15}]'}")
                if n + AH < len(steps): rd(n + AH)
                hook(n)
        def arrive(k): a(f"s_mov_b64 exec, 1\nds_add_u32 v21, v20 offset:{4*k}\ns_mov_b64 exec, -1")
        def await_(k, n):
            l = self.lab("cnt")
            a(f"{l}:\nds_read_b32 v19, v21 offset:{4*k}\ns_waitcnt lgkmcnt(0)\nv_cmp_gt_u32 vcc, {n}, v19\ns_cbranch_vccnz {l}")
        a(f"s_load_dword s{sTAG}, s[{pWS}:{pWS+1}], 0")
        ORD = self.opt.get("ord", "t01|q")
        def run(seq):
            for ch in seq:
                if ch == "t": touch()
                elif ch == "q": issue_q(0)
                else: issue_chunk(int(ch))
        run(ORD.split("|")[0])
        stamp(3, "s")
        self.consts()
        if PRE != "first": touch_addr()
        a(f"""s_getreg_b32 s{sXCC}, hwreg(HW_REG_XCC_ID, 0, 4)
        v_mov_b32 v20, 0
        v_lshlrev_b32 v23, 2, v2
        v_add_u32 v21, {L_BAD}, v23
        ds_write_b32 v21, v20
        v_mov_b32 v21, {L_CNT}
        v_mov_b32 v20, 1""")
        self.x_addr(60)
        self.tr_addr(24)
        a(f"""s_add_u32 s36, s44, {L_W}
        v_add_u32 v24, s36, v24
        v_xor_b32 v31, 64, v24
        v_and_b32 v22, 15, v2
        v_lshl_add_u32 v22, v4, 4, v22
        s_lshl_b32 s35, s{sRT}, 3
        s_add_u32 s35, s35, {L_CS}
        v_lshl_add_u32 v22, v22, 5, s35
        v_lshl_add_u32 v26, v6, 6, v25
        v_add_u32 v26, {L_W2}, v26
        v_add_u32 v30, s45, v26
        v_and_b32 v27, 31, v2
        v_lshlrev_b32 v27, 3, v27
        s_lshl_b32 s35, s{sRT}, 2
        s_add_u32 s35, s35, {L_LOC}
        v_mov_b32 v18, s35
        v_mov_b32 v52, 0
        s_mov_b32 exec_lo, 0xff0000ff
        s_mov_b32 exec_hi, 0xff0000ff
        v_mov_b32 v52, s{sONES}
        s_mov_b64 exec, -1
        v_mov_b32 v53, v52
        v_mov_b32 v54, v52
        v_mov_b32 v55, v52""")
        self.roles(0)
        self.tail_addr(0, "v")
        stamp(4, "s")
        run(ORD.split("|")[1])
        for i in range(7):
            if i == 0: stamp(5, "s")
            a(f"s_waitcnt vmcnt({vm.wait(('c', i))}) lgkmcnt(0)")
            if i == 0: stamp(6, "s")
            a("s_barrier")
            if i == 0: stamp(1); stamp(7, "s")
            stamp(i + 1, "c")
            if i == 6: stamp(1, "e")
            for k in range(4): a(f"ds_read_b64_tr_b16 v[{32+2*k}:{33+2*k}], v{(24, 31)[k>>1]} offset:{(i%4)*8192 + (k&1)*512}")
            if i == 0:
                self.epoch_to_tag()
                a(f"""s_lshl_b32 s35, s{sJ}, 3
                s_add_u32 s35, s35, s47
                v_mov_b32 v16, s{sTAG}
                v_mov_b32 v17, s{sXCC}
                s_mov_b64 exec, 1
                buffer_store_dwordx2 v[16:17], v{ZR}, {WSR}, s35 offen
                s_mov_b64 exec, -1""")
                vm.add("xs")
            xr = [f"ds_read_b128 v[{XF+16*i+4*j}:{XF+16*i+4*j+3}], v{60+j} offset:{(i%4)*16384}" for j in range(4)]
            if i < 6: a("\n".join(xr))
            if 2 <= i < 6:
                for s_ in range(2): a(f"ds_read_b64_tr_b16 v[{QW+2*s_}:{QW+2*s_+1}], v26 offset:{(i-2)*1024 + s_*256}")
            XP_ = self.opt.get("xp", "early")
            if i == 3 and XP_ != "late": a(f"buffer_load_dwordx2 v[28:29], v27, {WSR}, s47 offen sc1"); vm.add("xcc")
            if i + LA <= 6: issue_chunk(i + LA)
            if i == 4 and XP_ == "late": a(f"buffer_load_dwordx2 v[28:29], v27, {WSR}, s47 offen sc1"); vm.add("xcc")
            if i == 5:
                for k in range(1, 4): issue_q(k)
            if i == (6 if XP_ == "late" else 5):
                if "xcc" in vm.q: a(f"s_waitcnt vmcnt({vm.wait('xcc')})")
                self.xcc_eval(28)
                a(f"v_mov_b32 v19, s{sLOC}\nds_write_b32 v18, v19")
            a("s_waitcnt lgkmcnt(0)")
            for k in range(2): a(f"{M16} v[{48+8*k}:{51+8*k}], v[52:55], v[{32+4*k}:{35+4*k}], {'0' if i == 0 else f'v[{48+8*k}:{51+8*k}]'}")
            if i == 6: a("\n".join(xr))
            if 2 <= i < 6: a(f"{MF} v[{QC}:{QC+15}], v[{QW}:{QW+3}], v[{XF+4*(i-2)}:{XF+4*(i-2)+3}], {'0' if i == 2 else f'v[{QC}:{QC+15}]'}")
        def cs_pub(regs):
            for r, _ in regs: a(f"v_and_b32 v{r+1}, 0xffff0000, v{r}")
            for r, _ in regs: a(f"v_sub_f32 v{r+1}, v{r}, v{r+1}")
            for r, _ in regs: a(f"v_and_b32 v{r+2}, 0xffff0000, v{r+1}\nv_perm_b32 v{r}, v{r+1}, v{r}, s37")
            for r, _ in regs: a(f"v_sub_f32 v{r+1}, v{r+1}, v{r+2}")
            for r, k in regs: a(f"v_lshrrev_b32 v{r+1}, 16, v{r+1}\nds_write_b64 v22, v[{r}:{r+1}] offset:{1024*k}")
        a("s_mov_b32 s37, 0x07060302")
        cs_pub([(48, 0), (56, 1)])
        stamp(2, "e")
        a("s_waitcnt lgkmcnt(0)\ns_barrier")
        stamp(3, "e")
        stamp(2)
        for k in range(4, 7): issue_q(k)
        def cs_q(i0, i1):
            for i in range(i0, i1):
                for s_ in range(2): a(f"ds_read_b64_tr_b16 v[{32+4*(i-i0)+2*s_}:{33+4*(i-i0)+2*s_}], v30 offset:{i*4096 + s_*256}")
            a("s_waitcnt lgkmcnt(0)")
            for k in range(i1 - i0): a(f"{M16} v[48:51], v[52:55], v[{32+4*k}:{35+4*k}], {'0' if i0 + k == 0 else 'v[48:51]'}")
        a(f"s_waitcnt vmcnt({vm.wait(('q', 3))})")
        stamp(4, "e")
        arrive(0)
        a(f"""v_add_u32 v3, s44, v{GA}
        s_lshl_b32 s35, s{sRT}, 9
        s_add_u32 s35, s35, {L_ST}
        v_lshl_add_u32 v5, v2, 3, s35""")
        self.tail_addr(0, "s")
        a("s_mov_b32 s37, 0x07060302")
        await_(0, 4)
        stamp(5, "e")
        qchunks(1, 4)
        a("s_waitcnt vmcnt(0)")
        arrive(1)
        cs_q(0, 4)
        await_(1, 4)
        stamp(3); stamp(6, "e")
        cs_q(4, 7)
        def h(n):
            if n == 6: cs_pub([(48, 2)])
            if n == 8: arrive(2)
        qchunks(4, 7, h)
        await_(2, 8)
        stamp(7, "e")
        a(f"""ds_read_b64 v[40:41], v5
        ds_read_b128 v[36:39], v119 offset:2048
        s_waitcnt lgkmcnt(1)
        v_mul_f32 v44, {hex(f2u(math.log2(math.e) / math.sqrt(28)))}, v41
        v_mov_b32 v41, v40
        v_mov_b32 v42, v40
        v_mov_b32 v43, v40
        s_waitcnt lgkmcnt(0)
        {MF} v[{QC}:{QC+15}], v[36:39], v[40:43], v[{QC}:{QC+15}]""")
        self.q_addr()
        self.scale_pack(QC, 44, False, 8)
        a(f"""s_mov_b32 exec_lo, 0
        v_mov_b32 v14, 0
        v_mov_b32 v15, 0
        s_mov_b32 exec_lo, -1
        ds_write_b128 v3, v[8:11]
        ds_write_b128 v3, v[12:15] offset:1024""")
        stamp(4)
        a("Lattn1:")
        self.zero_o()
        a("s_waitcnt lgkmcnt(0)\ns_barrier\ns_setprio 3")
        a("\n".join(self.kv_load(0)))
        a("s_branch Lattn")

    def compute(self):
        a = self.a; stamp = self.stamp
        XF, ACC, WF, PK = 192, 32, 64, 64
        XR, WR, QR, SC, SCR, ST = 8, 12, 14, 15, 26, 27
        S1, S2, T1, T2, NMB, RSTD, XC = 16, 17, 18, 19, 20, 22, 118
        a("Lcomp:")
        a(f"s_lshl_b32 s43, s{sRT}, 12\ns_setprio {self.opt.get('cpri', 1)}")
        self.x_addr(XR)
        self.tr_addr(24)
        a(f"""v_add_u32 v{WR}, {L_W}, v24
        v_xor_b32 v{WR+1}, 64, v{WR}
        s_lshl_b32 s35, s{sRT}, 8
        s_add_u32 s35, s35, {L_SCR}
        v_lshl_add_u32 v{SC}, v2, 2, s35
        v_lshl_add_u32 v{SCR}, v4, 4, s35
        s_lshl_b32 s35, s{sRT}, 9
        s_add_u32 s35, s35, {L_ST}
        v_lshl_add_u32 v{QR}, v2, 3, s35""")
        stamp(1, "s")
        a(f"s_waitcnt lgkmcnt(0)\ns_load_dword s{sTAG}, s[{pWS}:{pWS+1}], 0")
        self.consts()
        def capture(f):
            old = self.a; self.a = Asm(); f(self.a); L = self.a.L; self.a = old
            return L
        def late(b):
            srd(b, sX, pX, 1835008); srd(b, sWS, pWS, WS_SIZE)
            self.epoch_to_tag()
            self.roles(1, 4)
            b(f"""s_lshl_b32 s35, s{sXCD}, 7
            s_lshl_b32 s36, s{sQB}, 2
            s_add_u32 s35, s35, s36
            s_add_u32 s35, s35, s{sRT}
            s_lshl_b32 s35, s35, 12
            s_lshr_b32 s36, s{sG}, 3
            s_lshl_b32 s36, s36, 11
            s_add_u32 s35, s35, s36
            s_add_u32 s46, s35, {WS_KV}
            s_add_u32 s47, s46, {64*4096}
            s_lshl_b32 s35, s{sXCD}, 2
            s_add_u32 s35, s35, s{sRT}
            s_lshl_b32 s35, s35, 8
            s_lshl_b32 s36, s{sJ}, 2
            s_add_u32 s35, s35, s36
            s_add_u32 s{sFLS}, s35, {WS_FLAG}
            s_lshl_b32 s35, s{sRT}, 2
            s_add_u32 s35, s35, {L_LOC}
            v_mov_b32 v{XC}, s35""")
            self.tail_addr(1, "s")
            self.tail_addr(1, "v")
        def atoms(L):
            out = []; hold = False
            for l in L:
                if hold: out[-1] += "\n" + l
                else: out.append(l)
                if "exec" in l: hold = "-1" not in l
            return out
        a(f"""s_cmp_ge_u32 s{sG}, 8
        s_cbranch_scc1 LcompV""")
        DA, NB, CA, CSF = (16, 17, 18, 19, 28, 29, 30, 31), 28, 119, 224
        def kloop(isV):
            order = [(j, m) for m in range(2) for j in range(4)]
            def wreg(i, j, m): return (WF, 224)[i % 2] + 8*j + 4*m
            def rlist(i):
                L = [(("x", i, j), f"ds_read_b128 v[{XF+16*(i%2)+4*j}:{XF+16*(i%2)+4*j+3}], v{XR+j} offset:{(i%4)*16384}") for j in range(4)]
                for k, (j, m) in enumerate(order):
                    for s in range(2):
                        w = wreg(i, j, m) + 2*s
                        L.append((("w", i, k), f"ds_read_b64_tr_b16 v[{w}:{w+1}], v{WR+m} offset:{(i%4)*8192 + j*2048 + s*512}"))
                return L
            def mm(c, w, x, src):
                if isV: a(f"{MF} v[{c}:{c+15}], v[{x}:{x+3}], v[{w}:{w+3}], {src}")
                else: a(f"{MF} v[{c}:{c+15}], v[{w}:{w+3}], v[{x}:{x+3}], {src}")
            BP = int(self.opt.get("bp", 3)); BPL = int(self.opt.get("bpl", 5)); CSP = int(self.opt.get("csp", 3))
            lg = Vm(); R = []
            def issue(n):
                c = 0
                while c < n and R and len(lg.q) < 15:
                    t, l = R.pop(0); a(l); lg.add(t); c += 1
                return c
            def need(t):
                assert all(u != t for u, _ in R)
                if t in lg.q: a(f"s_waitcnt lgkmcnt({lg.wait(t)})")
            def bar():
                assert not R
                a("s_waitcnt lgkmcnt(0)\ns_barrier"); lg.q = []
            LT = atoms(capture(late))
            NE = 42; NF = int(self.opt.get('nf', 7))
            for l in LT[-NE:]: a(l)
            LT = LT[:-NE]
            for e in DA: a(f"v_mov_b32 v{e}, 0")
            stamp(5, "s"); bar(); stamp(7, "s")
            R += rlist(0)
            for i in range(7):
                issue(int(self.opt.get("li", 8)) if len(R) == 20 else 14)
                for j in range(4):
                    need(("x", i, j))
                    for e in range(4):
                        x = XF + 16*(i%2) + 4*j + e
                        a(f"v_dot2c_f32_bf16 v{DA[e]}, s{sONES}, v{x}\nv_dot2c_f32_bf16 v{DA[4+e]}, v{x}, v{x}")
                        issue(1)
                    if j == 3 and R: need(("w", i, 2)); issue(6)
                if i == 6: stamp(2, "e"); LT = capture(lambda b: stats(isV))
                bp = BP if i < 5 else BPL
                for k, (j, m) in enumerate(order):
                    if k == bp and i < 6: bar(); R += rlist(i + 1)
                    need(("w", i, k))
                    c = ACC + 16*m
                    mm(c, wreg(i, j, m), XF + 16*(i%2) + 4*j, "0" if (i == 0 and j == 0) else f"v[{c}:{c+15}]")
                    if i == 6 and k == CSP:
                        stamp(3, "e"); bar(); stamp(4, "e")
                        a(f"ds_read_b128 v[{CSF}:{CSF+3}], v{CA}\nds_read_b128 v[{CSF+4}:{CSF+7}], v{CA} offset:1024\nds_read_b32 v{XC}, v{XC}")
                    if issue(4) < 3:
                        for _ in range(6 if i == 6 else NF):
                            if LT: a(LT.pop(0))
                if bp >= 8 and i < 6: bar(); R += rlist(i + 1)
                if i == 5: stamp(1, "e"); assert not LT
            for l in LT: a(l)
            a(f"s_waitcnt lgkmcnt({5 if isV else 0})")
            for m in range(2): mm(ACC + 16*m, CSF + 4*m, NB, f"v[{ACC+16*m}:{ACC+16*m+15}]")
            a(f"""v_readfirstlane_b32 s{sLOC}, v{XC}
            s_and_b32 s35, s{sQB}, 6
            s_cselect_b32 s43, 0, s{sLOC}
            ds_write2_b32 v{QR}, v{NB}, v{RSTD} offset1:1""")
        def stats(isV):
            b = self.a
            b(f"""v_add_f32 v{DA[0]}, v{DA[0]}, v{DA[1]}
            v_add_f32 v{DA[2]}, v{DA[2]}, v{DA[3]}
            v_add_f32 v{DA[4]}, v{DA[4]}, v{DA[5]}
            v_add_f32 v{DA[6]}, v{DA[6]}, v{DA[7]}
            v_add_f32 v{S1}, v{DA[0]}, v{DA[2]}
            v_add_f32 v{S2}, v{DA[4]}, v{DA[6]}""")
            self.allred32([(S1, 24), (S2, 25)])
            self.ln_stats(S1, S2, NMB, RSTD, 24)
            b(f"v_alignbit_b32 v{NB}, v{NMB}, v{NMB}, 16\nv_or_b32 v{NB}, v{NB}, v{NMB}")
            for e in range(1, 4): b(f"v_mov_b32 v{NB+e}, v{NB}")
            if isV:
                b(f"ds_write_b32 v{SC}, v{RSTD}")
                for q in range(4): b(f"ds_read_b128 v[{240+4*q}:{243+4*q}], v{SCR} offset:{q*32}")
        scale_pack = self.scale_pack
        def stores(m):
            stamp(5 + m, "e")
            if self.opt.get("linst"): a(f"v_mov_b32 v{ST}, v{GA}")
            self.dual([f"buffer_store_dwordx4 v[{PK+8*m}:{PK+8*m+3}], v{ST}, {WSR}, s{46+m} offen @",
                       f"buffer_store_dwordx4 v[{PK+8*m+4}:{PK+8*m+7}], v{ST}, {WSR}, s{46+m} offen offset:1024 @"], 43)
        a(f"""v_bfe_u32 v3, v2, 2, 1
        v_bfe_u32 v4, v2, 3, 1
        v_and_b32 v5, 0x33, v2
        v_lshl_add_u32 v5, v3, 3, v5
        v_lshl_add_u32 v5, v4, 2, v5
        v_lshlrev_b32 v{ST}, 4, v5
""")
        kloop(False)
        stamp(1)
        for m in range(2):
            scale_pack(ACC + 16*m, RSTD, False, PK + 8*m, False)
            a(f"""s_mov_b32 exec_lo, 0
            v_mov_b32 v{PK+8*m+6}, s{sONES}
            v_mov_b32 v{PK+8*m+7}, 0x3f80
            s_mov_b32 exec_lo, -1""")
            stores(m)
        a("s_branch LcompQ")
        a("LcompV:")
        a(f"""v_and_b32 v3, 31, v2
        v_mul_u32_u24 v4, 37, v3
        v_lshrrev_b32 v4, 8, v4
        v_mul_u32_u24 v5, 7, v4
        v_sub_u32 v5, v3, v5
        v_cmp_le_u32 vcc, 28, v3
        v_cndmask_b32 v4, v4, v5, vcc
        v_cndmask_b32 v5, v5, 7, vcc
        v_lshrrev_b32 v6, 1, v4
        v_and_b32 v4, 1, v4
        v_lshlrev_b32 v6, 4, v6
        v_lshl_add_u32 v6, v4, 2, v6
        v_lshrrev_b32 v4, 2, v5
        v_and_b32 v5, 3, v5
        v_lshl_add_u32 v6, v4, 3, v6
        v_add_u32 v6, v6, v5
        v_and_b32 v4, 32, v2
        v_add_u32 v6, v6, v4
        s_and_b32 s35, s{sQB}, 8
        s_lshl_b32 s35, s35, 1
        v_xor_b32 v6, s35, v6
        v_lshlrev_b32 v{ST}, 4, v6
""")
        kloop(True)
        stamp(1)
        a("s_mov_b32 exec_lo, 0xf0000000\ns_mov_b32 exec_hi, 0xf0000000")
        for p in range(16): a(f"v_mov_b32 v{PK+p}, s{sONES}")
        a("s_waitcnt lgkmcnt(0)")
        for m in range(2):
            a("s_mov_b32 exec_lo, 0x0fffffff\ns_mov_b32 exec_hi, 0x0fffffff")
            scale_pack(ACC + 16*m, 240, True, PK + 8*m, False)
            a("s_mov_b64 exec, -1")
            stores(m)
        a("LcompQ:")
        stamp(2); stamp(7, "e")
        a(f"""s_setprio 0
        v_mov_b32 v4, s{sTAG}
        v_mov_b32 v5, {L_CNT}
        v_mov_b32 v6, 1
        s_mov_b64 exec, 1
        ds_add_u32 v5, v6 offset:8
        s_mov_b64 exec, -1
        v_lshlrev_b32 v23, 2, v2""")
        self.q_addr()
        self.zero_o()
        a("s_waitcnt vmcnt(0)\ns_mov_b64 exec, 1")
        self.dual([f"buffer_store_dword v4, v{ZR}, {WSR}, s{sFLS} offen offset:# @"])
        a("s_mov_b64 exec, -1")
        stamp(3)
        a(f"""Lpoll1:
        buffer_load_dword v26, v23, {WSR}, s{sFLG} offen sc1""")
        self.spin_guard("Lpoll1x")
        a(f"""s_waitcnt vmcnt(0)
        v_cmp_ne_u32 vcc, s{sTAG}, v26
        s_and_b32 s35, vcc_lo, vcc_hi
        s_and_b32 s35, s35, 0x03030303
        s_cbranch_scc1 Lpoll1
        Lpoll1x:""")
        stamp(4)
        a("\n".join(self.kv_load(0)))
        a("s_barrier")

    Q = (48, 56, 64, 72); O = (128, 144, 160, 176); KV = (192, 208, 224, 240, 80)
    def kv_load(self, kt):
        b = self.KV[kt % 5]
        if kt < 2: p = f"s_add_u32 s41, s{sKVS}, {kt * 16384}\n"
        else: p = f"""s_add_u32 s41, s{sKVL}, {kt}
            s_cmp_ge_u32 s41, 8
            s_cselect_b32 s35, 6, 0
            s_sub_u32 s41, s41, s35
            s_lshl_b32 s41, s41, 14
            s_add_u32 s41, s41, s{sKVS}
            """
        return [(p if j == 0 else "") + f"buffer_load_dwordx4 v[{b+4*j}:{b+4*j+3}], v{GA}, {WSR}, s41 offen offset:{j*1024} sc1" for j in range(4)]
    def tail_addr(self, grp, part):
        a = self.a
        if part == "s":
            a(f"""s_sub_u32 s35, s{sF2C}, {WS_FLAG2}
            s_lshl_b32 s35, s35, 3
            s_add_u32 s35, s35, {WS_O}
            s_and_b32 s36, s{sCG}, 1
            s_lshl_b32 s37, s36, 19
            s_sub_u32 s{sOB}, s35, s37
            s_add_u32 s{sOA}, s35, s37
            s_mul_i32 s35, s36, {4*3584}
            s_lshl_b32 s{sTS}, s35, 1""")
            for k in range(8): a(f"v_add_u32 v{TA+k}, s35, v{TA+k}")
            a(f"""s_lshl_b32 s36, s{sRB}, 6
            v_add_u32 v{ROW}, s36, v{ROW}
            s_lshl_b32 s35, s{sRT}, 4
            s_add_u32 s35, s35, s36
            s_lshl_b32 s35, s35, 7
            s_add_u32 s{sSTA}, s35, {WS_STAT + grp*1024}
            s_lshl_b32 s35, s{sCG}, 8
            s_lshl_b32 s36, s36, 7
            s_add_u32 s35, s35, s36
            s_add_u32 s{sCND}, s35, {WS_CAND}
            s_brev_b32 s{sSGN}, 1
            s_movk_i32 s{sKM}, 0xf800""")
            return
        a(f"""v_lshrrev_b32 v{KR}, 4, v2
        v_bfe_u32 v{KW}, v2, 2, 2
        v_and_b32 v1, 3, v2
        v_mul_u32_u24 v{ER}, 896, v{KR}
        v_lshl_add_u32 v{ER}, v1, 3, v{ER}
        v_and_b32 v1, 1, v{KR}
        v_lshl_add_u32 v{ER}, v1, 6, v{ER}
        v_lshrrev_b32 v1, 1, v{KW}
        v_lshl_add_u32 v{ER}, v1, 5, v{ER}
        v_add_u32 v{ER}, {L_W2 + grp*8*3584}, v{ER}
        v_lshl_add_u32 v{TA}, v{KW}, 7, v{ER}
        v_min_u32 v{KW}, 2, v{KW}
        v_lshl_add_u32 v{TA+4}, v{KW}, 7, v{ER}""")
        for ct in range(1, 4): a(f"v_xor_b32 v{TA+ct}, {32*ct}, v{TA}\nv_xor_b32 v{TA+4+ct}, {32*ct}, v{TA+4}")
        a(f"""s_mul_i32 s36, s{sRT}, {16*272}
        s_add_u32 s35, s36, {L_EX + grp*17408}
        v_and_b32 v1, 15, v2
        v_mul_u32_u24 v{EW}, 272, v1
        v_lshl_add_u32 v{EW}, v{KR}, 4, v{EW}
        v_add_u32 v{EW}, s35, v{EW}
        v_lshlrev_b32 v1, 4, v1
        v_add_u32 v{KR}, {L_KEY}, v1
        v_lshrrev_b32 v{ROW}, 3, v2
        v_and_b32 v1, 7, v2
        s_add_u32 s35, s36, {L_EX + grp*8*272}
        v_mul_u32_u24 v{ER}, 272, v{ROW}
        v_lshlrev_b32 v{CA}, 5, v1
        v_add3_u32 v{ER}, v{ER}, v{CA}, s35
        v_lshlrev_b32 v{STS}, 7, v{ROW}
        v_add_u32 v1, 1, v1
        v_lshrrev_b32 v1, 3, v1
        v_lshl_add_u32 v{STL}, v1, 30, v{GA}
        s_lshl_b32 s35, s{sRT}, 4
        s_add_u32 s35, s35, {8*grp}
        v_add_u32 v{ROW}, s35, v{ROW}
        v_lshlrev_b32 v{KW}, 2, v{ROW}
        v_add_u32 v{KW}, {L_KEY}, v{KW}""")
    def zero_o(self):
        for o in self.O: self.a(f"{MF} v[{o}:{o+15}], v[{ZR}:{ZR+3}], v[{ZR}:{ZR+3}], 0")
    def q_addr(self):
        for p in range(4):
            self.a(f"s_add_u32 s35, s{sRT}, {p + 1}\ns_and_b32 s{44+p}, s35, 3\ns_lshl_b32 s35, s{44+p}, 11\nv_add_u32 v{16+p}, s35, v{GA}")
    def attention(self):
        a = self.a; stamp = self.stamp
        Q, O, KV = self.Q, self.O, self.KV
        S = (16, 32); IDX = 4
        PT = [O[0] + 8*i for i in range(6)]
        o = lambda k, d: int(self.opt.get(k, d))
        a("Lattn:")
        stamp(5); stamp(1, True)
        for p in range(4):
            for f in range(2): a(f"ds_read_b128 v[{Q[p]+4*f}:{Q[p]+4*f+3}], v{16+p} offset:{L_QX + 1024*f}")
        vm = Vm(); vm.add(("kv", 0), 4)
        RR = o("rr", 4); LW = self.opt.get("lw", "b")
        steps = [(t // 4, t % 4) for t in range(32 - 4*RR)] + [(8 - RR + t % RR, t // RR) for t in range(4*RR)]
        def qk(t):
            kt, p = steps[t]; n = S[t & 1]; k = KV[kt % 5]
            return [f"{MF} v[{n}:{n+15}], v[{k}:{k+3}], v[{Q[p]}:{Q[p]+3}], 0", f"{MF} v[{n}:{n+15}], v[{k+4}:{k+7}], v[{Q[p]+4}:{Q[p]+7}], v[{n}:{n+15}]"]
        def pv(t, f):
            kt, p = steps[t]; c = S[t & 1] + 8*f; v = KV[kt % 5] + 8 + 4*f
            return f"{SM} v[{O[p]}:{O[p]+15}], v[{v}:{v+3}], v[{c}:{c+7}], v{IDX}"
        a(f"v_mov_b32 v{IDX}, 0xdddddddd\ns_mul_i32 s36, s{sGRP}, {4*12288 + 2048}\ns_mul_i32 s37, s{sGRP}, {-8*12288}\ns_add_u32 s37, s37, {4*12288}")
        a(f"s_waitcnt vmcnt(2) lgkmcnt(6)")
        a("\n".join(qk(0)))
        for p in range(3):
            a(f"s_mul_i32 s35, s{44+p}, 12288\ns_add_u32 s35, s35, s36\nv_add_u32 v{8+2*p}, s35, v{GA}\nv_add_u32 v{9+2*p}, s37, v{8+2*p}")
        a("s_waitcnt lgkmcnt(0)")
        sd = {}
        def put(t, pos, tag, x):
            assert (t, pos) not in sd, (t, pos)
            sd[(t, pos)] = (tag, x)
        K3 = o("k3", 6)
        for j, x in enumerate(self.kv_load(1)): put(0, 1 + j, ("kv", 1), x)
        K2 = o("k2", 3)
        put(K2 - 1, 0, "fl", f"v_lshrrev_b32 v14, 2, v{GA}\nbuffer_load_dword v15, v14, {WSR}, s{sFLG} offen sc1")
        put(K2, 0, "flc", None)
        self.ool.append(f"""Lfl:
        buffer_load_dword v15, v14, {WSR}, s{sFLG} offen sc1
        s_sub_u32 s{sSPIN}, s{sSPIN}, 1
        s_bitcmp1_b32 s{sSPIN}, 31
        s_cbranch_scc1 Lflx
        s_waitcnt vmcnt(0)
        v_cmp_ne_u32 vcc, s{sTAG}, v15
        s_and_b32 s35, vcc_lo, vcc_hi
        s_cbranch_scc1 Lfl
        s_branch Lflx""")
        for j, x in enumerate(self.kv_load(2)): put(K2, 1 + j, ("kv", 2), x)
        put(K2 + 1, 1, "xc", f"""v_bfe_u32 v14, v{GA}, 1, 8
        s_lshl_b32 s35, s{sXCD}, 8
        s_add_u32 s35, s35, {WS_XCC}
        buffer_load_dwordx2 v[14:15], v14, {WSR}, s35 offen sc1""")
        put(12, 0, "xce", None)
        KR = o("kr", 4)
        pat = {2: ((0, 1), (1, 1)), 3: ((0, 1), (0, 4), (1, 3)), 4: ((0, 1), (0, 3), (1, 1), (1, 3))}[KR]
        n = 0
        for kt in range(3, 8):
            for j, x in enumerate(self.kv_load(kt)):
                u = K3 + 2*(n // KR) + pat[n % KR][0]
                assert kt < 5 or u > 4*(kt - 4)
                put(u, pat[n % KR][1], ("kv", kt), x); n += 1
        put(o("tw0", 16), 1, "t", f"buffer_load_dword v118, v{TC2}, s[{sW2}:{sW2+3}], 0 offen")
        put(o("s0", 8), 2, "clr", f"buffer_store_dwordx4 v[{ZR}:{ZR+3}], v{GA}, {WSR}, s{sOO} offen sc1")
        put(o("sf2", 18), 0, "f2", None)
        S1 = o("s1", 24)
        for n in range(8):
            put(*((S1 + n // 2, 1 + 2*(n % 2)) if o("wr", 2) == 2 else (S1 + n, 3)), "w2", f"""s_add_u32 m0, s{sW2L}, {L_W2 + n*8*896}
            s_add_u32 s35, s{sW2G}, {n*8*7*896}
            s_mov_b32 exec_hi, 0x00ffffff
            buffer_load_dwordx4 v{W2A}, s[{sW2}:{sW2+3}], s35 offen lds
            s_mov_b32 exec_hi, -1""")
        S2 = o("s2", 28)
        self.pf = [f"s_lshl_b32 s42, s{sCG}, 7\nbuffer_load_dwordx4 v[{PF}:{PF+3}], v{XA}, s[{sX}:{sX+3}], s42 offen",
            f"""s_mov_b64 s[{sW}:{sW+1}], s[{pWR}:{pWR+1}]
            s_movk_i32 s{sW+2}, 896
            s_mov_b32 s{sW+3}, 0x00020000
            buffer_load_dwordx4 v[{PF+8}:{PF+11}], v{GA}, s[{sW}:{sW+3}], 0 offen""",
            f"v_and_b32 v1, 0x70, v{GA}\nbuffer_load_dwordx4 v[{PF+4}:{PF+7}], v1, s[{sW}:{sW+3}], s42 offen"]
        if self.opt.get("pf", "tail") != "tail":
            for k in range(3): put(S2, k, "pf", self.pf[k])
        put(S2, 3, "f2c", f"buffer_load_dword v{F2V}, v{F2A}, {WSR}, s{sF2C} offen sc1")
        put(o("t0", 16), 3, "t", f"buffer_load_dword v118, v{TCH}, s[{sOUT}:{sOUT+3}], 0 offen")
        ns = self.opt.get("noside", "")
        for k in list(sd):
            if sd[k][0] in ns.split(","): del sd[k]
        lds = {}
        for p in range(3):
            w = [f"ds_write_b128 v{8+2*p+(i>>1)}, v[{O[p]+4*i}:{O[p]+4*i+3}] offset:{4096*p + 1024*(i&1)}" for i in range(4)]
            if self.opt.get("w64"):
                w = [f"ds_write_b64 v{8+2*p+(i>>1)}, v[{O[p]+4*i}:{O[p]+4*i+1}] offset:{4096*p + 1024*(i&1)}\nds_write_b64 v{8+2*p+(i>>1)}, v[{O[p]+4*i+2}:{O[p]+4*i+3}] offset:{4096*p + 1024*(i&1) + 8}" for i in range(4)]
            t0 = 32 - RR*(3 - p)
            if LW == "a": pl = [(t0 + 1, i) for i in range(4)] if p < 2 else [(t0, 3), (t0, 3), (t0, 4), (t0, 4)]
            elif RR == 3: pl = [(t0, 4), (t0 + 1, 1), (t0 + 1, 4), (t0 + 2, 2)] if p < 2 else [(t0, 2), (t0, 4), (t0 + 1, 0), (t0 + 1, 2)]
            else: pl = [(t0 + i, 2) for i in range(4)] if p < 2 else [(t0, 2), (t0 + 1, 0), (t0 + 1, 4), (t0 + 2, 2)]
            for i in range(4): lds.setdefault(pl[i], []).append(w[i])
        rd = [f"ds_read_b128 v[{PT[i>>1]+4*(i&1)}:{PT[i>>1]+4*(i&1)+3}], v{CW} offset:{1024*i}" for i in range(12)]
        BA = (30, 1) if LW == "a" else (30, 4)
        rp = ((30, 1), (30, 2), (30, 2), (30, 3), (30, 4), (30, 4), (31, 0), (31, 0), (31, 1), (31, 1), (31, 2), (31, 2)) if LW == "a" else \
             ((30, 4), (30, 4), (30, 4), (31, 5), (31, 5), (31, 5), (31, 0), (31, 0), (31, 0), (31, 1), (31, 1), (31, 1))
        for i, k in enumerate(rp): lds.setdefault(k, []).append(rd[i])
        QBAR = o("qbar", 16)
        def side(t, pos):
            if (t, pos) == (QBAR, 0): a("s_barrier")
            if (t, pos) == BA and "bara" not in ns: a("s_waitcnt lgkmcnt(0)\ns_barrier")
            for x in lds.get((t, pos), []):
                if not (("ldw" in ns and "write" in x) or ("ldr" in ns and "read" in x)): a(x)
            if (t, pos) not in sd: return
            tag, x = sd[(t, pos)]
            if tag == "flc":
                a(f"s_waitcnt vmcnt({vm.wait('fl')})\nv_cmp_ne_u32 vcc, s{sTAG}, v15\ns_and_b32 s35, vcc_lo, vcc_hi\ns_cbranch_scc1 Lfl\nLflx:")
                return
            if tag == "xce":
                assert "xc" not in vm.q
                a(f"""s_getreg_b32 s35, hwreg(HW_REG_XCC_ID, 0, 4)
                v_cmp_ne_u32 vcc, s{sTAG}, v14
                v_cmp_ne_u32 s[36:37], s35, v15
                s_or_b64 vcc, vcc, s[36:37]
                s_cselect_b32 s{sLOC}, 0, 1""")
                return
            if tag == "f2":
                w = f"s_waitcnt vmcnt({vm.wait('clr')})\n" if "clr" in vm.q else ""
                x = f"v_mov_b32 v{F2V}, s{sTAG}\n{w}s_mov_b64 exec, 1\nbuffer_store_dword v{F2V}, v{ZR}, {WSR}, s{sF2} offen sc1\ns_mov_b64 exec, -1"
            a(x); vm.add(tag)
        seq = {"a": "e e P 0 e e e W Q0 1 e e e Q1 e e 2 e e C e e 3 e 4 e",
               "b": "e e P e e e W Q0 e e e Q1 0 e e 1 e e C 2 e e 3 e 4 e",
               "c": "e e P 5 e e W Q0 e e e Q1 0 e e 1 e e e C 2 e e 3 e 4 e",
               "e": "e e e e P e e e W Q0 e e e Q1 0 1 e e 2 e C 3 e 4 e e",
               "d": "e e e P e e e W Q0 e e e Q1 0 e 1 e e C 2 e e 3 e 4 e"}[self.opt.get("seq", "c")]
        NT = 32
        PRI = {}
        for x in self.opt.get("pri", "0.0.3,5.8.2,11.0.1,15.8.0,16.2.3,23.2.2,27.0.1,30.6.0,30.15.1,31.9.0").split(","):
            u, v, w = [int(y) for y in x.split(".")]; PRI[(u, v)] = w
        for t in range(NT):
            c = S[t & 1]; ei = 0
            AS = [int(x) for x in self.opt.get("as", "4,8,16,24,28,31").split(",")]
            if t in AS: stamp(AS.index(t) + 2, True)
            for tok in seq.split():
                if tok == "e":
                    p = PRI.get((t, ei))
                    if p is not None: a(f"s_setprio {p}")
                    a(f"v_exp_f32 v{c+ei}, v{c+ei}"); ei += 1
                elif tok == "P":
                    if t > 0: a(pv(t - 1, 1))
                elif tok == "C": a(pv(t, 0))
                elif tok == "W":
                    if t + 1 < NT and ("kv", steps[t + 1][0]) in vm.q:
                        assert vm.q.count(("kv", steps[t + 1][0])) == 4 or all(v[0] != ("kv", steps[t + 1][0]) for k, v in sd.items() if k > (t, 0))
                        a(f"s_waitcnt vmcnt({vm.wait(('kv', steps[t + 1][0]))})")
                elif tok[0] == "Q":
                    if t + 1 < NT: a(qk(t + 1)[int(tok[1])])
                else: side(t, int(tok))
        X = O[3]
        a(f"""s_xor_b32 s35, s{sWAVE}, 4
        s_mulk_i32 s35, 12288
        {pv(NT - 1, 1)}""")
        stamp(6)
        a(f"""v_add_u32 v5, s35, v{GA}
        v_mov_b32 v6, {L_BAD}
        s_mov_b32 s36, {hex(f2u(2.0**40))}
        s_mov_b32 s37, {hex(f2u(2.0**-30))}
        s_waitcnt lgkmcnt(0)""")
        def padd(d, x, y):
            for i in range(4): a(f"v_pk_add_f32 v[{d+2*i}:{d+2*i+1}], v[{x+2*i}:{x+2*i+1}], v[{y+2*i}:{y+2*i+1}]")
        padd(PT[0], PT[0], PT[1]); padd(PT[2], PT[2], PT[3])
        a(f"ds_write_b128 v{CW}, v[{X+8}:{X+11}]\nds_write_b128 v{CW}, v[{X+12}:{X+15}] offset:1024")
        padd(PT[4], PT[4], PT[5]); padd(PT[0], PT[0], X); padd(PT[2], PT[2], PT[4]); padd(X, PT[0], PT[2])
        a(f"""v_maximum3_f32 v17, |v{X+8}|, |v{X+9}|, |v{X+10}|
        v_maximum3_f32 v16, |v{X}|, |v{X+1}|, |v{X+2}|
        v_cmp_nge_f32 s[44:45], s36, v{X+7}
        v_maximum3_f32 v17, |v{X+11}|, |v{X+12}|, v17
        v_maximum3_f32 v16, |v{X+3}|, |v{X+4}|, v16
        v_cmp_nle_f32 s[46:47], s37, v{X+7}
        v_maximum3_f32 v17, |v{X+13}|, |v{X+14}|, v17
        v_maximum3_f32 v16, |v{X+5}|, |v{X+6}|, v16
        s_or_b64 s[44:45], s[44:45], s[46:47]
        v_maximum3_f32 v16, v16, v17, v17
        v_cmp_nge_f32 vcc, {hex(f2u(2.0**120))}, v16
        s_or_b64 vcc, s[44:45], vcc
        s_cbranch_scc1 Lbad
        Lbadx:
        s_waitcnt vmcnt({vm.wait('f2c')}) lgkmcnt(0)
        s_barrier
        ds_read_b128 v[20:23], v5 offset:1024
        ds_read_b128 v[16:19], v5
        ds_read_b32 v26, v6
        s_waitcnt lgkmcnt(2)
        v_add_f32 v23, v23, v{X+7}
        v_rcp_f32 v24, v23
        v_pk_add_f32 v[20:21], v[20:21], v[{X+4}:{X+5}]
        v_add_f32 v22, v22, v{X+6}
        s_waitcnt lgkmcnt(0)
        v_readfirstlane_b32 s35, v26
        v_pk_add_f32 v[16:17], v[16:17], v[{X}:{X+1}]
        v_pk_add_f32 v[18:19], v[18:19], v[{X+2}:{X+3}]
        v_mul_f32 v22, v22, v24
        v_pk_mul_f32 v[16:17], v[16:17], v[24:25] op_sel_hi:[1,0]
        v_pk_mul_f32 v[18:19], v[18:19], v[24:25] op_sel_hi:[1,0]
        v_pk_mul_f32 v[20:21], v[20:21], v[24:25] op_sel_hi:[1,0]
        v_cvt_pk_bf16_f32 v31, v22, -v{ZR}
        v_cvt_pk_bf16_f32 v28, v16, v17
        v_cvt_pk_bf16_f32 v29, v18, v19
        v_cvt_pk_bf16_f32 v30, v20, v21
        s_cmp_gt_u32 s35, s{sRETRY}
        s_cbranch_scc1 Lfallback
        buffer_store_dwordx4 v[28:31], v{GA}, {WSR}, s{sOO} offen sc1""")
        self.ool.append(f"Lbad:\nds_write_b32 v6, v{IDX}\ns_branch Lbadx")
        stamp(7)
        self.flush_stamps(0, 8, False)

    def fallback(self):
        a = self.a; Q = self.Q[3]
        a(f"""Lfallback:
        s_mov_b32 s{sRETRY}, -1
        s_barrier
        s_lshl_b32 s35, s{sH}, 18
        s_add_u32 s35, s35, {WS_KV}
        s_mov_b32 s36, 64
        v_mov_b32 v3, 0xff800000
        Lfb1:
        buffer_load_dwordx4 v[80:83], v{GA}, {WSR}, s35 offen sc1
        buffer_load_dwordx4 v[84:87], v{GA}, {WSR}, s35 offen offset:1024 sc1
        s_waitcnt vmcnt(0)
        {MF} v[16:31], v[80:83], v[{Q}:{Q+3}], 0
        {MF} v[16:31], v[84:87], v[{Q+4}:{Q+7}], v[16:31]
        s_add_u32 s35, s35, 4096
        s_sub_u32 s36, s36, 1""")
        for p in range(8): a(f"v_max3_f32 v3, v{16+2*p}, v{17+2*p}, v3")
        a(f"""s_cmp_lg_u32 s36, 0
        s_cbranch_scc1 Lfb1
        v_mov_b32 v5, v3
        v_permlane32_swap_b32 v5, v3
        v_max_f32 v3, v3, v5
        v_sub_f32 v3, 0, v3
        v_and_b32 v5, 0xffff0000, v3
        v_sub_f32 v3, v3, v5
        v_and_b32 v6, 0xffff0000, v3
        v_sub_f32 v3, v3, v6
        v_lshrrev_b32 v5, 16, v5
        s_mov_b32 exec_lo, 0
        v_or_b32 v{Q+6}, v5, v6
        v_lshrrev_b32 v{Q+7}, 16, v3
        s_mov_b32 exec_lo, -1
        s_lshl_b32 s35, s{sRT}, 11
        v_add_u32 v3, s35, v{GA}
        ds_write_b128 v3, v[{Q}:{Q+3}] offset:{L_QX}
        ds_write_b128 v3, v[{Q+4}:{Q+7}] offset:{L_QX + 1024}""")
        self.q_addr()
        a("s_branch Lattn1")

    def build(self):
        import tail
        a = self.a; self.ool = []
        self.head(); self.loader(); self.compute(); self.attention()
        tail.emit(self)
        for x in self.ool: a(x)
        a("Lcoldcode:")
        self.fallback()
        a("Lexit:\ns_endpgm")
        rm = self.opt.get("rm", "").split(",")
        i0, i1, i2 = a.L.index("Lload:"), a.L.index("Lcomp:"), a.L.index("LcompQ:")
        kiss = []
        for i, l in enumerate(a.L):
            c = i1 < i < i2; ld = i0 < i < i1
            if ("dot" in rm and c and "v_dot2c" in l) or ("dots" in rm and c and "v_dot2c" in l and ", s" in l) or ("lx" in rm and ld and "ds_read_b128 v[1" in l) or ("lx" in rm and ld and "ds_read_b128 v[2" in l) \
               or ("lm" in rm and ld and "16x16x32" in l) or ("cm" in rm and c and "v_mfma" in l): continue
            kiss.append(l)
        a.L = kiss
        import layout
        hdr = open(f"cdna_kernels/{NAME}.s.ref").read().split("; Override launch")[0]
        hdr += "; @launch grid=(256,1,1) block=(512,1,1) lds=163840\n"
        hdr += '.amdgcn_target "amdgcn-amd-amdhsa--gfx950"\n.text\n'
        if not self.opt.get("nopage"): hdr += ".p2align 12\n.fill 832, 4, 0xbf800000\n"
        lines = layout.finish(a.L, self.opt)
        return hdr + "\n".join(lines) + '\n.section .rodata,"a"\n' + kdesc(NAME + "_kernel", 256)

if __name__ == "__main__":
    opt = {}
    out = f"cdna_kernels/{NAME}.s"
    for x in sys.argv[1:]:
        if x.startswith("out="): out = x[4:]
        elif "=" in x: k, v = x.split("="); opt[k] = v
        else: opt[x] = True
    import gen
    open(out, "w").write(gen.G(opt).build())
```

```python
import sys, math, struct
sys.path.insert(0, "old6")
from asmlib import *
import hazard

NAME = "sequential_preLN__mha_block__moe_arch_mod__prompt"
MF = "v_mfma_f32_32x32x16_bf16"
M16 = "v_mfma_f32_16x16x32_bf16"
SM = "v_smfmac_f32_32x32x32_bf16"
WS_SEL = 0x800; WS_SCORE = 0x1000; WS_XCC = 0x2000; WS_FLAG = 0x3000
WS_PART = 0x8000; WS_CAND = 0x40000; WS_STAT = 0x80000; WS_FLAG2 = 0xC0000
WS_KV = 0x100000; WS_O = 0x600000; WS_DBG = 0xC00000; WS_SIZE = 0x1000000
L_W = 65536
L_W2 = 98304
L_QX = 0
L_MISC = 155648
L_SCR = L_MISC
L_BAD = L_MISC + 1024
L_KEY = L_MISC + 1280
L_SEL = L_MISC + 1536
L_LOC = L_MISC + 1600
L_CNT = L_BAD + 4
L_ST = L_MISC + 2048
L_CS = L_MISC + 4608
L_XS = L_MISC + 2048
L_A = L_MISC + 4096
L_EX = 32768
L_WU = 32768
sOO, sF2, sF2C, sTCH, sLOC = 3, 4, 5, 6, 7
sX, sW, sWS, sW2, sOUT = 8, 12, 16, 20, 24
sWAVE, sRT, sGRP, sQB, sH, sTAG, sROT = 28, 29, 30, 31, 32, 33, 34
sKVS, sKVL, sXCC, sFLG, sFLS, sEARLY = 39, 40, 50, 38, 61, 62
sJ, sXCD, sRB, sCG, sF, sRETRY, sONES, sSPIN = 51, 52, 53, 54, 55, 56, 57, 58
sK1, sK2, sW2X, sW2M, sG = 59, 60, 61, 62, 63
pX, pW, pWO, pWR, pWG, pWU, pWD, pOUT, pWS = 64, 66, 68, 72, 74, 76, 78, 80, 84
sW2L, sW2G, sW2Ls, sW2Gs = 70, 71, 82, 83
GA = 7
W2A, CW, TCH, F2A, F2V, TC2, ZR = 112, 113, 114, 115, 116, 117, 120
TA, EW, ER, STS, STL, KW, ROW, CA, KR = 96, 104, 105, 106, 107, 108, 109, 110, 111
sOA, sOB, sTS, sSTA, sCND, sSGN, sKM = 6, 34, 48, 49, 50, 82, 83
OA, XA, PF = 124, 127, 80
SPIN = 50000
EPS = 0x3727C5AC
WSR = f"s[{sWS}:{sWS+3}]"
def f2u(x): return struct.unpack("<I", struct.pack("<f", x))[0]

class Vm:
    def __init__(self): self.q = []
    def add(self, tag, n=1): self.q += [tag] * n
    def wait(self, tag):
        idx = max(i for i, t in enumerate(self.q) if t == tag)
        n = len(self.q) - 1 - idx
        self.q = self.q[idx + 1:]
        return n

class G:
    def __init__(self, opt):
        self.opt = opt; self.a = Asm(); self.stamps = opt.get("stamps", False); self.n = 0
    def lab(self, p):
        self.n += 1
        return f"L{p}_{self.n}"
    def stamp(self, k, att=False):
        mode = "a" if self.opt.get("astamps") else "c" if self.opt.get("cstamps") else "s" if self.opt.get("sstamps") else "e" if self.opt.get("estamps") else False
        if att is True: att = "a"
        if 0 < k < 8 and att != mode: return
        if self.stamps: self.a(f"{'s_memtime' if self.opt.get('cyc') else 's_memrealtime'} s[{86+2*(k%8)}:{87+2*(k%8)}]")
    def flush_stamps(self, base, n, final=True):
        a = self.a
        if not self.stamps: return
        a("s_waitcnt lgkmcnt(0)")
        for k in range(base, base + n): a(f"v_writelane_b32 v125, s{86+2*(k%8)}, {k}")
        if not final: return
        if self.opt.get("probe"):
            k, wv, wg = [int(x) for x in self.opt["probe"].split(",")]
            l1, l2 = self.lab("pr"), self.lab("prx")
            a(f"""s_cmp_eq_u32 s2, {wg}
            s_cbranch_scc0 {l2}
            s_cmp_eq_u32 s{sWAVE}, {wv}
            s_cbranch_scc0 {l2}
            s_nop 4
            v_readlane_b32 s35, v125, 0
            v_readlane_b32 s36, v125, {k}
            s_sub_u32 s36, s36, s35
            s_min_u32 s36, s36, 6000
            s_lshl_b32 s36, s36, 2
            s_add_u32 s36, s36, {self.opt.get("pspan", 4000)}
            {l1}:
            s_memrealtime s[86:87]
            s_waitcnt lgkmcnt(0)
            s_sub_u32 s37, s86, s35
            s_cmp_lt_u32 s37, s36
            s_cbranch_scc1 {l1}
            {l2}:""")
            return
        a(f"s_lshl_b32 s35, s2, 3\ns_add_u32 s35, s35, s{sWAVE}\ns_lshl_b32 s35, s35, 7\ns_add_u32 s35, s35, {WS_DBG + 0x300000}")
        a(f"v_lshlrev_b32 v126, 2, v2\ns_mov_b32 exec_hi, 0\nbuffer_store_dword v125, v126, {WSR}, s35 offen {self.opt.get('ds', '')}")
    def spin_guard(self, out):
        self.a(f"s_sub_u32 s{sSPIN}, s{sSPIN}, 1\ns_bitcmp1_b32 s{sSPIN}, 31\ns_cbranch_scc1 {out}")
    def rbf(self, dst, src):
        self.a(f"v_cvt_pk_bf16_f32 v{dst}, v{src}, v{src}\nv_lshlrev_b32 v{dst}, 16, v{dst}")
    def ln_stats(self, s1, s2, nmb, rstd, t):
        a = self.a
        a(f"""v_mul_f32 v{s1}, {hex(f2u(1/448))}, v{s1}
        v_mul_f32 v{s2}, {hex(f2u(1/448))}, v{s2}
        v_fma_f32 v{s2}, -v{s1}, v{s1}, v{s2}
        v_max_f32 v{s2}, 0, v{s2}
        v_cvt_pk_bf16_f32 v{t}, v{s2}, -v{s1}
        v_lshlrev_b32 v{s2}, 16, v{t}
        v_add_f32 v{s2}, {hex(EPS)}, v{s2}""")
        self.rbf(s2, s2)
        a(f"v_sqrt_f32 v{s2}, v{s2}\nv_and_b32 v{nmb}, 0xffff0000, v{t}")
        self.rbf(s2, s2)
        a(f"v_rcp_f32 v{rstd}, v{s2}")
    def allred32(self, pairs):
        a = self.a
        for r, t in pairs: a(f"v_mov_b32 v{t}, v{r}")
        for r, t in pairs: a(f"v_permlane32_swap_b32 v{t}, v{r}")
        for r, t in pairs: a(f"v_add_f32 v{r}, v{t}, v{r}")
    def dual(self, lines, cond=sLOC):
        a = self.a
        if self.opt.get("force") == "global":
            for l in lines: a(l.replace("@", "sc1").replace("#", "128"))
            return
        l1, l2 = self.lab("glob"), self.lab("join")
        a(f"s_cmp_eq_u32 s{cond}, 0\ns_cbranch_scc1 {l1}")
        for l in lines: a(l.replace("@", self.opt.get("lst", "").replace("_", " ")).replace("#", "0"))
        a(f"{l2}:")
        self.ool.append(f"{l1}:\n" + "\n".join(l.replace("@", "sc1").replace("#", "128") for l in lines) + f"\ns_branch {l2}")
    def xcc_load(self, d, t):
        self.a(f"""v_and_b32 v{t}, 31, v2
        v_lshlrev_b32 v{t}, 3, v{t}
        s_lshl_b32 s35, s{sXCD}, 8
        s_add_u32 s35, s35, {WS_XCC}
        buffer_load_dwordx2 v[{d}:{d+1}], v{t}, {WSR}, s35 offen sc1""")
    def xcc_eval(self, d):
        self.a(f"""v_cmp_ne_u32 vcc, s{sTAG}, v{d}
        v_cmp_ne_u32 s[36:37], s{sXCC}, v{d+1}
        s_or_b64 vcc, vcc, s[36:37]
        s_cselect_b32 s{sLOC}, 0, 1""")
    def tr_addr(self, d):
        self.a(f"""v_lshrrev_b32 v4, 5, v2
        v_bfe_u32 v5, v2, 2, 2
        v_lshl_add_u32 v6, v4, 3, v5
        v_bfe_u32 v{d}, v2, 4, 1
        v_and_b32 v25, 3, v2
        v_lshl_add_u32 v{d}, v{d}, 2, v25
        v_add_u32 v25, 2, v{d}
        v_lshrrev_b32 v25, 3, v25
        v_xor_b32 v{d}, v{d}, v25
        v_lshlrev_b32 v25, 3, v{d}
        v_lshl_add_u32 v{d}, v6, 7, v25
        v_lshrrev_b32 v5, 1, v5
        v_lshl_add_u32 v{d}, v5, 6, v{d}""")
    def x_addr(self, XR):
        self.a(f"""v_and_b32 v3, 31, v2
        v_lshrrev_b32 v4, 5, v2
        v_bfe_u32 v5, v2, 1, 3
        v_xor_b32 v5, v5, v4
        v_lshlrev_b32 v5, 4, v5
        v_lshl_add_u32 v5, v3, 7, v5
        v_add_u32 v{XR}, s43, v5
        v_xor_b32 v{XR+1}, 32, v{XR}
        v_xor_b32 v{XR+2}, 64, v{XR}
        v_xor_b32 v{XR+3}, 96, v{XR}
        v_lshlrev_b32 v119, 4, v4
        v_lshl_add_u32 v119, v3, 5, v119
        v_add_u32 v119, {L_CS}, v119""")
    def scale_pack(self, c, mul, mul_vec, out, pk=True):
        a = self.a
        if not pk:
            for p in range(8):
                for e in (2*p, 2*p + 1): a(f"v_mul_f32 v{c+e}, v{c+e}, v{mul + e if mul_vec else mul}")
                a(f"v_cvt_pk_bf16_f32 v{out+p}, v{c+2*p}, v{c+2*p+1}")
            return
        for p in range(8):
            if mul_vec: a(f"v_pk_mul_f32 v[{c+2*p}:{c+2*p+1}], v[{c+2*p}:{c+2*p+1}], v[{mul+2*p}:{mul+2*p+1}]")
            else: a(f"v_pk_mul_f32 v[{c+2*p}:{c+2*p+1}], v[{c+2*p}:{c+2*p+1}], v[{mul}:{mul+1}] op_sel_hi:[1,0]")
        for p in range(8): a(f"v_cvt_pk_bf16_f32 v{out+p}, v{c+2*p}, v{c+2*p+1}")
    def roles(self, grp, t=3):
        a = self.a
        a(f"""s_mul_i32 s35, s{sJ}, 37
        s_lshr_b32 s35, s35, 8
        s_mul_i32 s36, s35, 7
        s_sub_u32 s{sCG}, s{sJ}, s36
        s_lshl_b32 s36, s{sXCD}, 2
        s_add_u32 s{sF}, s36, s{sCG}
        s_min_u32 s35, s35, 3
        s_add_u32 s{sRB}, s36, s35
        s_lshl_b32 s35, s{sH}, 3
        s_add_u32 s35, s35, s{sRT}
        s_lshl_b32 s36, s35, 12
        s_add_u32 s{sKVS}, s36, {WS_KV + grp*4*4096}
        s_lshl_b32 s35, s{sH}, 6
        s_add_u32 s35, s35, s{sRT}
        s_lshl_b32 s36, s{sQB}, 2
        s_add_u32 s35, s35, s36
        s_lshl_b32 s36, s35, 11
        s_add_u32 s{sOO}, s36, {WS_O + grp*1024}
        s_lshl_b32 s36, s35, 8
        s_add_u32 s{sF2}, s36, {WS_FLAG2 + grp*128}
        s_lshl_b32 s36, s{sRB}, 1
        s_lshr_b32 s35, s{sRT}, 1
        s_add_u32 s35, s35, s36
        s_lshl_b32 s35, s35, 8
        s_add_u32 s{sF2C}, s35, {WS_FLAG2 + grp*8*64*256}
        v_bfe_u32 v1, v2, 1, 3
        v_and_b32 v{t}, 1, v2
        v_lshlrev_b32 v1, 14, v1
        v_lshl_add_u32 v{F2A}, v{t}, 7, v1
        s_mul_i32 s35, s{sWAVE}, 12288
        v_add_u32 v{CW}, s35, v{GA}
        v_mov_b32 v{ZR}, 0
        v_mov_b32 v{ZR+1}, 0
        v_mov_b32 v{ZR+2}, 0
        v_mov_b32 v{ZR+3}, 0
        s_lshl_b32 s35, s{sXCD}, 2
        s_add_u32 s35, s35, s{sRT}
        s_lshl_b32 s35, s35, 8
        s_add_u32 s{sFLG}, s35, {WS_FLAG}
        s_mul_i32 s35, s{sQB}, 43
        s_lshr_b32 s35, s35, 8
        s_mul_i32 s35, s35, 6
        s_sub_u32 s{sKVL}, s{sQB}, s35
        s_lshl_b32 s35, s{sRB}, 2
        s_add_u32 s35, s35, s{sRT}
        s_lshl_b32 s36, s35, 4
        s_add_u32 s36, s36, {8*grp}
        v_lshrrev_b32 v1, 3, v2
        v_mul_u32_u24 v{W2A}, 896, v1
        s_mulk_i32 s36, 896
        v_and_b32 v{t}, 0x70, v{GA}
        v_add3_u32 v{XA}, v{W2A}, v{t}, s36
        s_and_b32 s36, s{sRT}, 1
        s_lshl_b32 s37, s36, 6
        v_xor_b32 v{t}, s37, v{t}
        v_and_b32 v1, 16, v2
        v_lshlrev_b32 v1, 1, v1
        v_xor_b32 v{t}, v1, v{t}
        v_add_u32 v{W2A}, v{W2A}, v{t}
        s_lshl_b32 s36, s36, 8
        v_and_b32 v1, 0xf0, v{GA}
        v_and_b32 v{t}, 0x300, v{GA}
        v_lshl_add_u32 v1, v{t}, 1, v1
        v_add_u32 v{OA}, s36, v1
        s_lshl_b32 s{sW2G}, s{sCG}, 7
        s_mul_i32 s36, s{sWAVE}, {7*896}
        s_mul_i32 s{sW2L}, s{sWAVE}, 896""")
        srd(a, sW2, pWO, 401408)
        a(f"""s_lshl_b32 s37, s{sJ}, 3
        s_add_u32 s37, s37, s{sWAVE}
        s_mulk_i32 s37, {13*128}
        v_min_u32 v1, 12, v2
        v_lshl_add_u32 v{TC2}, v1, 7, s37""")
        if grp == 0:
            a(f"""s_lshl_b32 s35, s35, 11
            s_add_u32 s35, s35, s{sW2G}
            s_add_u32 s35, s35, {WS_STAT}
            s_lshl_b32 s37, s2, 2
            s_add_u32 s37, s37, s{sRT}
            s_lshl_b32 s37, s37, 9
            v_and_b32 v1, 3, v2
            v_lshl_add_u32 v{TCH}, v1, 7, s37
            v_and_b32 v1, 1, v2
            v_lshl_add_u32 v1, v1, 10, s35
            s_mov_b32 exec_lo, 0
            v_mov_b32 v{TCH}, v1
            s_mov_b32 exec_hi, 0xffff
            v_or_b32 v{TCH}, 0x380, v1
            s_mov_b64 exec, -1
            s_add_u32 s{sW2G}, s{sW2G}, s36""")
            srd(a, sOUT, pWS, WS_SIZE)
            return
        a(f"""s_add_u32 s{sW2G}, s{sW2G}, s36
        s_lshr_b32 s35, s{sJ}, 3
        s_lshl_b32 s36, s{sXCD}, 2
        s_add_u32 s35, s35, s36
        s_min_u32 s35, s35, 27
        s_cmp_eq_u32 s{sRT}, 1
        s_cselect_b64 s[{sOUT}:{sOUT+1}], s[{pWG}:{pWG+1}], s[{pWU}:{pWU+1}]
        s_add_u32 s36, s{sRT}, 1
        s_bitcmp0_b32 s36, 1
        s_cselect_b64 s[{sOUT}:{sOUT+1}], s[{pWD}:{pWD+1}], s[{sOUT}:{sOUT+1}]
        s_mov_b32 s{sOUT+2}, 1605632
        s_mov_b32 s{sOUT+3}, 0x00020000
        s_movk_i32 s36, 128
        s_cselect_b32 s37, s36, 3584
        s_cselect_b32 s36, 57344, s36
        s_mul_i32 s36, s35, s36
        s_and_b32 s35, s{sJ}, 7
        s_mul_i32 s35, s35, 56
        s_mul_i32 s35, s35, s37
        s_add_u32 s36, s36, s35
        v_min_u32 v1, 55, v2
        v_mul_u32_u24 v1, s37, v1
        v_add_u32 v{TCH}, s36, v1""")

    def head(self):
        a = self.a; opt = self.opt
        ra, rb_, rc = [int(x) for x in opt.get("rot", "1,0,1").split(",")]
        EMU = ""
        WRT = ""
        if opt.get("st"):
            step = int(opt["st"])
            WRT = f"""s_lshl_b32 s36, s{sXCD}, 19
            s_bfe_u32 s37, s{sJ}, 0x20003
            s_lshl_b32 s37, s37, 17
            s_add_u32 s36, s36, s37
            s_and_b32 s37, s{sJ}, 7
            s_lshl_b32 s37, s37, 2
            s_add_u32 s37, s37, s{sRT}
            s_lshl_b32 s37, s37, 10
            s_add_u32 s36, s36, s37
            s_add_u32 s36, s36, {WS_KV}
            s_lshl_b32 s37, s{sXCD}, 2
            s_add_u32 s37, s37, s{sRT}
            s_lshl_b32 s37, s37, 8
            s_lshl_b32 s38, s{sRT}, 6
            s_lshl_b32 s39, s{sXCD}, 8
            s_add_u32 s38, s38, s39
            s_and_b32 s39, s{sJ}, 3
            s_lshl_b32 s39, s39, 6
            s_add_u32 s37, s37, s39
            s_add_u32 s37, s37, {WS_FLAG}
            s_add_u32 s38, s38, {WS_XCC}
            s_waitcnt lgkmcnt(0)
            s_load_dword s{sTAG}, s[{pWS}:{pWS+1}], 0
            s_add_u32 s40, s{pWS}, s36
            s_addc_u32 s41, s{pWS+1}, 0
            s_load_dword s42, s[{pWS}:{pWS+1}], s37
            s_load_dword s42, s[{pWS}:{pWS+1}], s38
            """ + "\n".join(f"s_load_dword s42, s[40:41], {k}" for k in range(0, 1024 if step != 1024 else 0, step))
        if opt.get("emu"):
            nq = int(opt["emu"]); lq = nq.bit_length() - 1; gx = 16 // nq; lg = gx.bit_length() - 1
            EMU = f"""s_and_b32 s36, s{sXCD}, {gx - 1}
            s_lshl_b32 s36, s36, {lq}
            s_and_b32 s{sQB}, s{sJ}, {nq - 1}
            s_add_u32 s{sQB}, s{sQB}, s36
            s_lshr_b32 s36, s{sXCD}, {lg}
            s_lshr_b32 s35, s{sJ}, {lq}
            s_mul_i32 s{sH}, s36, {32 // nq}
            s_add_u32 s{sH}, s{sH}, s35
            s_lshr_b32 s{sG}, s{sH}, 1
            s_and_b32 s36, s{sH}, 1
            s_lshl_b32 s36, s36, 3
            s_add_u32 s{sG}, s{sG}, s36"""
        a(khead(NAME + "_kernel"))
        a("s_cmp_ge_u32 s2, 256\ns_cbranch_scc1 Lexit")
        self.stamp(0)
        a(f"""s_load_dwordx16 s[64:79], s[0:1], 0
        s_load_dwordx2 s[80:81], s[0:1], 64
        s_load_dwordx2 s[84:85], s[0:1], 80
        v_lshrrev_b32 v1, 6, v0
        v_and_b32 v2, 63, v0
        v_readfirstlane_b32 s{sWAVE}, v1
        s_and_b32 s{sXCD}, s2, 7
        s_lshr_b32 s{sJ}, s2, 3
        s_and_b32 s{sQB}, s{sJ}, 15
        s_lshr_b32 s35, s{sJ}, 4
        s_lshl_b32 s36, s{sXCD}, 1
        s_add_u32 s{sH}, s36, s35
        s_lshl_b32 s36, s35, 3
        s_add_u32 s{sG}, s36, s{sXCD}
        {EMU}
        s_and_b32 s{sRT}, s{sWAVE}, 3
        s_lshr_b32 s{sGRP}, s{sWAVE}, 2
        s_cmp_eq_u32 s{sGRP}, 0
        s_cbranch_scc1 Lload
        {WRT}
        @TOUR
        s_branch Lcomp
        Lload:
        s_mul_i32 s36, s{sXCD}, {ra}
        s_mul_i32 s35, s35, {rb_}
        s_add_u32 s36, s36, s35
        s_mul_i32 s35, s{sQB}, {rc}
        s_add_u32 s36, s36, s35
        s_mul_i32 s37, s36, 37
        s_lshr_b32 s37, s37, 8
        s_mul_i32 s37, s37, 7
        s_sub_u32 s{sROT}, s36, s37""")
    def consts(self):
        self.a(f"""s_mov_b32 s{sSPIN}, {self.opt.get("spin", SPIN)}
        s_mov_b32 s{sRETRY}, {-1 if self.opt.get('linst') else 0}
        s_mov_b32 s{sONES}, 0x3f803f80
        v_lshlrev_b32 v{GA}, 4, v2""")
        if self.stamps: self.a("v_mov_b32 v125, 0")
    def epoch_to_tag(self):
        self.a(f"s_mul_i32 s{sTAG}, s{sTAG}, 0x9e3779b1\ns_add_u32 s{sTAG}, s{sTAG}, 0x7f4a7c15")

    def loader(self):
        a = self.a; stamp = self.stamp
        XA, WA, QA = 8, 12, 14
        a(f"""v_lshrrev_b32 v3, 3, v2
        v_and_b32 v4, 7, v2
        v_lshrrev_b32 v5, 4, v2
        v_xor_b32 v6, v4, v5
        v_mul_u32_u24 v15, 896, v3
        v_lshl_add_u32 v{XA}, v6, 4, v15
        v_xor_b32 v6, 4, v6
        v_lshl_add_u32 v{XA+1}, v6, 4, v15
        v_add_u32 v{XA+2}, {2*6144}, v{XA}
        v_add_u32 v{XA+3}, {3*6144}, v{XA+1}
        v_add_u32 v{XA+1}, {6144}, v{XA+1}
        v_and_b32 v4, 3, v2
        v_lshlrev_b32 v4, 4, v4
        v_min_u32 v4, 40, v4
        v_lshrrev_b32 v6, 2, v2
        v_mul_u32_u24 v15, 2688, v6
        v_add_u32 v{QA}, v15, v4
        v_xor_b32 v6, v6, v5
        v_and_b32 v6, 1, v6
        v_mul_u32_u24 v6, 56, v6
        v_mul_u32_u24 v15, 2688, v3
        v_add3_u32 v{WA}, v15, v6, v4
        v_add_u32 v{WA+1}, {8*2688-1024}, v{WA}
        s_mul_i32 s48, s{sQB}, 114688
        s_mul_i32 s35, s{sRT}, 28672
        s_add_u32 s48, s48, s35
        s_mul_i32 s41, s{sRT}, {16*2688}
        s_mul_i32 s42, s{sH}, 56
        s_add_u32 s42, s42, s41
        s_mul_i32 s35, s{sG}, 112
        s_add_u32 s41, s41, s35
        s_add_u32 s41, s41, 896
        s_lshl_b32 s43, s{sRT}, 12
        s_lshl_b32 s44, s{sRT}, 11
        s_lshl_b32 s45, s{sRT}, 10
        s_mov_b32 s46, s{sROT}
        s_mov_b32 s{sX+2}, 1835008
        s_mov_b32 s{sX+3}, 0x00020000
        s_mov_b32 s{sW+2}, 1204224
        s_mov_b32 s{sW+3}, 0x00020000""")
        def touch_addr():
            FX = ""
            if "f" in self.opt.get("lt", ""):
                FX = f"""s_and_b32 s35, s{sJ}, 3
                s_lshl_b32 s35, s35, 6
                s_add_u32 s36, s35, s47
                s_add_u32 s35, s35, s49
                s_load_dword s61, s[{pWS}:{pWS+1}], s35
                s_load_dword s61, s[{pWS}:{pWS+1}], s36"""
            a(f"""s_lshl_b32 s35, s{sXCD}, 16
            s_lshr_b32 s36, s{sJ}, 4
            s_lshl_b32 s36, s36, 19
            s_add_u32 s35, s35, s36
            s_lshl_b32 s36, s{sQB}, 12
            s_add_u32 s35, s35, s36
            s_add_u32 s35, s35, s45
            s_add_u32 s35, s35, {WS_KV}
            v_and_b32 v28, 7, v2
            v_lshl_add_u32 v29, v28, 7, s35
            {f"s_load_dword s61, s[{pWS}:{pWS+1}], s35" if "k" in self.opt.get("lt", "") else ""}
            s_lshl_b32 s35, s{sXCD}, 2
            s_add_u32 s35, s35, s{sRT}
            s_lshl_b32 s35, s35, 8
            s_add_u32 s49, s35, {WS_FLAG}
            s_lshl_b32 s36, s{sXCD}, 8
            s_add_u32 s47, s36, {WS_XCC}
            {FX}
            v_and_b32 v28, 1, v2
            s_mov_b32 exec_lo, 0
            v_lshl_add_u32 v29, v28, 7, s49
            s_mov_b32 exec_hi, 0xffff
            v_lshl_add_u32 v29, v28, 7, s47
            s_mov_b64 exec, -1""")
        PRE = self.opt.get("pre", "late"); self.opt.setdefault("tl", "4")
        if PRE == "first": touch_addr()
        a(f"s_mov_b32 s{sWS+2}, {WS_SIZE}\ns_mov_b32 s{sWS+3}, 0x00020000")
        stamp(1, "s")
        a(f"s_waitcnt lgkmcnt(0)\ns_mov_b64 s[{sX}:{sX+1}], s[{pX}:{pX+1}]\ns_mov_b64 s[{sW}:{sW+1}], s[{pW}:{pW+1}]\ns_mov_b64 s[{sWS}:{sWS+1}], s[{pWS}:{pWS+1}]")
        stamp(2, "s")
        vm = Vm()
        def touch():
            if not self.opt.get("nokvt") and int(self.opt.get("st", 9999)) > 1024: a(f"buffer_load_dword v118, v29, {WSR}, 0 offen sc1"); vm.add("pre")
        def adv(r): a(f"s_add_u32 s{r}, s{r}, 1\ns_cmp_eq_u32 s{r}, 7\ns_cselect_b32 s{r}, 0, s{r}")
        def issue_chunk(i):
            a(f"""s_mul_i32 s35, s46, {64*2688}
            s_add_u32 s35, s35, s41
            s_add_u32 m0, s44, {L_W + (i % 4) * 8192}
            s_lshl_b32 s36, s46, 7
            buffer_load_dwordx4 v{WA}, s[{sW}:{sW+3}], s35 offen lds
            buffer_load_dwordx4 v{WA+1}, s[{sW}:{sW+3}], s35 offen offset:1024 lds
            s_add_u32 m0, s43, {(i % 4) * 16384}
            s_add_u32 s36, s36, s48""")
            for n in range(4): a(f"buffer_load_dwordx4 v{XA+n}, s[{sX}:{sX+3}], s36 offen offset:{n*1024} lds")
            if i < 6: adv(46)
            vm.add(("c", i), 6)
        def issue_q(i):
            a(f"""s_mul_i32 s35, s{sROT}, {64*2688}
            s_add_u32 m0, s45, {L_W2 + i * 4096}
            s_add_u32 s35, s35, s42
            buffer_load_dwordx4 v{QA}, s[{sW}:{sW+3}], s35 offen lds""")
            if i < 6: adv(sROT)
            vm.add(("q", i))
        LA = 2
        XF, QW, QC = 128, 80, 64
        def qchunks(i0, i1, hook=lambda n: None):
            steps = [(i, j) for i in range(i0, i1) for j in range(4)]
            def rd(n):
                i, j = steps[n]; w = (80, 84, 88, 92, 240, 244, 248, 252)[n % 8]
                for s in range(2): a(f"ds_read_b64_tr_b16 v[{w+2*s}:{w+2*s+1}], v26 offset:{i*4096 + j*1024 + s*256}")
            AH = 6
            for n in range(min(AH, len(steps))): rd(n)
            for n, (i, j) in enumerate(steps):
                left = min(AH - 1, len(steps) - 1 - n)
                a(f"s_waitcnt lgkmcnt({2*left})")
                w = (80, 84, 88, 92, 240, 244, 248, 252)[n % 8]; x = XF + 16*i + 4*j
                a(f"{MF} v[{QC}:{QC+15}], v[{w}:{w+3}], v[{x}:{x+3}], {'0' if i + j == 0 else f'v[{QC}:{QC+15}]'}")
                if n + AH < len(steps): rd(n + AH)
                hook(n)
        def arrive(k): a(f"s_mov_b64 exec, 1\nds_add_u32 v21, v20 offset:{4*k}\ns_mov_b64 exec, -1")
        def await_(k, n):
            l = self.lab("cnt")
            a(f"{l}:\nds_read_b32 v19, v21 offset:{4*k}\ns_waitcnt lgkmcnt(0)\nv_cmp_gt_u32 vcc, {n}, v19\ns_cbranch_vccnz {l}")
        a(f"s_load_dword s{sTAG}, s[{pWS}:{pWS+1}], 0")
        ORD = self.opt.get("ord", "0|1q")
        def run(seq):
            for ch in seq:
                if ch == "t": touch()
                elif ch == "q": issue_q(0)
                else: issue_chunk(int(ch))
        run(ORD.split("|")[0])
        stamp(3, "s")
        self.consts()
        if PRE != "first": touch_addr()
        a(f"""s_getreg_b32 s{sXCC}, hwreg(HW_REG_XCC_ID, 0, 4)
        v_mov_b32 v20, 0
        v_lshlrev_b32 v23, 2, v2
        v_add_u32 v21, {L_BAD}, v23
        ds_write_b32 v21, v20
        v_mov_b32 v21, {L_CNT}
        v_mov_b32 v20, 1""")
        self.x_addr(60)
        self.tr_addr(24)
        a(f"""s_add_u32 s36, s44, {L_W}
        v_add_u32 v24, s36, v24
        v_xor_b32 v31, 64, v24
        v_and_b32 v22, 15, v2
        v_lshl_add_u32 v22, v4, 4, v22
        s_lshl_b32 s35, s{sRT}, 3
        s_add_u32 s35, s35, {L_CS}
        v_lshl_add_u32 v22, v22, 5, s35
        v_lshl_add_u32 v26, v6, 6, v25
        v_add_u32 v26, {L_W2}, v26
        v_add_u32 v30, s45, v26
        v_and_b32 v27, 31, v2
        v_lshlrev_b32 v27, 3, v27
        s_lshl_b32 s35, s{sRT}, 2
        s_add_u32 s35, s35, {L_LOC}
        v_mov_b32 v18, s35
        v_mov_b32 v52, 0
        s_mov_b32 exec_lo, 0xff0000ff
        s_mov_b32 exec_hi, 0xff0000ff
        v_mov_b32 v52, s{sONES}
        s_mov_b64 exec, -1
        v_mov_b32 v53, v52
        v_mov_b32 v54, v52
        v_mov_b32 v55, v52""")
        self.roles(0)
        self.tail_addr(0, "v")
        stamp(4, "s")
        run(ORD.split("|")[1])
        for i in range(7):
            if i == 0: stamp(5, "s")
            a(f"s_waitcnt vmcnt({vm.wait(('c', i))}) lgkmcnt(0)")
            if i == 0: stamp(6, "s")
            a("s_barrier")
            if i == 0: stamp(1); stamp(7, "s")
            stamp(i + 1, "c")
            if i == 6: stamp(1, "e")
            for k in range(4): a(f"ds_read_b64_tr_b16 v[{32+2*k}:{33+2*k}], v{(24, 31)[k>>1]} offset:{(i%4)*8192 + (k&1)*512}")
            if i == 0:
                self.epoch_to_tag()
                a(f"""s_lshl_b32 s35, s{sJ}, 3
                s_add_u32 s35, s35, s47
                v_mov_b32 v16, s{sTAG}
                v_mov_b32 v17, s{sXCC}
                s_mov_b64 exec, 1
                buffer_store_dwordx2 v[16:17], v{ZR}, {WSR}, s35 offen
                s_mov_b64 exec, -1""")
                vm.add("xs")
            xr = [f"ds_read_b128 v[{XF+16*i+4*j}:{XF+16*i+4*j+3}], v{60+j} offset:{(i%4)*16384}" for j in range(4)]
            if i < 6: a("\n".join(xr))
            if 2 <= i < 6:
                for s_ in range(2): a(f"ds_read_b64_tr_b16 v[{QW+2*s_}:{QW+2*s_+1}], v26 offset:{(i-2)*1024 + s_*256}")
            XP_ = self.opt.get("xp", "early")
            if i == 3 and XP_ != "late": a(f"buffer_load_dwordx2 v[46:47], v27, {WSR}, s47 offen sc1"); vm.add("xcc")
            if i + LA <= 6: issue_chunk(i + LA)
            if str(i) == self.opt.get("tl"): touch()
            if i == 4 and XP_ == "late": a(f"buffer_load_dwordx2 v[46:47], v27, {WSR}, s47 offen sc1"); vm.add("xcc")
            QE = self.opt.get("qe", "7")
            if i == 5:
                for k in range(1, 7 if QE == "5" else 4): issue_q(k)
                if self.opt.get("tl") == "q": touch()
            if i == 6 and QE == "6":
                for k in range(4, 7): issue_q(k)
            if i == (6 if XP_ == "late" else 5):
                if "xcc" in vm.q: a(f"s_waitcnt vmcnt({vm.wait('xcc')})")
                self.xcc_eval(46)
                a(f"v_mov_b32 v19, s{sLOC}\nds_write_b32 v18, v19")
            a("s_waitcnt lgkmcnt(0)")
            for k in range(2): a(f"{M16} v[{48+8*k}:{51+8*k}], v[52:55], v[{32+4*k}:{35+4*k}], {'0' if i == 0 else f'v[{48+8*k}:{51+8*k}]'}")
            if i == 6: a("\n".join(xr))
            if 2 <= i < 6: a(f"{MF} v[{QC}:{QC+15}], v[{QW}:{QW+3}], v[{XF+4*(i-2)}:{XF+4*(i-2)+3}], {'0' if i == 2 else f'v[{QC}:{QC+15}]'}")
        def cs_pub(regs):
            for r, _ in regs: a(f"v_and_b32 v{r+1}, 0xffff0000, v{r}")
            for r, _ in regs: a(f"v_sub_f32 v{r+1}, v{r}, v{r+1}")
            for r, _ in regs: a(f"v_and_b32 v{r+2}, 0xffff0000, v{r+1}\nv_perm_b32 v{r}, v{r+1}, v{r}, s37")
            for r, _ in regs: a(f"v_sub_f32 v{r+1}, v{r+1}, v{r+2}")
            for r, k in regs: a(f"v_lshrrev_b32 v{r+1}, 16, v{r+1}\nds_write_b64 v22, v[{r}:{r+1}] offset:{1024*k}")
        a("s_mov_b32 s37, 0x07060302")
        cs_pub([(48, 0), (56, 1)])
        stamp(2, "e")
        a("s_waitcnt lgkmcnt(0)\ns_barrier")
        stamp(3, "e")
        stamp(2)
        if QE == "7":
            for k in range(4, 7): issue_q(k)
        def cs_q(i0, i1):
            for i in range(i0, i1):
                for s_ in range(2): a(f"ds_read_b64_tr_b16 v[{32+4*(i-i0)+2*s_}:{33+4*(i-i0)+2*s_}], v30 offset:{i*4096 + s_*256}")
            a("s_waitcnt lgkmcnt(0)")
            for k in range(i1 - i0): a(f"{M16} v[48:51], v[52:55], v[{32+4*k}:{35+4*k}], {'0' if i0 + k == 0 else 'v[48:51]'}")
        QS = int(self.opt.get("qs", 4))
        a(f"s_waitcnt vmcnt({vm.wait(('q', QS - 1))})")
        stamp(4, "e")
        arrive(0)
        a(f"""v_add_u32 v3, s44, v{GA}
        s_lshl_b32 s35, s{sRT}, 9
        s_add_u32 s35, s35, {L_ST}
        v_lshl_add_u32 v5, v2, 3, s35""")
        self.tail_addr(0, "s")
        a("s_mov_b32 s37, 0x07060302")
        await_(0, 4)
        stamp(5, "e")
        qchunks(1, QS)
        a("s_waitcnt vmcnt(0)")
        arrive(1)
        cs_q(0, 4)
        if QS > 4: cs_q(4, QS)
        await_(1, 4)
        stamp(3); stamp(6, "e")
        cs_q(QS, 7)
        nn = 4 * (7 - QS)
        def h(n):
            if n == max(nn - 6, 1): cs_pub([(48, 2)])
            if n == max(nn - 4, 2): arrive(2)
        qchunks(QS, 7, h)
        await_(2, 8)
        stamp(7, "e")
        a(f"""ds_read_b64 v[40:41], v5
        ds_read_b128 v[36:39], v119 offset:2048
        s_waitcnt lgkmcnt(1)
        v_mul_f32 v44, {hex(f2u(math.log2(math.e) / math.sqrt(28)))}, v41
        v_mov_b32 v41, v40
        v_mov_b32 v42, v40
        v_mov_b32 v43, v40
        s_waitcnt lgkmcnt(0)
        {MF} v[{QC}:{QC+15}], v[36:39], v[40:43], v[{QC}:{QC+15}]""")
        self.q_addr()
        self.scale_pack(QC, 44, False, 8)
        a(f"""s_mov_b32 exec_lo, 0
        v_mov_b32 v14, 0
        v_mov_b32 v15, 0
        s_mov_b32 exec_lo, -1
        ds_write_b128 v3, v[8:11]
        ds_write_b128 v3, v[12:15] offset:1024""")
        stamp(4)
        a("Lattn1:")
        self.zero_o()
        a("s_waitcnt lgkmcnt(0)\ns_barrier\ns_setprio 3")
        a("\n".join(self.kv_load(0)))
        a("s_branch Lattn")

    def compute(self):
        a = self.a; stamp = self.stamp
        XF, ACC, WF, PK = 192, 32, 64, 64
        XR, WR, QR, SC, SCR, ST = 8, 12, 14, 15, 26, 27
        S1, S2, T1, T2, NMB, RSTD, XC = 16, 17, 18, 19, 20, 22, 118
        a("Lcomp:")
        a(f"s_lshl_b32 s43, s{sRT}, 12\ns_setprio {self.opt.get('cpri', 1)}")
        self.x_addr(XR)
        self.tr_addr(24)
        a(f"""v_add_u32 v{WR}, {L_W}, v24
        v_xor_b32 v{WR+1}, 64, v{WR}
        s_lshl_b32 s35, s{sRT}, 8
        s_add_u32 s35, s35, {L_SCR}
        v_lshl_add_u32 v{SC}, v2, 2, s35
        v_lshl_add_u32 v{SCR}, v4, 4, s35
        s_lshl_b32 s35, s{sRT}, 9
        s_add_u32 s35, s35, {L_ST}
        v_lshl_add_u32 v{QR}, v2, 3, s35""")
        stamp(1, "s")
        if not self.opt.get("st"): a(f"s_waitcnt lgkmcnt(0)\ns_load_dword s{sTAG}, s[{pWS}:{pWS+1}], 0")
        self.consts()
        def capture(f):
            old = self.a; self.a = Asm(); f(self.a); L = self.a.L; self.a = old
            return L
        def late(b):
            srd(b, sX, pX, 1835008); srd(b, sWS, pWS, WS_SIZE)
            self.epoch_to_tag()
            self.roles(1, 4)
            b(f"""s_and_b32 s35, s{sQB}, 7
            s_lshl_b32 s35, s35, 3
            s_add_u32 s35, s35, s{sXCD}
            s_lshl_b32 s35, s35, 2
            s_lshr_b32 s36, s{sQB}, 3
            s_add_u32 s35, s35, s36
            s_lshl_b32 s35, s35, 2
            s_add_u32 s35, s35, s{sRT}
            s_lshl_b32 s35, s35, 12
            s_lshr_b32 s36, s{sG}, 3
            s_lshl_b32 s36, s36, 11
            s_add_u32 s35, s35, s36
            s_add_u32 s46, s35, {WS_KV}
            s_add_u32 s47, s46, {8*4096}
            s_lshl_b32 s35, s{sXCD}, 2
            s_add_u32 s35, s35, s{sRT}
            s_lshl_b32 s35, s35, 8
            s_lshl_b32 s36, s{sJ}, 2
            s_add_u32 s35, s35, s36
            s_add_u32 s{sFLS}, s35, {WS_FLAG}
            s_lshl_b32 s35, s{sRT}, 2
            s_add_u32 s35, s35, {L_LOC}
            v_mov_b32 v{XC}, s35""")
            self.tail_addr(1, "s")
            self.tail_addr(1, "v")
        def atoms(L):
            out = []; hold = False
            for l in L:
                if hold: out[-1] += "\n" + l
                else: out.append(l)
                if "exec" in l: hold = "-1" not in l
            return out
        a(f"""s_cmp_ge_u32 s{sG}, 8
        s_cbranch_scc1 LcompV""")
        DA, NB, CA, CSF = (16, 17, 18, 19, 28, 29, 30, 31), 28, 119, 224
        def kloop(isV):
            order = [(j, m) for m in range(2) for j in range(4)]
            def wreg(i, j, m): return (WF, 224)[i % 2] + 8*j + 4*m
            def rlist(i):
                L = [(("x", i, j), f"ds_read_b128 v[{XF+16*(i%2)+4*j}:{XF+16*(i%2)+4*j+3}], v{XR+j} offset:{(i%4)*16384}") for j in range(4)]
                for k, (j, m) in enumerate(order):
                    for s in range(2):
                        w = wreg(i, j, m) + 2*s
                        L.append((("w", i, k), f"ds_read_b64_tr_b16 v[{w}:{w+1}], v{WR+m} offset:{(i%4)*8192 + j*2048 + s*512}"))
                return L
            def mm(c, w, x, src):
                if isV: a(f"{MF} v[{c}:{c+15}], v[{x}:{x+3}], v[{w}:{w+3}], {src}")
                else: a(f"{MF} v[{c}:{c+15}], v[{w}:{w+3}], v[{x}:{x+3}], {src}")
            BP = int(self.opt.get("bp", 3)); BPL = int(self.opt.get("bpl", 5)); CSP = int(self.opt.get("csp", 3))
            lg = Vm(); R = []
            def issue(n):
                c = 0
                while c < n and R and len(lg.q) < 15:
                    t, l = R.pop(0); a(l); lg.add(t); c += 1
                return c
            def need(t):
                assert all(u != t for u, _ in R)
                if t in lg.q: a(f"s_waitcnt lgkmcnt({lg.wait(t)})")
            def bar():
                assert not R
                a("s_waitcnt lgkmcnt(0)\ns_barrier"); lg.q = []
            LT = atoms(capture(late))
            NE = 42; NF = int(self.opt.get('nf', 7))
            for l in LT[-NE:]: a(l)
            LT = LT[:-NE]
            for e in DA: a(f"v_mov_b32 v{e}, 0")
            stamp(5, "s"); bar(); stamp(7, "s")
            R += rlist(0)
            for i in range(7):
                issue(int(self.opt.get("li", 8)) if len(R) == 20 else 14)
                for j in range(4):
                    need(("x", i, j))
                    for e in range(4):
                        x = XF + 16*(i%2) + 4*j + e
                        a(f"v_dot2c_f32_bf16 v{DA[e]}, s{sONES}, v{x}\nv_dot2c_f32_bf16 v{DA[4+e]}, v{x}, v{x}")
                        issue(1)
                    if j == 3 and R: need(("w", i, 2)); issue(6)
                if i == 6: stamp(2, "e"); LT = capture(lambda b: stats(isV))
                bp = BP if i < 5 else BPL
                for k, (j, m) in enumerate(order):
                    if k == bp and i < 6: bar(); R += rlist(i + 1)
                    need(("w", i, k))
                    c = ACC + 16*m
                    mm(c, wreg(i, j, m), XF + 16*(i%2) + 4*j, "0" if (i == 0 and j == 0) else f"v[{c}:{c+15}]")
                    if i == 6 and k == CSP:
                        stamp(3, "e"); bar(); stamp(4, "e")
                        a(f"ds_read_b128 v[{CSF}:{CSF+3}], v{CA}\nds_read_b128 v[{CSF+4}:{CSF+7}], v{CA} offset:1024\nds_read_b32 v{XC}, v{XC}")
                    if issue(4) < 3:
                        for _ in range(6 if i == 6 else NF):
                            if LT: a(LT.pop(0))
                if bp >= 8 and i < 6: bar(); R += rlist(i + 1)
                if i == 5: stamp(1, "e"); assert not LT
            for l in LT: a(l)
            a(f"s_waitcnt lgkmcnt({5 if isV else 0})")
            for m in range(2): mm(ACC + 16*m, CSF + 4*m, NB, f"v[{ACC+16*m}:{ACC+16*m+15}]")
            a(f"""v_readfirstlane_b32 s{sLOC}, v{XC}
            s_and_b32 s35, s{sQB}, 6
            s_cselect_b32 s43, 0, {0 if self.opt.get("wt") else f"s{sLOC}"}
            ds_write2_b32 v{QR}, v{NB}, v{RSTD} offset1:1""")
        def stats(isV):
            b = self.a
            b(f"""v_add_f32 v{DA[0]}, v{DA[0]}, v{DA[1]}
            v_add_f32 v{DA[2]}, v{DA[2]}, v{DA[3]}
            v_add_f32 v{DA[4]}, v{DA[4]}, v{DA[5]}
            v_add_f32 v{DA[6]}, v{DA[6]}, v{DA[7]}
            v_add_f32 v{S1}, v{DA[0]}, v{DA[2]}
            v_add_f32 v{S2}, v{DA[4]}, v{DA[6]}""")
            self.allred32([(S1, 24), (S2, 25)])
            self.ln_stats(S1, S2, NMB, RSTD, 24)
            b(f"v_alignbit_b32 v{NB}, v{NMB}, v{NMB}, 16\nv_or_b32 v{NB}, v{NB}, v{NMB}")
            for e in range(1, 4): b(f"v_mov_b32 v{NB+e}, v{NB}")
            if isV:
                b(f"ds_write_b32 v{SC}, v{RSTD}")
                for q in range(4): b(f"ds_read_b128 v[{240+4*q}:{243+4*q}], v{SCR} offset:{q*32}")
        scale_pack = self.scale_pack
        def stores(m):
            stamp(5 + m, "e")
            if self.opt.get("linst"): a(f"v_mov_b32 v{ST}, v{GA}")
            self.dual([f"buffer_store_dwordx4 v[{PK+8*m}:{PK+8*m+3}], v{ST}, {WSR}, s{46+m} offen @",
                       f"buffer_store_dwordx4 v[{PK+8*m+4}:{PK+8*m+7}], v{ST}, {WSR}, s{46+m} offen offset:1024 @"], 43)
        a(f"""v_bfe_u32 v3, v2, 2, 1
        v_bfe_u32 v4, v2, 3, 1
        v_and_b32 v5, 0x33, v2
        v_lshl_add_u32 v5, v3, 3, v5
        v_lshl_add_u32 v5, v4, 2, v5
        v_lshlrev_b32 v{ST}, 4, v5
""")
        kloop(False)
        stamp(1)
        for m in range(2):
            scale_pack(ACC + 16*m, RSTD, False, PK + 8*m, False)
            a(f"""s_mov_b32 exec_lo, 0
            v_mov_b32 v{PK+8*m+6}, s{sONES}
            v_mov_b32 v{PK+8*m+7}, 0x3f80
            s_mov_b32 exec_lo, -1""")
            stores(m)
        a("s_branch LcompQ")
        a("LcompV:")
        a(f"""v_and_b32 v3, 31, v2
        v_mul_u32_u24 v4, 37, v3
        v_lshrrev_b32 v4, 8, v4
        v_mul_u32_u24 v5, 7, v4
        v_sub_u32 v5, v3, v5
        v_cmp_le_u32 vcc, 28, v3
        v_cndmask_b32 v4, v4, v5, vcc
        v_cndmask_b32 v5, v5, 7, vcc
        v_lshrrev_b32 v6, 1, v4
        v_and_b32 v4, 1, v4
        v_lshlrev_b32 v6, 4, v6
        v_lshl_add_u32 v6, v4, 2, v6
        v_lshrrev_b32 v4, 2, v5
        v_and_b32 v5, 3, v5
        v_lshl_add_u32 v6, v4, 3, v6
        v_add_u32 v6, v6, v5
        v_and_b32 v4, 32, v2
        v_add_u32 v6, v6, v4
        s_and_b32 s35, s{sQB}, 8
        s_lshl_b32 s35, s35, 1
        v_xor_b32 v6, s35, v6
        v_lshlrev_b32 v{ST}, 4, v6
""")
        kloop(True)
        stamp(1)
        a("s_mov_b32 exec_lo, 0xf0000000\ns_mov_b32 exec_hi, 0xf0000000")
        for p in range(16): a(f"v_mov_b32 v{PK+p}, s{sONES}")
        a("s_waitcnt lgkmcnt(0)")
        for m in range(2):
            a("s_mov_b32 exec_lo, 0x0fffffff\ns_mov_b32 exec_hi, 0x0fffffff")
            scale_pack(ACC + 16*m, 240, True, PK + 8*m, False)
            a("s_mov_b64 exec, -1")
            stores(m)
        a("LcompQ:")
        stamp(2); stamp(7, "e")
        a(f"""s_setprio 0
        v_mov_b32 v4, s{sTAG}
        v_mov_b32 v5, {L_CNT}
        v_mov_b32 v6, 1
        s_mov_b64 exec, 1
        ds_add_u32 v5, v6 offset:8
        s_mov_b64 exec, -1
        v_lshlrev_b32 v23, 2, v2""")
        self.q_addr()
        self.zero_o()
        a("s_waitcnt vmcnt(0)\ns_mov_b64 exec, 1")
        self.dual([f"buffer_store_dword v4, v{ZR}, {WSR}, s{sFLS} offen offset:# @"])
        a("s_mov_b64 exec, -1")
        stamp(3)
        a(f"""Lpoll1:
        buffer_load_dword v26, v23, {WSR}, s{sFLG} offen sc1""")
        self.spin_guard("Lpoll1x")
        a(f"""s_waitcnt vmcnt(0)
        v_cmp_ne_u32 vcc, s{sTAG}, v26
        s_and_b32 s35, vcc_lo, vcc_hi
        s_and_b32 s35, s35, 0x03030303
        s_cbranch_scc1 Lpoll1
        Lpoll1x:""")
        stamp(4)
        a("\n".join(self.kv_load(0)))
        a("s_barrier")

    Q = (48, 56, 64, 72); O = (128, 144, 160, 176); KV = (192, 208, 224, 240, 80)
    def kv_load(self, kt):
        b = self.KV[kt % 5]
        if kt < 2: p = f"s_add_u32 s41, s{sKVS}, {kt << 19}\n"
        else: p = f"""s_add_u32 s41, s{sKVL}, {kt}
            s_cmp_ge_u32 s41, 8
            s_cselect_b32 s35, 6, 0
            s_sub_u32 s41, s41, s35
            s_lshl_b32 s41, s41, 19
            s_add_u32 s41, s41, s{sKVS}
            """
        return [(p if j == 0 else "") + f"buffer_load_dwordx4 v[{b+4*j}:{b+4*j+3}], v{GA}, {WSR}, s41 offen offset:{j*1024} sc1" for j in range(4)]
    def tail_addr(self, grp, part):
        a = self.a
        if part == "s":
            OWN = f"""s_bfe_u32 s37, s{sXCD}, 0x10001
            s_xor_b32 s37, s37, 1
            s_bitcmp{grp}_b32 s{sXCD}, 2
            s_cselect_b32 s36, s37, s36""" if not self.opt.get("noown") else ""
            a(f"""s_sub_u32 s35, s{sF2C}, {WS_FLAG2}
            s_lshl_b32 s35, s35, 3
            s_add_u32 s35, s35, {WS_O}
            s_and_b32 s36, s{sCG}, 1
            {OWN}
            s_lshl_b32 s37, s36, 19
            s_sub_u32 s{sOB}, s35, s37
            s_add_u32 s{sOA}, s35, s37
            s_mul_i32 s35, s36, {4*3584}
            s_lshl_b32 s{sTS}, s35, 1""")
            for k in range(8): a(f"v_add_u32 v{TA+k}, s35, v{TA+k}")
            a(f"""s_lshl_b32 s36, s{sRB}, 6
            v_add_u32 v{ROW}, s36, v{ROW}
            s_lshl_b32 s35, s{sRT}, 4
            s_add_u32 s35, s35, s36
            s_lshl_b32 s35, s35, 7
            s_add_u32 s{sSTA}, s35, {WS_STAT + grp*1024}
            s_lshl_b32 s35, s{sCG}, 8
            s_lshl_b32 s36, s36, 7
            s_add_u32 s35, s35, s36
            s_add_u32 s{sCND}, s35, {WS_CAND}
            s_brev_b32 s{sSGN}, 1
            s_movk_i32 s{sKM}, 0xf800""")
            return
        a(f"""v_lshrrev_b32 v{KR}, 4, v2
        v_bfe_u32 v{KW}, v2, 2, 2
        v_and_b32 v1, 3, v2
        v_mul_u32_u24 v{ER}, 896, v{KR}
        v_lshl_add_u32 v{ER}, v1, 3, v{ER}
        v_and_b32 v1, 1, v{KR}
        v_lshl_add_u32 v{ER}, v1, 6, v{ER}
        v_lshrrev_b32 v1, 1, v{KW}
        v_lshl_add_u32 v{ER}, v1, 5, v{ER}
        v_add_u32 v{ER}, {L_W2 + grp*8*3584}, v{ER}
        v_lshl_add_u32 v{TA}, v{KW}, 7, v{ER}
        v_min_u32 v{KW}, 2, v{KW}
        v_lshl_add_u32 v{TA+4}, v{KW}, 7, v{ER}""")
        for ct in range(1, 4): a(f"v_xor_b32 v{TA+ct}, {32*ct}, v{TA}\nv_xor_b32 v{TA+4+ct}, {32*ct}, v{TA+4}")
        a(f"""s_mul_i32 s36, s{sRT}, {16*272}
        s_add_u32 s35, s36, {L_EX + grp*17408}
        v_and_b32 v1, 15, v2
        v_mul_u32_u24 v{EW}, 272, v1
        v_lshl_add_u32 v{EW}, v{KR}, 4, v{EW}
        v_add_u32 v{EW}, s35, v{EW}
        v_lshlrev_b32 v1, 4, v1
        v_add_u32 v{KR}, {L_KEY}, v1
        v_lshrrev_b32 v{ROW}, 3, v2
        v_and_b32 v1, 7, v2
        s_add_u32 s35, s36, {L_EX + grp*8*272}
        v_mul_u32_u24 v{ER}, 272, v{ROW}
        v_lshlrev_b32 v{CA}, 5, v1
        v_add3_u32 v{ER}, v{ER}, v{CA}, s35
        v_lshlrev_b32 v{STS}, 7, v{ROW}
        v_add_u32 v1, 1, v1
        v_lshrrev_b32 v1, 3, v1
        v_lshl_add_u32 v{STL}, v1, 30, v{GA}
        s_lshl_b32 s35, s{sRT}, 4
        s_add_u32 s35, s35, {8*grp}
        v_add_u32 v{ROW}, s35, v{ROW}
        v_lshlrev_b32 v{KW}, 2, v{ROW}
        v_add_u32 v{KW}, {L_KEY}, v{KW}""")
    def zero_o(self):
        for o in self.O: self.a(f"{MF} v[{o}:{o+15}], v[{ZR}:{ZR+3}], v[{ZR}:{ZR+3}], 0")
    def q_addr(self):
        for p in range(4):
            self.a(f"s_add_u32 s35, s{sRT}, {p + 1}\ns_and_b32 s{44+p}, s35, 3\ns_lshl_b32 s35, s{44+p}, 11\nv_add_u32 v{16+p}, s35, v{GA}")
    def attention(self):
        a = self.a; stamp = self.stamp
        Q, O, KV = self.Q, self.O, self.KV
        S = (16, 32); IDX = 4
        PT = [O[0] + 8*i for i in range(6)]
        o = lambda k, d: int(self.opt.get(k, d))
        a("Lattn:")
        stamp(5); stamp(1, True)
        for p in range(4):
            for f in range(2): a(f"ds_read_b128 v[{Q[p]+4*f}:{Q[p]+4*f+3}], v{16+p} offset:{L_QX + 1024*f}")
        vm = Vm(); vm.add(("kv", 0), 4)
        RR = o("rr", 4); LW = self.opt.get("lw", "b")
        steps = [(t // 4, t % 4) for t in range(32 - 4*RR)] + [(8 - RR + t % RR, t // RR) for t in range(4*RR)]
        def qk(t):
            kt, p = steps[t]; n = S[t & 1]; k = KV[kt % 5]
            return [f"{MF} v[{n}:{n+15}], v[{k}:{k+3}], v[{Q[p]}:{Q[p]+3}], 0", f"{MF} v[{n}:{n+15}], v[{k+4}:{k+7}], v[{Q[p]+4}:{Q[p]+7}], v[{n}:{n+15}]"]
        def pv(t, f):
            kt, p = steps[t]; c = S[t & 1] + 8*f; v = KV[kt % 5] + 8 + 4*f
            return f"{SM} v[{O[p]}:{O[p]+15}], v[{v}:{v+3}], v[{c}:{c+7}], v{IDX}"
        a(f"v_mov_b32 v{IDX}, 0xdddddddd\ns_mul_i32 s36, s{sGRP}, {4*12288 + 2048}\ns_mul_i32 s37, s{sGRP}, {-8*12288}\ns_add_u32 s37, s37, {4*12288}")
        a(f"s_waitcnt vmcnt(2) lgkmcnt(6)")
        a("\n".join(qk(0)))
        for p in range(3):
            a(f"s_mul_i32 s35, s{44+p}, 12288\ns_add_u32 s35, s35, s36\nv_add_u32 v{8+2*p}, s35, v{GA}\nv_add_u32 v{9+2*p}, s37, v{8+2*p}")
        a("s_waitcnt lgkmcnt(0)")
        sd = {}
        def put(t, pos, tag, x):
            assert (t, pos) not in sd, (t, pos)
            sd[(t, pos)] = (tag, x)
        K3 = o("k3", 6)
        for j, x in enumerate(self.kv_load(1)): put(0, 1 + j, ("kv", 1), x)
        K2 = o("k2", 3)
        put(K2 - 1, 0, "fl", f"v_lshrrev_b32 v14, 2, v{GA}\nbuffer_load_dword v15, v14, {WSR}, s{sFLG} offen sc1")
        put(K2, 0, "flc", None)
        self.ool.append(f"""Lfl:
        buffer_load_dword v15, v14, {WSR}, s{sFLG} offen sc1
        s_sub_u32 s{sSPIN}, s{sSPIN}, 1
        s_bitcmp1_b32 s{sSPIN}, 31
        s_cbranch_scc1 Lflx
        s_waitcnt vmcnt(0)
        v_cmp_ne_u32 vcc, s{sTAG}, v15
        s_and_b32 s35, vcc_lo, vcc_hi
        s_cbranch_scc1 Lfl
        s_branch Lflx""")
        for j, x in enumerate(self.kv_load(2)): put(K2, 1 + j, ("kv", 2), x)
        put(K2 + 1, 1, "xc", f"""v_bfe_u32 v14, v{GA}, 1, 8
        s_lshl_b32 s35, s{sXCD}, 8
        s_add_u32 s35, s35, {WS_XCC}
        buffer_load_dwordx2 v[14:15], v14, {WSR}, s35 offen sc1""")
        put(12, 0, "xce", None)
        KR = o("kr", 4)
        pat = {2: ((0, 1), (1, 1)), 3: ((0, 1), (0, 4), (1, 3)), 4: ((0, 1), (0, 3), (1, 1), (1, 3))}[KR]
        n = 0
        for kt in range(3, 8):
            for j, x in enumerate(self.kv_load(kt)):
                u = K3 + 2*(n // KR) + pat[n % KR][0]
                assert kt < 5 or u > 4*(kt - 4)
                put(u, pat[n % KR][1], ("kv", kt), x); n += 1
        put(o("tw0", 16), 1, "t", f"buffer_load_dword v118, v{TC2}, s[{sW2}:{sW2+3}], 0 offen")
        put(o("s0", 8), 2, "clr", f"buffer_store_dwordx4 v[{ZR}:{ZR+3}], v{GA}, {WSR}, s{sOO} offen sc1")
        put(o("sf2", 18), 0, "f2", None)
        S1 = o("s1", 24)
        for n in range(8):
            put(*((S1 + n // 2, 1 + 2*(n % 2)) if o("wr", 2) == 2 else (S1 + n, 3)), "w2", f"""s_add_u32 m0, s{sW2L}, {L_W2 + n*8*896}
            s_add_u32 s35, s{sW2G}, {n*8*7*896}
            s_mov_b32 exec_hi, 0x00ffffff
            buffer_load_dwordx4 v{W2A}, s[{sW2}:{sW2+3}], s35 offen lds
            s_mov_b32 exec_hi, -1""")
        S2 = o("s2", 28)
        self.pf = [f"s_lshl_b32 s42, s{sCG}, 7\nbuffer_load_dwordx4 v[{PF}:{PF+3}], v{XA}, s[{sX}:{sX+3}], s42 offen",
            f"""s_mov_b64 s[{sW}:{sW+1}], s[{pWR}:{pWR+1}]
            s_movk_i32 s{sW+2}, 896
            s_mov_b32 s{sW+3}, 0x00020000
            buffer_load_dwordx4 v[{PF+8}:{PF+11}], v{GA}, s[{sW}:{sW+3}], 0 offen""",
            f"v_and_b32 v1, 0x70, v{GA}\nbuffer_load_dwordx4 v[{PF+4}:{PF+7}], v1, s[{sW}:{sW+3}], s42 offen"]
        if self.opt.get("pf", "tail") != "tail":
            for k in range(3): put(S2, k, "pf", self.pf[k])
        put(S2, 3, "f2c", f"buffer_load_dword v{F2V}, v{F2A}, {WSR}, s{sF2C} offen sc1")
        put(o("t0", 16), 3, "t", f"buffer_load_dword v118, v{TCH}, s[{sOUT}:{sOUT+3}], 0 offen")
        ns = self.opt.get("noside", "")
        for k in list(sd):
            if sd[k][0] in ns.split(","): del sd[k]
        lds = {}
        for p in range(3):
            w = [f"ds_write_b128 v{8+2*p+(i>>1)}, v[{O[p]+4*i}:{O[p]+4*i+3}] offset:{4096*p + 1024*(i&1)}" for i in range(4)]
            if self.opt.get("w64"):
                w = [f"ds_write_b64 v{8+2*p+(i>>1)}, v[{O[p]+4*i}:{O[p]+4*i+1}] offset:{4096*p + 1024*(i&1)}\nds_write_b64 v{8+2*p+(i>>1)}, v[{O[p]+4*i+2}:{O[p]+4*i+3}] offset:{4096*p + 1024*(i&1) + 8}" for i in range(4)]
            t0 = 32 - RR*(3 - p)
            if LW == "a": pl = [(t0 + 1, i) for i in range(4)] if p < 2 else [(t0, 3), (t0, 3), (t0, 4), (t0, 4)]
            elif RR == 3: pl = [(t0, 4), (t0 + 1, 1), (t0 + 1, 4), (t0 + 2, 2)] if p < 2 else [(t0, 2), (t0, 4), (t0 + 1, 0), (t0 + 1, 2)]
            else: pl = [(t0 + i, 2) for i in range(4)] if p < 2 else [(t0, 2), (t0 + 1, 0), (t0 + 1, 4), (t0 + 2, 2)]
            for i in range(4): lds.setdefault(pl[i], []).append(w[i])
        rd = [f"ds_read_b128 v[{PT[i>>1]+4*(i&1)}:{PT[i>>1]+4*(i&1)+3}], v{CW} offset:{1024*i}" for i in range(12)]
        BA = (30, 1) if LW == "a" else (30, 4)
        rp = ((30, 1), (30, 2), (30, 2), (30, 3), (30, 4), (30, 4), (31, 0), (31, 0), (31, 1), (31, 1), (31, 2), (31, 2)) if LW == "a" else \
             ((30, 4), (30, 4), (30, 4), (31, 5), (31, 5), (31, 5), (31, 0), (31, 0), (31, 0), (31, 1), (31, 1), (31, 1))
        for i, k in enumerate(rp): lds.setdefault(k, []).append(rd[i])
        QBAR = o("qbar", 16)
        def side(t, pos):
            if (t, pos) == (QBAR, 0): a("s_barrier")
            if (t, pos) == BA and "bara" not in ns: a("s_waitcnt lgkmcnt(0)\ns_barrier")
            for x in lds.get((t, pos), []):
                if not (("ldw" in ns and "write" in x) or ("ldr" in ns and "read" in x)): a(x)
            if (t, pos) not in sd: return
            tag, x = sd[(t, pos)]
            if tag == "flc":
                a(f"s_waitcnt vmcnt({vm.wait('fl')})\nv_cmp_ne_u32 vcc, s{sTAG}, v15\ns_and_b32 s35, vcc_lo, vcc_hi\ns_cbranch_scc1 Lfl\nLflx:")
                return
            if tag == "xce":
                assert "xc" not in vm.q
                a(f"""s_getreg_b32 s35, hwreg(HW_REG_XCC_ID, 0, 4)
                v_cmp_ne_u32 vcc, s{sTAG}, v14
                v_cmp_ne_u32 s[36:37], s35, v15
                s_or_b64 vcc, vcc, s[36:37]
                s_cselect_b32 s{sLOC}, 0, 1""")
                return
            if tag == "f2":
                w = f"s_waitcnt vmcnt({vm.wait('clr')})\n" if "clr" in vm.q else ""
                x = f"v_mov_b32 v{F2V}, s{sTAG}\n{w}s_mov_b64 exec, 1\nbuffer_store_dword v{F2V}, v{ZR}, {WSR}, s{sF2} offen sc1\ns_mov_b64 exec, -1"
            a(x); vm.add(tag)
        seq = {"a": "e e P 5 e e e W Q0 e e e Q1 0 e e 1 e e C 2 e e 3 e 4 e",
               "c": "e e P 5 e e W Q0 e e e Q1 0 e e 1 e e e C 2 e e 3 e 4 e",
               "e": "e e e e P 5 e e e W Q0 e e e Q1 0 e 1 e e C 2 e 3 e 4 e",
               "f": "e e e P 5 e e e W Q0 e e e Q1 0 e e 1 e C 2 e e 3 e 4 e",
               "g": "e e e e P 5 e e e W Q0 0 e e e Q1 1 e e e C 2 e 3 e 4 e",
               "h": "e e P 5 e e e e W Q0 0 e e e e Q1 1 e e e e C 2 3 e 4 e"}[self.opt.get("seq", "c")]
        NT = 32
        PRI = {}
        for x in self.opt.get("pri", "0.0.3,8.8.2,13.0.1,15.4.0,16.7.3,24.0.2,28.0.1,30.0.0,30.15.1,31.9.0").split(","):
            u, v, w = [int(y) for y in x.split(".")]; PRI[(u, v)] = w
        for t in range(NT):
            c = S[t & 1]; ei = 0
            AS = [int(x) for x in self.opt.get("as", "4,8,16,24,28,31").split(",")]
            if t in AS: stamp(AS.index(t) + 2, True)
            for tok in seq.split():
                if tok == "e":
                    p = PRI.get((t, ei))
                    if p is not None: a(f"s_setprio {p}")
                    a(f"v_exp_f32 v{c+ei}, v{c+ei}"); ei += 1
                elif tok == "P":
                    if t > 0: a(pv(t - 1, 1))
                elif tok == "C": a(pv(t, 0))
                elif tok == "W":
                    if t + 1 < NT and ("kv", steps[t + 1][0]) in vm.q:
                        assert vm.q.count(("kv", steps[t + 1][0])) == 4 or all(v[0] != ("kv", steps[t + 1][0]) for k, v in sd.items() if k > (t, 0))
                        a(f"s_waitcnt vmcnt({vm.wait(('kv', steps[t + 1][0]))})")
                elif tok[0] == "Q":
                    if t + 1 < NT: a(qk(t + 1)[int(tok[1])])
                else: side(t, int(tok))
        X = O[3]
        a(f"""s_xor_b32 s35, s{sWAVE}, 4
        s_mulk_i32 s35, 12288
        {pv(NT - 1, 1)}""")
        stamp(6)
        a(f"""v_add_u32 v5, s35, v{GA}
        v_mov_b32 v6, {L_BAD}
        s_mov_b32 s36, {hex(f2u(float(self.opt.get('thr', 2.0**40))))}
        s_mov_b32 s37, {hex(f2u(2.0**-30))}
        s_waitcnt lgkmcnt(0)""")
        def padd(d, x, y):
            for i in range(4): a(f"v_pk_add_f32 v[{d+2*i}:{d+2*i+1}], v[{x+2*i}:{x+2*i+1}], v[{y+2*i}:{y+2*i+1}]")
        padd(PT[0], PT[0], PT[1]); padd(PT[2], PT[2], PT[3])
        a(f"ds_write_b128 v{CW}, v[{X+8}:{X+11}]\nds_write_b128 v{CW}, v[{X+12}:{X+15}] offset:1024")
        padd(PT[4], PT[4], PT[5]); padd(PT[0], PT[0], X); padd(PT[2], PT[2], PT[4]); padd(X, PT[0], PT[2])
        a(f"""v_maximum3_f32 v17, |v{X+8}|, |v{X+9}|, |v{X+10}|
        v_maximum3_f32 v16, |v{X}|, |v{X+1}|, |v{X+2}|
        v_cmp_nge_f32 s[44:45], s36, v{X+7}
        v_maximum3_f32 v17, |v{X+11}|, |v{X+12}|, v17
        v_maximum3_f32 v16, |v{X+3}|, |v{X+4}|, v16
        v_cmp_nle_f32 s[46:47], s37, v{X+7}
        v_maximum3_f32 v17, |v{X+13}|, |v{X+14}|, v17
        v_maximum3_f32 v16, |v{X+5}|, |v{X+6}|, v16
        s_or_b64 s[44:45], s[44:45], s[46:47]
        v_maximum3_f32 v16, v16, v17, v17
        v_cmp_nge_f32 vcc, {hex(f2u(2.0**120))}, v16
        s_or_b64 vcc, s[44:45], vcc
        s_cbranch_scc1 Lbad
        Lbadx:
        s_waitcnt vmcnt({vm.wait('f2c')}) lgkmcnt(0)
        s_barrier
        ds_read_b128 v[20:23], v5 offset:1024
        ds_read_b128 v[16:19], v5
        ds_read_b32 v26, v6
        s_waitcnt lgkmcnt(2)
        v_add_f32 v23, v23, v{X+7}
        v_rcp_f32 v24, v23
        v_pk_add_f32 v[20:21], v[20:21], v[{X+4}:{X+5}]
        v_add_f32 v22, v22, v{X+6}
        s_waitcnt lgkmcnt(0)
        v_readfirstlane_b32 s35, v26
        v_pk_add_f32 v[16:17], v[16:17], v[{X}:{X+1}]
        v_pk_add_f32 v[18:19], v[18:19], v[{X+2}:{X+3}]
        v_mul_f32 v22, v22, v24
        v_pk_mul_f32 v[16:17], v[16:17], v[24:25] op_sel_hi:[1,0]
        v_pk_mul_f32 v[18:19], v[18:19], v[24:25] op_sel_hi:[1,0]
        v_pk_mul_f32 v[20:21], v[20:21], v[24:25] op_sel_hi:[1,0]
        v_cvt_pk_bf16_f32 v31, v22, -v{ZR}
        v_cvt_pk_bf16_f32 v28, v16, v17
        v_cvt_pk_bf16_f32 v29, v18, v19
        v_cvt_pk_bf16_f32 v30, v20, v21
        s_cmp_gt_u32 s35, s{sRETRY}
        s_cbranch_scc1 Lfallback
        buffer_store_dwordx4 v[28:31], v{GA}, {WSR}, s{sOO} offen sc1""")
        self.ool.append(f"Lbad:\nds_write_b32 v6, v{IDX}\ns_branch Lbadx")
        stamp(7)
        self.flush_stamps(0, 8, False)

    def fallback(self):
        a = self.a; Q = self.Q[3]
        a(f"""Lfallback:
        s_mov_b32 s{sRETRY}, -1
        s_barrier
        s_lshl_b32 s35, s{sH}, 15
        s_add_u32 s35, s35, {WS_KV}
        s_mov_b32 s36, 64
        v_mov_b32 v3, 0xff800000
        Lfb1:
        buffer_load_dwordx4 v[80:83], v{GA}, {WSR}, s35 offen sc1
        buffer_load_dwordx4 v[84:87], v{GA}, {WSR}, s35 offen offset:1024 sc1
        s_waitcnt vmcnt(0)
        {MF} v[16:31], v[80:83], v[{Q}:{Q+3}], 0
        {MF} v[16:31], v[84:87], v[{Q+4}:{Q+7}], v[16:31]
        s_sub_u32 s36, s36, 1
        s_and_b32 s37, s36, 7
        s_cselect_b32 s37, 0, {(1 << 19) - 32768}
        s_add_u32 s35, s35, s37
        s_add_u32 s35, s35, 4096""")
        for p in range(8): a(f"v_max3_f32 v3, v{16+2*p}, v{17+2*p}, v3")
        a(f"""s_cmp_lg_u32 s36, 0
        s_cbranch_scc1 Lfb1
        v_mov_b32 v5, v3
        v_permlane32_swap_b32 v5, v3
        v_max_f32 v3, v3, v5
        v_sub_f32 v3, 0, v3
        v_and_b32 v5, 0xffff0000, v3
        v_sub_f32 v3, v3, v5
        v_and_b32 v6, 0xffff0000, v3
        v_sub_f32 v3, v3, v6
        v_lshrrev_b32 v5, 16, v5
        s_mov_b32 exec_lo, 0
        v_or_b32 v{Q+6}, v5, v6
        v_lshrrev_b32 v{Q+7}, 16, v3
        s_mov_b32 exec_lo, -1
        s_lshl_b32 s35, s{sRT}, 11
        v_add_u32 v3, s35, v{GA}
        ds_write_b128 v3, v[{Q}:{Q+3}] offset:{L_QX}
        ds_write_b128 v3, v[{Q+4}:{Q+7}] offset:{L_QX + 1024}""")
        self.q_addr()
        a("s_branch Lattn1")

    def build(self):
        import tail
        a = self.a; self.ool = []
        self.head(); self.loader(); self.compute(); self.attention()
        tail.emit(self)
        for x in self.ool: a(x)
        a("Lcoldcode:")
        self.fallback()
        a("Lexit:\ns_endpgm")
        rm = self.opt.get("rm", "").split(",")
        i0, i1, i2 = a.L.index("Lload:"), a.L.index("Lcomp:"), a.L.index("LcompQ:")
        kiss = []
        for i, l in enumerate(a.L):
            c = i1 < i < i2; ld = i0 < i < i1
            if ("dot" in rm and c and "v_dot2c" in l) or ("dots" in rm and c and "v_dot2c" in l and ", s" in l) or ("lx" in rm and ld and "ds_read_b128 v[1" in l) or ("lx" in rm and ld and "ds_read_b128 v[2" in l) \
               or ("lm" in rm and ld and "16x16x32" in l) or ("cm" in rm and c and "v_mfma" in l): continue
            kiss.append(l)
        a.L = kiss
        hazard.TRANS2 = bool(self.opt.get('t2'))
        import layout
        hdr = open(f"cdna_kernels/{NAME}.s.ref").read().split("; Override launch")[0]
        hdr += "; @launch grid=(256,1,1) block=(512,1,1) lds=163840\n"
        hdr += '.amdgcn_target "amdgcn-amd-amdhsa--gfx950"\n.text\n'
        if not self.opt.get("nopage"): hdr += ".p2align 12\n.fill 832, 4, 0xbf800000\n"
        lines = layout.finish(a.L, self.opt)
        return hdr + "\n".join(lines) + '\n.section .rodata,"a"\n' + kdesc(NAME + "_kernel", 256)

if __name__ == "__main__":
    opt = {}
    out = f"cdna_kernels/{NAME}.s"
    for x in sys.argv[1:]:
        if x.startswith("out="): out = x[4:]
        elif "=" in x: k, v = x.split("="); opt[k] = v
        else: opt[x] = True
    import gen
    open(out, "w").write(gen.G(opt).build())
```

```python
import math
from asmlib import *
from gen import *

S16 = "v_smfmac_f32_16x16x64_bf16"
def emit(g):
    A = [g.a]
    a = lambda s: A[0](s)
    stamp = g.stamp; opt = g.opt
    OUTS = opt.get("outs", "sc1").replace("plain", "")
    def red8(regs):
        for m in ("quad_perm:[1,0,3,2]", "quad_perm:[2,3,0,1]", "row_half_mirror"):
            for r in regs: a(f"v_add_f32_dpp v{r}, v{r}, v{r} {m} row_mask:0xf bank_mask:0xf")
    DM = "row_mask:0xf bank_mask:0xf"
    def merge16(m1, m2, t, fill=()):
        fill = list(fill)
        for k in (1, 2, 4, 8):
            a(f"""v_min_u32_dpp v{t}, v{m1}, v{m1} row_ror:{k} {DM}
            v_max_u32_dpp v{m1}, v{m1}, v{m1} row_ror:{k} {DM}
            v_max_u32_dpp v{m2}, v{m2}, v{m2} row_ror:{k} {DM}""")
            a(f"v_max_u32 v{m2}, v{m2}, v{t}")
            if fill: a(fill.pop(0))
        for x in fill: a(x)
    def top2(m1, m2, t, k1, k2):
        merge16(m1, m2, t)
        a(f"""v_readlane_b32 s{k1}, v{m1}, 0
        v_readlane_b32 s35, v{m1}, 16
        v_readlane_b32 s{k2}, v{m2}, 0
        v_readlane_b32 s36, v{m2}, 16
        s_min_u32 s37, s{k1}, s35
        s_max_u32 s{k1}, s{k1}, s35
        s_max_u32 s{k2}, s{k2}, s36
        s_max_u32 s{k2}, s{k2}, s37""")
    a(f"s_cmp_ge_u32 s{sJ}, 28\ns_cbranch_scc1 Lffn")
    WOF, OF, ACC = 128, 32, 16
    XP, WRP, WRA, XU, WSUM = PF, PF + 4, PF + 8, 64, 72
    GS = opt.get("gstamps")
    g.ool.append(f"""Lclr:
    buffer_load_dword v{F2V}, v{F2A}, {WSR}, s{sF2C} offen sc1
    s_sub_u32 s{sSPIN}, s{sSPIN}, 1
    s_bitcmp1_b32 s{sSPIN}, 31
    s_cbranch_scc1 Lclr_ok
    s_waitcnt vmcnt(0)
    v_cmp_ne_u32 vcc, s{sTAG}, v{F2V}
    s_cbranch_vccnz Lclr
    s_branch Lclr_ok""")
    stamp(8)
    def oload(hl): a(f"s_add_u32 s35, s{sOA if hl < 4 else sOB}, {hl*131072}\nbuffer_load_dwordx4 v[{OF+4*hl}:{OF+4*hl+3}], v{OA}, {WSR}, s35 offen sc1")
    NO0 = int(opt.get("no0", 4)); NO1 = int(opt.get("no1", 8))
    OD = int(opt.get("od", 4))
    def trs(hl):
        if hl == 4:
            for k in range(8): a(f"v_subrev_u32 v{TA+k}, s{sTS}, v{TA+k}")
        for ct in range(4):
            w = WOF + (hl*4 + ct)*4
            a(f"ds_read_b64_tr_b16 v[{w}:{w+1}], v{TA+ct} offset:{hl*3584}")
            a(f"ds_read_b64_tr_b16 v[{w+2}:{w+3}], v{TA+4+ct} offset:{hl*3584 + 512}")
    def mf4(hl, first):
        return [f"{M16} v[{ACC+4*ct}:{ACC+4*ct+3}], v[{WOF+(hl*4+ct)*4}:{WOF+(hl*4+ct)*4+3}], v[{OF+4*hl}:{OF+4*hl+3}], {'0' if first else f'v[{ACC+4*ct}:{ACC+4*ct+3}]'}" for ct in range(4)]
    vm = Vm()
    F = Asm()
    for k in (1, 2, 4, 8): F(f"v_add_f32_dpp v{WSUM}, v{WSUM}, v{WSUM} row_ror:{k} {DM}\nv_mov_b32 v{76 + (1, 2, 4, 8).index(k)}, {'0' if k < 8 else f's{sTAG}'}")
    F(f"""v_mov_b32 v1, v{WSUM}
    v_lshlrev_b32 v{XU}, 16, v{XP}
    v_permlane16_swap_b32 v1, v{WSUM}
    v_add_f32 v{WSUM}, v1, v{WSUM}
    v_mov_b32 v1, v{WSUM}
    v_and_b32 v{XU+1}, 0xffff0000, v{XP}
    v_permlane32_swap_b32 v1, v{WSUM}
    v_add_f32 v{WSUM}, v1, v{WSUM}""")
    for p in range(1, 4): F(f"v_lshlrev_b32 v{XU+2*p}, 16, v{XP+p}\nv_and_b32 v{XU+2*p+1}, 0xffff0000, v{XP+p}")
    srd(F, sOUT, pOUT, 1835008)
    FL = list(F.L)
    nt = nl = nm = 0; done = -1
    for ch in opt.get("os", "ptttttlllltttllllmmmmmmmm"):
        if ch == "p": a("\n".join(g.pf)); vm.add("pf", 3)
        elif ch == "t":
            if nt: a("s_waitcnt lgkmcnt(6)"); done = nt - 2
            trs(nt)
            if nt == 0:
                a(f"v_mov_b32 v{WSUM}, 0\nv_cmp_ne_u32 vcc, s{sTAG}, v{F2V}\ns_cbranch_vccnz Lclr\nLclr_ok:")
                a("s_barrier")
            nt += 1
        elif ch == "l":
            assert nt > 0
            oload(nl); vm.add(nl); nl += 1
        else:
            w = ""
            if done < nm:
                assert nt > nm
                if nt - 1 > nm: w = " lgkmcnt(8)"; done = nt - 2
                else: w = " lgkmcnt(0)"; done = nt - 1
            a(f"s_waitcnt vmcnt({vm.wait(nm)}){w}")
            if GS and nm in (0, 2, 4, 6): stamp(10 + nm // 2)
            if nm == 0:
                assert "pf" not in vm.q
                for p in range(4): a(f"v_dot2c_f32_bf16 v{WSUM}, s{sONES}, v{WRA+p}")
            for m in mf4(nm, nm == 0):
                a(m)
                if FL: a(FL.pop(0))
            if nm == 1: a(f"v_and_b32 v3, v{OF+3}, v{OF+7}")
            elif nm > 1: a(f"v_and_b32 v3, v3, v{OF+4*nm+3}")
            nm += 1
    assert not FL and nt == nl == nm == 8
    stamp(15)
    a(f"""v_cmp_le_i32 vcc, 0, v3
    s_cbranch_vccnz Lre
    Lrex:""")
    r = f"Lre:\nv_bfrev_b32 v5, 2\n"
    M = lambda hl: f"s[{64+2*hl}:{65+2*hl}]"
    for hl in range(8): r += f"v_cmp_le_i32 {M(hl)}, 0, v{OF+4*hl+3}\n"
    r += "Lre1:\n"
    for u in range(4):
        r += f"s_or_b64 s[36:37], {M(2*u)}, {M(2*u+1)}\ns_cbranch_scc0 Lre2_{u}\n"
        for hl in (2*u, 2*u + 1):
            r += f"""v_cndmask_b32 v{3 + (hl & 1)}, v5, v{OA}, {M(hl)}
            s_add_u32 s35, s{sOA if hl < 4 else sOB}, {hl*131072}
            buffer_load_dwordx4 v[{OF+4*hl}:{OF+4*hl+3}], v{3 + (hl & 1)}, {WSR}, s35 offen sc1
            """
        r += f"Lre2_{u}:\n"
    r += f"s_mov_b64 s[44:45], 0\ns_sub_u32 s{sSPIN}, s{sSPIN}, 1\ns_waitcnt vmcnt(0)\n"
    NL = "\n"
    for u in range(4):
        r += f"""s_or_b64 s[36:37], {M(2*u)}, {M(2*u+1)}
        s_cbranch_scc0 Lre3_{u}
        v_cmp_le_i32 vcc, 0, v{OF+8*u+3}
        v_cmp_le_i32 s[36:37], 0, v{OF+8*u+7}
        {NL.join(mf4(2*u, False) + mf4(2*u + 1, False))}
        s_and_b64 {M(2*u)}, {M(2*u)}, vcc
        s_and_b64 {M(2*u+1)}, {M(2*u+1)}, s[36:37]
        s_or_b64 s[44:45], s[44:45], {M(2*u)}
        s_or_b64 s[44:45], s[44:45], {M(2*u+1)}
        Lre3_{u}:
        """
    r += f"""s_cmp_eq_u64 s[44:45], 0
    s_cbranch_scc1 Lrex
    s_bitcmp1_b32 s{sSPIN}, 31
    s_cbranch_scc0 Lre1
    s_branch Lrex"""
    g.ool.insert(0, r)
    stamp(9)
    for ct in range(4): a(f"ds_write_b128 v{EW}, v[{ACC+4*ct}:{ACC+4*ct+3}] offset:{64*ct}")
    HG, HN = 48, 56
    hp = [HG, HG+1, HG+4, HG+5]; hn = [HN, HN+1, HN+4, HN+5]
    a(f"""s_lshr_b32 s45, s42, 3
    s_add_u32 s45, s45, s{sSTA}
    s_mov_b32 s46, 0x7f7f7f7f
    s_mov_b32 s47, 0x7f7f7f7f
    s_waitcnt lgkmcnt(0)
    s_barrier
    ds_read_b128 v[32:35], v{ER}
    ds_read_b128 v[40:43], v{ER} offset:17408
    ds_read_b128 v[36:39], v{ER} offset:16
    ds_read_b128 v[44:47], v{ER} offset:17424""")
    for hf in range(2):
        a(f"s_waitcnt lgkmcnt({3 - 2*hf})")
        for p in range(2*hf, 2*hf + 2): a(f"v_pk_add_f32 v[{32+2*p}:{33+2*p}], v[{32+2*p}:{33+2*p}], v[{XU+2*p}:{XU+2*p+1}]")
        a(f"s_waitcnt lgkmcnt({2 - 2*hf})")
        for p in range(2*hf, 2*hf + 2): a(f"v_pk_add_f32 v[{32+2*p}:{33+2*p}], v[{32+2*p}:{33+2*p}], v[{40+2*p}:{41+2*p}]")
        for p in range(2*hf, 2*hf + 2): a(f"v_cvt_pk_bf16_f32 v{hp[p]}, v{32+2*p}, v{33+2*p}")
        for p in range(2*hf, 2*hf + 2):
            a(f"""v_dot2c_f32_bf16 v76, s{sONES}, v{hp[p]}
            v_dot2c_f32_bf16 v77, v{hp[p]}, v{hp[p]}
            v_dot2c_f32_bf16 v78, v{WRP+p}, v{hp[p]}""")
    red8((76, 77, 78))
    a("s_mov_b32 exec_lo, 0x01010101\ns_mov_b32 exec_hi, 0x01010101")
    g.dual([f"buffer_store_dwordx4 v[76:79], v{STS}, {WSR}, s45 offen @"])
    a("s_mov_b64 exec, -1")
    if not GS: stamp(10)
    HU, D, OP = 32, 40, 64
    NP = int(opt.get("np", 1))
    sl = lambda r_: f"buffer_load_dwordx4 v[{r_}:{r_+3}], v{STL}, {WSR}, s{sSTA} offen sc1"
    a(sl(16))
    for p in range(4): a(f"v_lshlrev_b32 v{HU+2*p}, 16, v{hp[p]}\nv_and_b32 v{HU+2*p+1}, 0xffff0000, v{hp[p]}")
    for r_ in (HG+2, HG+6, HN+2, HN+6, 26): a(f"v_mov_b32 v{r_}, s{sTAG}")
    a(f"""v_add_u32 v5, 4096, v{CA}
    s_lshl_b32 s41, s{sRB}, 7
    s_add_u32 s41, s41, {WS_SCORE}""")
    if NP == 1:
        a(f"s_branch Lst1\nLst:\n{sl(16)}")
        g.spin_guard("Lstx")
        a(f"""Lst1:
        s_waitcnt vmcnt(0)
        v_cmp_ne_u32 vcc, s{sTAG}, v19""")
        red8((16, 17, 18))
        a("s_and_b64 vcc, vcc, s[46:47]\ns_cbranch_scc1 Lst\nLstx:")
        SA = 16
    else:
        SA = 92
        m0 = "quad_perm:[1,0,3,2] " + DM
        first = lambda r_: "\n".join(f"v_add_f32_dpp v{SA+i}, v{r_+i}, v{r_+i} {m0}" for i in range(3))
        a(f"""Lst:
        {sl(28)}
        s_waitcnt vmcnt(1)
        v_cmp_ne_u32 vcc, s{sTAG}, v19
        {first(16)}
        s_and_b64 vcc, vcc, s[46:47]
        s_cbranch_scc0 Lstx
        {sl(16)}""")
        g.spin_guard("Lstx")
        a(f"""s_waitcnt vmcnt(1)
        v_cmp_ne_u32 vcc, s{sTAG}, v31
        {first(28)}
        s_and_b64 vcc, vcc, s[46:47]
        s_cbranch_scc1 Lst
        Lstx:""")
        for m in ("quad_perm:[2,3,0,1]", "row_half_mirror"):
            for i in range(3): a(f"v_add_f32_dpp v{SA+i}, v{SA+i}, v{SA+i} {m} {DM}")
    if not GS: stamp(11)
    NMB, RSTD, RR, KEY = 20, 22, HG + 3, 73
    g.ln_stats(SA, SA + 1, NMB, RSTD, SA + 3)
    a(f"""v_fma_f32 v{RR}, v{NMB}, v{WSUM}, v{SA+2}
    v_mul_f32 v{RR}, v{RR}, v{RSTD}
    v_ashrrev_i32 v3, 31, v{RR}
    v_bitop3_b32 v3, v3, v{RR}, s{sSGN} bitop3:0x36
    v_and_or_b32 v{KEY}, v3, s{sKM}, v{ROW}
    ds_write_b32 v{KW}, v{KEY}""")
    for p in range(4): a(f"v_pk_add_f32 v[{D+2*p}:{D+2*p+1}], v[{HU+2*p}:{HU+2*p+1}], v[{NMB}:{NMB+1}] op_sel_hi:[1,0]")
    for p in range(4): a(f"v_cvt_pk_bf16_f32 v{SA+p}, v{D+2*p}, v{D+2*p+1}")
    a(f"s_waitcnt lgkmcnt(0)\ns_barrier\nds_read_b128 v[68:71], v{KR}")
    for p in range(4): a(f"v_lshlrev_b32 v{D+2*p}, 16, v{SA+p}\nv_and_b32 v{D+2*p+1}, 0xffff0000, v{SA+p}")
    for p in range(4): a(f"v_pk_mul_f32 v[{D+2*p}:{D+2*p+1}], v[{D+2*p}:{D+2*p+1}], v[{RSTD}:{RSTD+1}] op_sel_hi:[1,0]")
    a(f"""s_or_b32 s35, s{sCG}, s{sWAVE}
    s_waitcnt lgkmcnt(0)
    v_max3_u32 v27, v68, v69, v70
    v_med3_u32 v25, v68, v69, v70
    v_max_u32 v24, v27, v71
    v_med3_u32 v25, v27, v25, v71
    v_mov_b32 v{HG+7}, v{RR}""")
    merge16(24, 25, 27, [f"v_cvt_pk_bf16_f32 v{hn[p]}, v{D+2*p}, v{D+2*p+1}" for p in range(4)])
    a(f"""s_cbranch_scc1 Lnosc
    s_mov_b64 exec, 1
    buffer_store_dwordx3 v[24:26], v{ZR}, {WSR}, s41 offen sc1
    s_mov_b64 exec, -1
    Lnosc:
    v_cmp_le_u32 s[48:49], v25, v{KEY}
    v_cmp_eq_u32 vcc, v25, v{KEY}
    s_cmp_eq_u64 s[48:49], 0
    s_cbranch_scc1 Lnocand
    v_cndmask_b32 v3, v{CA}, v5, vcc
    s_mov_b64 exec, s[48:49]
    buffer_store_dwordx3 v[{HN}:{HN+2}], v3, {WSR}, s{sCND} offen sc1
    buffer_store_dwordx3 v[{HN+4}:{HN+6}], v3, {WSR}, s{sCND} offen offset:16 sc1
    buffer_store_dwordx4 v[{HG}:{HG+3}], v3, {WSR}, s{sCND} offen offset:2048 sc1
    buffer_store_dwordx4 v[{HG+4}:{HG+7}], v3, {WSR}, s{sCND} offen offset:2064 sc1
    s_mov_b64 exec, -1
    Lnocand:""")
    if not GS: stamp(12)
    for p in range(4): a(f"v_lshlrev_b32 v{D+2*p}, 16, v{hn[p]}\nv_and_b32 v{D+2*p+1}, 0xffff0000, v{hn[p]}")
    for p in range(4): a(f"v_pk_add_f32 v[{D+2*p}:{D+2*p+1}], v[{HU+2*p}:{HU+2*p+1}], v[{D+2*p}:{D+2*p+1}]")
    for p in range(4): a(f"v_cvt_pk_bf16_f32 v{OP+p}, v{D+2*p}, v{D+2*p+1}")
    if opt.get("ow", "ack") == "ack": a("s_waitcnt vmcnt(0)\ns_barrier")
    a(f"""s_andn2_b64 exec, exec, s[48:49]
    {"" if opt.get("ow") == "none" else f"buffer_store_dwordx4 v[{OP}:{OP+3}], v{XA}, s[{sOUT}:{sOUT+3}], s42 offen {OUTS}"}
    s_mov_b64 exec, -1
    s_cmp_eq_u64 s[48:49], 0
    s_cbranch_scc1 Lnocs
    s_movk_i32 s38, {WS_SEL}
    s_mov_b64 exec, s[48:49]
    Lsel:
    buffer_load_dwordx3 v[24:26], v{ZR}, {WSR}, s38 offen sc1""")
    g.spin_guard("Lselx")
    a(f"""s_waitcnt vmcnt(0)
    v_cmp_ne_u32 vcc, s{sTAG}, v26
    s_cbranch_vccnz Lsel
    Lselx:
    s_waitcnt vmcnt(0)""")
    if not GS: stamp(13)
    a(f"""v_cmp_gt_u32 vcc, v25, v{KEY}
    s_cbranch_vccz Lnocs
    s_mov_b64 exec, vcc
    buffer_store_dwordx4 v[{OP}:{OP+3}], v{XA}, s[{sOUT}:{sOUT+3}], s42 offen {OUTS}
    Lnocs:
    s_mov_b64 exec, -1""")
    stamp(14)
    g.flush_stamps(8, 8)
    a("s_endpgm")
    a(f"""Lffn:
    s_cmp_ge_u32 s{sF}, 28
    s_cbranch_scc1 Lidle""")
    srd(a, sX, pWU, 1605632); srd(a, sW, pWD, 1605632); srd(a, sW2, pWG, 1605632)
    a(f"""s_lshl_b32 s40, s{sF}, 7
    s_mul_i32 s35, s{sWAVE}, {8*3584}
    s_add_u32 s40, s40, s35
    s_lshl_b32 s41, s{sWAVE}, 10
    s_and_b32 s36, s{sWAVE}, 1
    s_lshl_b32 s36, s36, 5
    v_and_b32 v3, 16, v2
    v_and_b32 v4, 0x70, v{GA}
    v_xor_b32 v3, v3, v4
    v_xor_b32 v3, s36, v3
    v_lshrrev_b32 v4, 3, v2
    v_mul_u32_u24 v4, 3584, v4
    v_add_u32 v5, v3, v4
    v_xor_b32 v6, 64, v5
    s_barrier""")
    for n in range(7):
        a(f"""s_add_u32 m0, s41, {L_W2 + n*8192}
        s_add_u32 s35, s40, {n*64*3584}
        buffer_load_dwordx4 v5, s[{sW2}:{sW2+3}], s35 offen lds
        s_add_u32 m0, s41, {L_WU + n*8192}
        buffer_load_dwordx4 v6, s[{sX}:{sX+3}], s35 offen lds""")
    a(f"""v_lshrrev_b32 v3, 3, v2
    v_and_b32 v4, 7, v2
    v_mul_u32_u24 v3, 896, v3
    v_lshl_add_u32 v3, v4, 4, v3
    s_mul_i32 s40, s{sF}, {64*896}
    s_min_u32 s35, s{sWAVE}, 6
    s_lshl_b32 s35, s35, 7
    s_add_u32 s40, s40, s35""")
    for n in range(8):
        a(f"s_add_u32 s35, s40, {n*8*896}\nbuffer_load_dwordx4 v[{64+4*n}:{67+4*n}], v3, s[{sW}:{sW+3}], s35 offen")
    F1, F2 = 128, 192
    srd(a, sOUT, pOUT, 1835008)
    a(f"""v_lshrrev_b32 v3, 4, v2
    v_bfe_u32 v4, v2, 2, 2
    v_lshl_add_u32 v5, v3, 3, v4
    v_lshlrev_b32 v5, 7, v5
    v_lshrrev_b32 v4, 1, v4
    v_and_b32 v1, 1, v3
    v_lshl_add_u32 v4, v1, 1, v4
    v_and_b32 v6, 3, v2
    s_lshl_b32 s41, s{sWAVE}, 12
    v_lshl_add_u32 v9, v6, 3, v5
    v_lshl_add_u32 v9, v4, 5, v9
    v_add_u32 v9, s41, v9
    v_lshlrev_b32 v10, 5, v1
    v_xor_b32 v10, v10, v{GA}
    v_add_u32 v10, s41, v10
    v_xor_b32 v14, 64, v10
    v_bfe_u32 v15, v2, 1, 1
    v_lshl_add_u32 v4, v15, 2, v4
    v_xor_b32 v4, s{sWAVE}, v4
    v_and_b32 v6, 1, v2
    v_lshl_add_u32 v8, v6, 3, v5
    v_lshl_add_u32 v8, v4, 4, v8
    v_mul_u32_u24 v15, {L_W2 - L_WU}, v15
    v_sub_u32 v8, v8, v15
    v_add_u32 v8, {L_W2}, v8
    v_bfe_u32 v15, v2, 2, 1
    v_lshl_add_u32 v15, v15, 1, v6
    v_mul_u32_u24 v11, 448, v15
    v_lshl_add_u32 v11, v3, 4, v11
    v_add_u32 v11, {L_XS}, v11
    v_mul_u32_u24 v44, 0xaaaa, v6
    v_add_u32 v44, 0x4444, v44
    v_bfe_u32 v15, v2, 1, 1
    v_lshl_add_u32 v13, v1, 1, v15
    v_lshlrev_b32 v13, 6, v13
    v_lshl_add_u32 v13, v6, 1, v13
    v_and_b32 v15, 4, v2
    s_lshl_b32 s35, s{sWAVE}, 3
    s_add_u32 s35, s35, {L_A}
    v_add3_u32 v13, v13, v15, s35
    v_and_b32 v15, 3, v2
    v_lshlrev_b32 v15, 6, v15
    v_lshl_add_u32 v15, v3, 4, v15
    v_add_u32 v15, {L_A}, v15
    v_mov_b32 v52, {L_A + 256}
    v_mov_b32 v53, v52
    v_mov_b32 v54, v52
    v_mov_b32 v55, v52
    ds_write_b128 v52, v[{ZR}:{ZR+3}]
    s_mov_b32 exec_lo, 0x000f000f
    s_mov_b32 exec_hi, 0x000f000f
    v_mov_b32 v52, v15
    s_lshl_b64 exec, exec, 4
    v_mov_b32 v53, v15
    s_lshl_b64 exec, exec, 4
    v_mov_b32 v54, v15
    s_lshl_b64 exec, exec, 4
    v_mov_b32 v55, v15
    s_mov_b64 exec, -1
    v_mov_b32 v32, 0
    v_mov_b32 v33, 0
    v_mov_b32 v34, 0
    v_mov_b32 v35, 0
    v_mov_b32 v36, 0
    v_mov_b32 v37, 0
    v_mov_b32 v38, 0
    v_mov_b32 v39, 0
    v_mov_b32 v49, s{sTAG}
    v_mov_b32 v51, s{sTAG}
    v_xor_b32 v16, 32, v9
    v_xor_b32 v17, 64, v9
    v_xor_b32 v18, 96, v9
    s_mul_i32 s35, s{sWAVE}, 56
    s_add_u32 s35, s35, s{sF}
    s_lshl_b32 s35, s35, 8
    s_add_u32 s42, s35, {WS_PART}
    s_add_u32 s43, s42, {14*28*256}
    v_lshrrev_b32 v15, 5, v2
    v_mul_u32_u24 v15, {28*256 - 256}, v15
    v_lshl_add_u32 v15, v2, 3, v15
    s_waitcnt vmcnt(8)
    s_barrier""")
    stamp(8)
    for ks in range(14):
        for s_ in range(2): a(f"ds_read_b64_tr_b16 v[{F1+4*ks+2*s_}:{F1+4*ks+2*s_+1}], v8 offset:{ks*4096 + s_*512}")
        if ks % 4 == 3: a("s_waitcnt lgkmcnt(4)")
    a(f"""s_cmp_eq_u32 s{sWAVE}, 7
    s_cbranch_scc1 Lf1""")
    for ks in range(2):
        a(f"s_waitcnt vmcnt({4 - 4*ks}) lgkmcnt(0)")
        for n in range(4): a(f"ds_write_b128 v{(10, 14)[n&1]}, v[{64+16*ks+4*n}:{67+16*ks+4*n}] offset:{1024*n}")
        for ct in range(4):
            for s_ in range(2):
                w = F2 + ct*8 + ks*4 + 2*s_
                a(f"ds_read_b64_tr_b16 v[{w}:{w+1}], v{(9, 16, 17, 18)[ct]} offset:{s_*512}")
    a(f"""s_branch Lf2
    Lf1:
    v_and_b32 v3, 31, v2
    v_lshlrev_b32 v3, 7, v3
    v_min_u32 v5, 55, v2
    v_lshlrev_b32 v4, 2, v5
    v_add_u32 v4, {L_XS}, v4
    v_add_u32 v12, 896, v4
    v_lshlrev_b32 v5, 4, v5
    s_cmp_ge_u32 s{sF}, 14
    s_cselect_b32 s36, 14, 0
    s_cselect_b32 s37, 896, 0
    s_sub_u32 s36, s{sF}, s36
    s_lshl_b32 s43, s36, 6
    s_lshr_b32 s35, s43, 1
    s_add_u32 s37, s37, s35
    s_add_u32 s37, s37, {L_XS}
    s_mul_i32 s41, s{sF}, {28*256}
    s_add_u32 s41, s41, {WS_PART}
    s_add_u32 s42, s41, 4096
    v_and_b32 v9, 15, v2
    v_lshlrev_b32 v10, 2, v9
    v_lshrrev_b32 v9, 1, v9
    v_and_b32 v6, 1, v2
    v_mul_u32_u24 v14, 448, v6
    v_lshl_add_u32 v14, v9, 2, v14
    v_add_u32 v14, s37, v14
    s_lshl_b32 s36, s36, 7
    v_lshl_add_u32 v9, v9, 4, s36
    v_cmp_eq_u32 s[44:45], 1, v6
""")
    stamp(9)
    def scores(l):
        a(f"""{l}:
        buffer_load_dwordx3 v[24:26], v3, {WSR}, s38 offen sc1""")
        g.spin_guard(l + "x")
        a(f"""s_waitcnt vmcnt(0)
        v_cmp_ne_u32 vcc, s{sTAG}, v26
        s_cbranch_vccnz {l}
        {l}x:
        s_waitcnt vmcnt(0)""")
        top2(24, 25, 26, sK1, sK2)
    NQ = int(opt.get("nq", 1))
    ld = lambda k: f"buffer_load_dwordx3 v[{96+4*k}:{98+4*k}], v3, {WSR}, s47 offen sc1"
    a(f"""s_mov_b32 s{sK1}, 0
    s_mov_b32 s{sK2}, 0
    s_movk_i32 s47, {WS_SCORE}
    s_movk_i32 s70, {opt.get("th", 28)}
    Lfs:
    s_mov_b32 exec_hi, 0""")
    for k in range(NQ - 1): a(ld(k))
    a("Lfs0:")
    g.spin_guard("Lfs_0")
    for k in range(NQ):
        a(f"""{ld((k + NQ - 1) % NQ)}
        s_waitcnt vmcnt({NQ - 1})
        v_cmp_eq_u32 vcc, s{sTAG}, v{98+4*k}
        s_bcnt1_i32_b32 s35, vcc_lo
        s_cmp_ge_u32 s35, s70
        {f"s_cbranch_scc1 Lfs_{k}" if k < NQ - 1 else "s_cbranch_scc0 Lfs0"}""")
    for k in reversed(range(NQ)):
        a(f"""Lfs_{k}:
        v_cndmask_b32 v56, 0, v{96+4*k}, vcc
        v_cndmask_b32 v57, 0, v{97+4*k}, vcc
        {"s_branch Lfs1" if k else ""}""")
    a(f"""Lfs1:
    s_add_u32 s70, s35, 1
    v_cmp_lt_u32 vcc, s{sK2}, v56
    v_cmp_ne_u32 s[68:69], s{sK1}, v56
    s_mov_b32 exec_hi, -1
    s_and_b64 vcc, vcc, s[68:69]
    s_cbranch_scc1 Lfnew
    Lfs2:
    s_bitcmp1_b32 s{sSPIN}, 31
    s_cbranch_scc1 Lf2
    s_cmp_le_u32 s70, 32
    s_cbranch_scc1 Lfs
    Lf2:
    s_waitcnt lgkmcnt(0)
    s_barrier""")
    o = g.a; g.a = a2 = Asm(); A[0] = a2
    a2("Lfnew:")
    top2(56, 57, 58, sK1, sK2)
    stamp(10)
    a2(f"""s_bfe_u32 s38, s{sK1}, 0x50006
    s_bfe_u32 s39, s{sK2}, 0x50006
    s_cmp_eq_u32 s38, s39
    s_cselect_b32 s35, 4096, 0
    s_lshl_b32 s38, s38, 13
    s_add_u32 s38, s38, {WS_CAND}
    s_lshl_b32 s39, s39, 13
    s_add_u32 s39, s39, s35
    s_add_u32 s39, s39, {WS_CAND}
    s_cmp_ge_u32 s{sF}, 14
    s_cselect_b32 s46, s39, s38
    s_cselect_b32 s40, s{sK2}, s{sK1}
    Lfc:
    buffer_load_dwordx3 v[16:18], v5, {WSR}, s38 offen sc1
    buffer_load_dwordx3 v[20:22], v5, {WSR}, s38 offen offset:896 sc1
    buffer_load_dwordx3 v[24:26], v5, {WSR}, s39 offen sc1
    buffer_load_dwordx3 v[28:30], v5, {WSR}, s39 offen offset:896 sc1
    buffer_load_dwordx4 v[40:43], v9, {WSR}, s46 offen offset:2048 sc1
    buffer_load_dwordx3 v[60:62], v3, {WSR}, s47 offen sc1""")
    g.spin_guard("Lf2")
    a2(f"""s_waitcnt vmcnt(2)
    v_xor_b32 v18, s{sTAG}, v18
    v_xor_b32 v22, s{sTAG}, v22
    v_xor_b32 v26, s{sTAG}, v26
    v_xor_b32 v30, s{sTAG}, v30
    v_or3_b32 v18, v18, v22, v26
    v_or_b32 v18, v18, v30
    v_cmp_ne_u32 vcc, 0, v18
    s_cbranch_vccnz Lfc
    ds_write2_b32 v4, v16, v17 offset1:112
    ds_write2_b32 v4, v20, v21 offset0:56 offset1:168
    ds_write2_b32 v12, v24, v25 offset1:112
    ds_write2_b32 v12, v28, v29 offset0:56 offset1:168
    s_cmp_gt_u32 s70, 32
    s_cbranch_scc1 Lf2
    s_waitcnt vmcnt(0)
    s_mov_b32 exec_hi, 0
    v_cmp_eq_u32 vcc, s{sTAG}, v62
    s_bcnt1_i32_b32 s35, vcc_lo
    v_cndmask_b32 v56, 0, v60, vcc
    v_cndmask_b32 v57, 0, v61, vcc
    s_branch Lfs1""")
    g.a = o; A[0] = o; newcode = "\n".join(a2.L)
    stamp(11)
    for s_ in range(7): a(f"ds_read_b128 v[{64+4*s_}:{67+4*s_}], v11 offset:{64*s_}")
    for s_ in range(7):
        a(f"s_waitcnt lgkmcnt({6-s_})")
        a(f"{S16} v[32:35], v[{64+4*s_}:{67+4*s_}], v[{F1+8*s_}:{F1+8*s_+7}], v44")
    a(f"""s_cmp_eq_u32 s{sWAVE}, 7
    v_add_f32 v20, v32, v33""")
    g.rbf(20, 20)
    a(f"""v_mul_f32 v21, {hex(f2u(-math.log2(math.e)))}, v20
    v_exp_f32 v21, v21
    v_mov_b32_dpp v22, v20 row_ror:8 row_mask:0xf bank_mask:0xf
    v_add_f32 v21, 1.0, v21
    v_rcp_f32 v21, v21
    s_mov_b32 exec_lo, 0x00ff00ff
    v_mul_f32 v20, v20, v21""")
    g.rbf(20, 20)
    a(f"""s_mov_b32 exec_hi, 0
    v_mul_f32 v20, v20, v22
    v_cvt_pk_bf16_f32 v20, v20, v20
    ds_write_b16 v13, v20
    s_mov_b64 exec, -1
    s_waitcnt lgkmcnt(0)
    s_barrier""")
    stamp(12)
    a("s_cbranch_scc1 Lfin")
    for ct in range(4): a(f"ds_read_b128 v[{64+4*ct}:{67+4*ct}], v{52+ct}")
    for ct in range(4):
        a(f"s_waitcnt lgkmcnt({3-ct})\n{S16} v[36:39], v[{64+4*ct}:{67+4*ct}], v[{F2+8*ct}:{F2+8*ct+7}], v44")
    for t in range(2):
        a(f"""v_add_f32 v{48+2*t}, v{36+2*t}, v{37+2*t}
        buffer_store_dwordx2 v[{48+2*t}:{49+2*t}], v15, {WSR}, s{42+t} offen sc1""")
    if opt.get("pd") == "2": a("s_barrier")
    a("Lfend:")
    stamp(13)
    g.flush_stamps(8, 8)
    a("s_endpgm")
    a(newcode)
    PD = int(opt.get("pd", 1))
    if PD == 2: a("Lfin:\ns_barrier")
    a(f"""Lfh:
    buffer_load_dwordx4 v[40:43], v9, {WSR}, s46 offen offset:2048 sc1""")
    g.spin_guard("Lfhx")
    a(f"""{"Lfin:" if PD < 2 else ""}
    ds_read_b32 v20, v14
    s_waitcnt vmcnt(0)
    v_cmp_ne_u32 vcc, s{sTAG}, v42
    s_cbranch_vccnz Lfh
    Lfhx:
    s_and_b32 s40, s40, 0x7ff
    s_mul_i32 s40, s40, 896
    s_add_u32 s40, s40, s43
    s_waitcnt vmcnt(0) lgkmcnt(0)
    {f"buffer_load_dword v118, v10, s[{sOUT}:{sOUT+3}], s40 offen sc1" if opt.get("ft") else ""}
    v_cndmask_b32 v16, v40, v41, s[44:45]""")
    g.rbf(19, 43)
    a(f"""v_mul_f32 v19, {hex(f2u(-math.log2(math.e)))}, v19
    v_exp_f32 v19, v19
    v_lshlrev_b32 v22, 16, v20
    v_add_f32 v19, 1.0, v19
    v_rcp_f32 v19, v19
    v_and_b32 v23, 0xffff0000, v20
    v_cvt_pk_bf16_f32 v18, v19, v19
    v_and_b32 v17, 0xffff0000, v16
    v_lshlrev_b32 v16, 16, v16
    v_lshlrev_b32 v18, 16, v18""")
    if PD == 1: a("s_barrier")
    stamp(15)
    a("Lfp:")
    for n in range(7): a(f"buffer_load_dwordx4 v[{64+4*n}:{67+4*n}], v{GA}, {WSR}, s{41 + n // 4} offen offset:{1024*(n % 4)} sc1")
    g.spin_guard("Lfpx")
    for n in range(7):
        a(f"s_waitcnt vmcnt({6-n})")
        b = 64 + 4*n
        if n == 0: a(f"v_and_b32 v24, v{b+1}, v{b+3}\nv_or_b32 v25, v{b+1}, v{b+3}")
        else:
            a(f"""v_bitop3_b32 v24, v24, v{b+1}, v{b+3} bitop3:0x80
            v_or3_b32 v25, v25, v{b+1}, v{b+3}
            v_add_f32 v64, v64, v{b}
            v_add_f32 v66, v66, v{b+2}""")
    a(f"""v_cmp_ne_u32 vcc, s{sTAG}, v24
    v_cmp_ne_u32 s[46:47], s{sTAG}, v25
    v_mov_b32 v65, v64
    v_mov_b32 v67, v66
    s_or_b64 vcc, vcc, s[46:47]
    s_cbranch_scc1 Lfp
    Lfpx:
    s_waitcnt vmcnt(0)
    v_permlane32_swap_b32 v65, v64
    v_permlane32_swap_b32 v67, v66
    v_add_f32 v64, v64, v65
    v_add_f32 v66, v66, v67
    v_mov_b32 v65, v64
    v_mov_b32 v67, v66
    v_permlane16_swap_b32 v65, v64
    v_permlane16_swap_b32 v67, v66
    v_add_f32 v64, v64, v65
    v_add_f32 v66, v66, v67
    v_cvt_pk_bf16_f32 v65, v64, v66
    v_lshlrev_b32 v64, 16, v65
    v_and_b32 v65, 0xffff0000, v65
    v_mul_f32 v64, v64, v18
    v_mul_f32 v65, v65, v18
    v_cvt_pk_bf16_f32 v65, v64, v65
    v_lshlrev_b32 v64, 16, v65
    v_and_b32 v65, 0xffff0000, v65
    v_add_f32 v64, v64, v22
    v_add_f32 v65, v65, v23
    v_cvt_pk_bf16_f32 v65, v64, v65
    v_lshlrev_b32 v64, 16, v65
    v_and_b32 v65, 0xffff0000, v65
    v_add_f32 v64, v64, v16
    v_add_f32 v65, v65, v17
    v_cvt_pk_bf16_f32 v64, v64, v65
    s_mov_b64 exec, 0xffff
    buffer_store_dword v64, v10, s[{sOUT}:{sOUT+3}], s40 offen {opt.get('fs', 'plain').replace('plain', '')}
    s_mov_b64 exec, -1""")
    stamp(14)
    g.flush_stamps(8, 8)
    a("s_endpgm")
    a(f"""Lidle:
    s_lshl_b32 s35, s{sF}, 3
    s_add_u32 s35, s35, s{sWAVE}
    s_cmp_eq_u32 s35, {28*8}
    s_cbranch_scc0 Lfend
    v_and_b32 v3, 31, v2
    v_lshlrev_b32 v3, 7, v3
    s_movk_i32 s38, {WS_SCORE}""")
    scores("Lan")
    a(f"""v_mov_b32 v32, s{sK1}
    v_mov_b32 v33, s{sK2}
    v_mov_b32 v34, s{sTAG}
    s_mov_b64 exec, 1
    buffer_store_dwordx3 v[32:34], v{ZR}, {WSR}, 0 offen offset:{WS_SEL} sc1
    buffer_store_dword v34, v{ZR}, {WSR}, 0 offen
    s_mov_b64 exec, -1
    s_branch Lfend""")
```

```python
import math
from asmlib import *
from gen import *

S16 = "v_smfmac_f32_16x16x64_bf16"
def emit(g):
    A = [g.a]
    a = lambda s: A[0](s)
    stamp = g.stamp; opt = g.opt
    OUTS = opt.get("outs", "sc1").replace("plain", "")
    def red8(regs):
        for m in ("quad_perm:[1,0,3,2]", "quad_perm:[2,3,0,1]", "row_half_mirror"):
            for r in regs: a(f"v_add_f32_dpp v{r}, v{r}, v{r} {m} row_mask:0xf bank_mask:0xf")
    DM = "row_mask:0xf bank_mask:0xf"
    def merge16(m1, m2, t, fill=()):
        fill = list(fill)
        for k in (1, 2, 4, 8):
            a(f"""v_min_u32_dpp v{t}, v{m1}, v{m1} row_ror:{k} {DM}
            v_max_u32_dpp v{m1}, v{m1}, v{m1} row_ror:{k} {DM}
            v_max_u32_dpp v{m2}, v{m2}, v{m2} row_ror:{k} {DM}""")
            a(f"v_max_u32 v{m2}, v{m2}, v{t}")
            if fill: a(fill.pop(0))
        for x in fill: a(x)
    def top2(m1, m2, t, k1, k2):
        merge16(m1, m2, t)
        a(f"""v_readlane_b32 s{k1}, v{m1}, 0
        v_readlane_b32 s35, v{m1}, 16
        v_readlane_b32 s{k2}, v{m2}, 0
        v_readlane_b32 s36, v{m2}, 16
        s_min_u32 s37, s{k1}, s35
        s_max_u32 s{k1}, s{k1}, s35
        s_max_u32 s{k2}, s{k2}, s36
        s_max_u32 s{k2}, s{k2}, s37""")
    a(f"s_cmp_ge_u32 s{sJ}, 28\ns_cbranch_scc1 Lffn")
    WOF, OF, ACC = 128, 32, 16
    XP, WRP, WRA, XU, WSUM = PF, PF + 4, PF + 8, 64, 72
    GS = opt.get("gstamps")
    g.ool.append(f"""Lclr:
    buffer_load_dword v{F2V}, v{F2A}, {WSR}, s{sF2C} offen sc1
    s_sub_u32 s{sSPIN}, s{sSPIN}, 1
    s_bitcmp1_b32 s{sSPIN}, 31
    s_cbranch_scc1 Lclr_ok
    s_waitcnt vmcnt(0)
    v_cmp_ne_u32 vcc, s{sTAG}, v{F2V}
    s_cbranch_vccnz Lclr
    s_branch Lclr_ok""")
    stamp(8)
    def oload(hl): a(f"s_add_u32 s35, s{sOA if hl < 4 else sOB}, {hl*131072}\nbuffer_load_dwordx4 v[{OF+4*hl}:{OF+4*hl+3}], v{OA}, {WSR}, s35 offen sc1")
    NO0 = int(opt.get("no0", 4)); NO1 = int(opt.get("no1", 8))
    OD = int(opt.get("od", 4))
    def trs(hl):
        if hl == 4:
            for k in range(8): a(f"v_subrev_u32 v{TA+k}, s{sTS}, v{TA+k}")
        for ct in range(4):
            w = WOF + (hl*4 + ct)*4
            a(f"ds_read_b64_tr_b16 v[{w}:{w+1}], v{TA+ct} offset:{hl*3584}")
            a(f"ds_read_b64_tr_b16 v[{w+2}:{w+3}], v{TA+4+ct} offset:{hl*3584 + 512}")
    def mf4(hl, first):
        return [f"{M16} v[{ACC+4*ct}:{ACC+4*ct+3}], v[{WOF+(hl*4+ct)*4}:{WOF+(hl*4+ct)*4+3}], v[{OF+4*hl}:{OF+4*hl+3}], {'0' if first else f'v[{ACC+4*ct}:{ACC+4*ct+3}]'}" for ct in range(4)]
    vm = Vm()
    def allq(regs, tmp):
        for sw in ("v_permlane32_swap_b32", "v_permlane16_swap_b32"):
            for i, r in enumerate(regs): a(f"v_mov_b32 v{tmp+i}, v{r}")
            for i, r in enumerate(regs): a(f"{sw} v{tmp+i}, v{r}")
            for i, r in enumerate(regs): a(f"v_add_f32 v{r}, v{tmp+i}, v{r}")
    nt = nl = nm = 0
    for ch in opt.get("os", "ptttttlllltttllllmmmmmmmm"):
        if ch == "p":
            a(f"""s_lshl_b32 s42, s{sCG}, 7
            s_add_u32 s43, s42, 7168
            s_cmp_eq_u32 s{sGRP}, 1
            s_cbranch_scc1 Lp1
            buffer_load_dwordx4 v[{PF}:{PF+3}], v{XA}, s[{sX}:{sX+3}], s42 offen
            buffer_load_dwordx4 v[{PF+4}:{PF+7}], v{XA}, s[{sX}:{sX+3}], s43 offen
            s_branch Lp2
            Lp1:
            v_lshrrev_b32 v1, 1, v{CA}""")
            srd(a, sW, pWR, 896)
            for ct in range(4): a(f"buffer_load_dwordx2 v[{PF+2*ct}:{PF+2*ct+1}], v1, s[{sW}:{sW+3}], s42 offen offset:{32*ct}")
            a(f"buffer_load_dwordx4 v[{PF+8}:{PF+11}], v{GA}, s[{sW}:{sW+3}], 0 offen\nLp2:")
        elif ch == "t":
            if nt: a("s_waitcnt lgkmcnt(6)")
            trs(nt)
            if nt == 0:
                a(f"v_cmp_ne_u32 vcc, s{sTAG}, v{F2V}\ns_cbranch_vccnz Lclr\nLclr_ok:")
                a("s_barrier")
            nt += 1
            if nt == 8:
                a(f"""s_cmp_eq_u32 s{sGRP}, 1
                s_waitcnt vmcnt({len(vm.q)}) lgkmcnt(6)
                s_cbranch_scc1 Li1
                ds_write_b128 v{TR}, v[{PF}:{PF+3}]
                ds_write_b128 v{TR}, v[{PF+4}:{PF+7}] offset:{8*144}""")
                for ct in range(4): a(f"ds_read_b64 v[{64+2*ct}:{65+2*ct}], v{TD} offset:{32*ct}")
                a(f"""s_branch Li2
                Li1:
                v_mov_b32 v{WSUM}, 0""")
                for p in range(8): a(f"v_mov_b32 v{64+p}, 0")
                for p in range(4): a(f"v_dot2c_f32_bf16 v{WSUM}, s{sONES}, v{PF+8+p}")
                a("Li2:")
        elif ch == "l":
            assert nt > 0
            oload(nl); vm.add(nl); nl += 1
        else:
            assert nt == 8
            if nm == 0:
                a("s_waitcnt lgkmcnt(0)")
                for p in range(8): a(f"v_lshlrev_b32 v{ACC+2*p}, 16, v{64+p}\nv_and_b32 v{ACC+2*p+1}, 0xffff0000, v{64+p}")
            a(f"s_waitcnt vmcnt({vm.wait(nm)})")
            if GS and nm in (0, 2, 4, 6): stamp(10 + nm // 2)
            a("\n".join(mf4(nm, False)))
            if nm == 1: a(f"v_and_b32 v3, v{OF+3}, v{OF+7}")
            elif nm > 1: a(f"v_and_b32 v3, v3, v{OF+4*nm+3}")
            if nm < 3: a(f"v_mov_b32 v{76+nm}, 0")
            if nm == 3: a(f"v_mov_b32 v79, s{sTAG}")
            if nm == 4: a(f"s_lshl_b32 s45, s42, 1\ns_add_u32 s45, s45, s{sSTA}")
            nm += 1
    assert nt == nl == nm == 8
    stamp(15)
    a(f"""v_cmp_le_i32 vcc, 0, v3
    s_cbranch_vccnz Lre
    Lrex:""")
    r = f"Lre:\nv_bfrev_b32 v5, 2\n"
    M = lambda hl: f"s[{64+2*hl}:{65+2*hl}]"
    for hl in range(8): r += f"v_cmp_le_i32 {M(hl)}, 0, v{OF+4*hl+3}\n"
    r += "Lre1:\n"
    for u in range(4):
        r += f"s_or_b64 s[36:37], {M(2*u)}, {M(2*u+1)}\ns_cbranch_scc0 Lre2_{u}\n"
        for hl in (2*u, 2*u + 1):
            r += f"""v_cndmask_b32 v{3 + (hl & 1)}, v5, v{OA}, {M(hl)}
            s_add_u32 s35, s{sOA if hl < 4 else sOB}, {hl*131072}
            buffer_load_dwordx4 v[{OF+4*hl}:{OF+4*hl+3}], v{3 + (hl & 1)}, {WSR}, s35 offen sc1
            """
        r += f"Lre2_{u}:\n"
    r += f"s_mov_b64 s[46:47], 0\ns_sub_u32 s{sSPIN}, s{sSPIN}, 1\ns_waitcnt vmcnt(0)\n"
    NL = "\n"
    for u in range(4):
        r += f"""s_or_b64 s[36:37], {M(2*u)}, {M(2*u+1)}
        s_cbranch_scc0 Lre3_{u}
        v_cmp_le_i32 vcc, 0, v{OF+8*u+3}
        v_cmp_le_i32 s[36:37], 0, v{OF+8*u+7}
        {NL.join(mf4(2*u, False) + mf4(2*u + 1, False))}
        s_and_b64 {M(2*u)}, {M(2*u)}, vcc
        s_and_b64 {M(2*u+1)}, {M(2*u+1)}, s[36:37]
        s_or_b64 s[46:47], s[46:47], {M(2*u)}
        s_or_b64 s[46:47], s[46:47], {M(2*u+1)}
        Lre3_{u}:
        """
    r += f"""s_cmp_eq_u64 s[46:47], 0
    s_cbranch_scc1 Lrex
    s_bitcmp1_b32 s{sSPIN}, 31
    s_cbranch_scc0 Lre1
    s_branch Lrex"""
    g.ool.insert(0, r)
    stamp(9)
    a(f"s_cmp_eq_u32 s{sGRP}, 1\ns_cbranch_scc1 Lsec")
    for ct in range(4): a(f"ds_write_b128 v{EW}, v[{ACC+4*ct}:{ACC+4*ct+3}] offset:{1024*ct}")
    a("s_waitcnt lgkmcnt(0)\ns_barrier")
    g.flush_stamps(8, 8)
    a("s_endpgm\nLsec:\ns_barrier")
    for ct in range(4): a(f"ds_read_b128 v[{32+4*ct}:{35+4*ct}], v{EW} offset:{1024*ct}")
    HG, HN, HU, D, OP = 128, 144, 160, 176, 192
    hp = [HG + 4*(p >> 1) + (p & 1) for p in range(8)]; hn = [HN + 4*(p >> 1) + (p & 1) for p in range(8)]
    for ct in range(4):
        a(f"s_waitcnt lgkmcnt({3 - ct})")
        for p in (2*ct, 2*ct + 1): a(f"v_pk_add_f32 v[{32+2*p}:{33+2*p}], v[{32+2*p}:{33+2*p}], v[{ACC+2*p}:{ACC+2*p+1}]")
        for p in (2*ct, 2*ct + 1): a(f"v_cvt_pk_bf16_f32 v{hp[p]}, v{32+2*p}, v{33+2*p}")
        for p in (2*ct, 2*ct + 1):
            a(f"""v_dot2c_f32_bf16 v76, s{sONES}, v{hp[p]}
            v_dot2c_f32_bf16 v77, v{hp[p]}, v{hp[p]}
            v_dot2c_f32_bf16 v78, v{PF+p}, v{hp[p]}""")
    allq((76, 77, 78), 64)
    a("s_mov_b64 exec, 0xffff")
    g.dual([f"buffer_store_dwordx4 v[76:79], v{GA}, {WSR}, s45 offen @"])
    a("s_mov_b64 exec, -1")
    if not GS: stamp(10)
    sl = f"buffer_load_dwordx4 v[16:19], v{GA}, {WSR}, s{sSTA} offen sc1\nbuffer_load_dwordx4 v[20:23], v{STL}, {WSR}, s{sSTA} offen offset:1024 sc1"
    a(sl)
    for i, k in enumerate((1, 2, 4, 8)):
        a(f"v_add_f32_dpp v{WSUM}, v{WSUM}, v{WSUM} row_ror:{k} {DM}")
        for p in (2*i, 2*i + 1): a(f"v_lshlrev_b32 v{HU+2*p}, 16, v{hp[p]}\nv_and_b32 v{HU+2*p+1}, 0xffff0000, v{hp[p]}")
    allq((WSUM,), 64)
    for ct in range(4): a(f"v_mov_b32 v{HG+4*ct+2}, s{sTAG}\nv_mov_b32 v{HN+4*ct+2}, s{sTAG}")
    srd(a, sOUT, pOUT, 1835008)
    a(f"""v_mov_b32 v26, s{sTAG}
    v_add_u32 v5, 4096, v{CA}
    s_lshl_b32 s41, s{sRB}, 7
    s_add_u32 s41, s41, {WS_SCORE}
    s_branch Lst1
    Lst:
    {sl}""")
    g.spin_guard("Lstx")
    a(f"""Lst1:
    s_waitcnt vmcnt(0)
    v_cmp_ne_u32 s[46:47], s{sTAG}, v23
    v_cmp_ne_u32 vcc, s{sTAG}, v19
    v_add_f32 v16, v16, v20
    v_add_f32 v17, v17, v21
    v_add_f32 v18, v18, v22
    s_and_b32 s47, s47, 0xffff
    s_or_b64 vcc, vcc, s[46:47]
    s_cbranch_scc1 Lst
    Lstx:""")
    if not GS: stamp(11)
    allq((16, 17, 18), 64)
    NMB, RSTD, RR, KEY = 20, 22, HG + 3, 73
    g.ln_stats(16, 17, NMB, RSTD, 19)
    a(f"""v_fma_f32 v{RR}, v{NMB}, v{WSUM}, v18
    v_mul_f32 v{RR}, v{RR}, v{RSTD}
    v_ashrrev_i32 v3, 31, v{RR}
    v_bitop3_b32 v3, v3, v{RR}, s{sSGN} bitop3:0x36
    v_and_or_b32 v{KEY}, v3, s{sKM}, v{ROW}
    ds_write_b32 v{KW}, v{KEY}""")
    for p in range(8): a(f"v_pk_add_f32 v[{D+2*p}:{D+2*p+1}], v[{HU+2*p}:{HU+2*p+1}], v[{NMB}:{NMB+1}] op_sel_hi:[1,0]")
    for p in range(8): a(f"v_cvt_pk_bf16_f32 v{32+p}, v{D+2*p}, v{D+2*p+1}")
    a(f"s_waitcnt lgkmcnt(0)\ns_barrier\nds_read_b128 v[68:71], v{KR}")
    for p in range(8): a(f"v_lshlrev_b32 v{D+2*p}, 16, v{32+p}\nv_and_b32 v{D+2*p+1}, 0xffff0000, v{32+p}")
    for p in range(8): a(f"v_pk_mul_f32 v[{D+2*p}:{D+2*p+1}], v[{D+2*p}:{D+2*p+1}], v[{RSTD}:{RSTD+1}] op_sel_hi:[1,0]")
    a(f"""s_or_b32 s35, s{sCG}, s{sRT}
    s_waitcnt lgkmcnt(0)
    v_max3_u32 v27, v68, v69, v70
    v_med3_u32 v25, v68, v69, v70
    v_max_u32 v24, v27, v71
    v_med3_u32 v25, v27, v25, v71
    v_cvt_pk_bf16_f32 v{hn[0]}, v{D}, v{D+1}""")
    merge16(24, 25, 27, [f"v_cvt_pk_bf16_f32 v{hn[p]}, v{D+2*p}, v{D+2*p+1}" for p in range(1, 4)])
    a(f"""s_cbranch_scc1 Lnosc
    s_mov_b64 exec, 1
    buffer_store_dwordx3 v[24:26], v{ZR}, {WSR}, s41 offen sc1
    s_mov_b64 exec, -1
    Lnosc:
    v_cmp_le_u32 s[48:49], v25, v{KEY}
    v_cmp_eq_u32 vcc, v25, v{KEY}""")
    for p in range(4, 8): a(f"v_cvt_pk_bf16_f32 v{hn[p]}, v{D+2*p}, v{D+2*p+1}")
    a(f"""s_cmp_eq_u64 s[48:49], 0
    s_cbranch_scc1 Lnocand
    v_cndmask_b32 v3, v{CA}, v5, vcc
    s_mov_b64 exec, s[48:49]""")
    for ct in range(4): a(f"buffer_store_dwordx3 v[{HN+4*ct}:{HN+4*ct+2}], v3, {WSR}, s{sCND} offen offset:{64*ct} sc1")
    for ct in range(1, 4): a(f"v_mov_b32 v{HG+4*ct+3}, v{RR}")
    for ct in range(4): a(f"buffer_store_dwordx4 v[{HG+4*ct}:{HG+4*ct+3}], v3, {WSR}, s{sCND} offen offset:{2048 + 64*ct} sc1")
    a("s_mov_b64 exec, -1\nLnocand:")
    if not GS: stamp(12)
    for p in range(8): a(f"v_lshlrev_b32 v{D+2*p}, 16, v{hn[p]}\nv_and_b32 v{D+2*p+1}, 0xffff0000, v{hn[p]}")
    for p in range(8): a(f"v_pk_add_f32 v[{D+2*p}:{D+2*p+1}], v[{HU+2*p}:{HU+2*p+1}], v[{D+2*p}:{D+2*p+1}]")
    for p in range(8): a(f"v_cvt_pk_bf16_f32 v{32+p}, v{D+2*p}, v{D+2*p+1}")
    for ct in range(4): a(f"ds_write_b64 v{TD}, v[{32+2*ct}:{33+2*ct}] offset:{32*ct}")
    a(f"""v_lshrrev_b32 v3, 3, v2
    s_lshl_b32 s35, s{sRT}, 6
    s_add_u32 s35, s35, {L_KEY}
    v_lshl_add_u32 v3, v3, 2, s35
    ds_read_b128 v[{OP}:{OP+3}], v{TR}
    ds_read_b128 v[{OP+4}:{OP+7}], v{TR} offset:{8*144}
    ds_read2_b32 v[74:75], v3 offset1:8""")
    if opt.get("ow", "ack") == "ack": a("s_waitcnt vmcnt(0)\ns_barrier")
    a(f"""s_waitcnt lgkmcnt(0)
    v_cmp_gt_u32 s[44:45], v25, v74
    v_cmp_gt_u32 s[46:47], v25, v75
    s_mov_b64 exec, s[44:45]
    buffer_store_dwordx4 v[{OP}:{OP+3}], v{XA}, s[{sOUT}:{sOUT+3}], s42 offen {OUTS}
    s_mov_b64 exec, s[46:47]
    buffer_store_dwordx4 v[{OP+4}:{OP+7}], v{XA}, s[{sOUT}:{sOUT+3}], s43 offen {OUTS}
    s_mov_b64 exec, -1
    s_cmp_eq_u64 s[48:49], 0
    s_cbranch_scc1 Lnocs
    s_movk_i32 s38, {WS_SEL}
    s_mov_b64 exec, 1
    Lsel:
    buffer_load_dwordx3 v[28:30], v{ZR}, {WSR}, s38 offen sc1""")
    g.spin_guard("Lselx")
    a(f"""s_waitcnt vmcnt(0)
    v_cmp_ne_u32 vcc, s{sTAG}, v30
    s_cbranch_vccnz Lsel
    Lselx:
    s_waitcnt vmcnt(0)
    v_readfirstlane_b32 s35, v29
    s_mov_b64 exec, -1""")
    if not GS: stamp(13)
    for k in range(2):
        a(f"""v_cmp_gt_u32 vcc, s35, v{74+k}
        s_andn2_b64 vcc, vcc, s[{44+2*k}:{45+2*k}]
        s_cbranch_scc0 Lnocs{k}
        s_mov_b64 exec, vcc
        buffer_store_dwordx4 v[{OP+4*k}:{OP+4*k+3}], v{XA}, s[{sOUT}:{sOUT+3}], s{42+k} offen {OUTS}
        s_mov_b64 exec, -1
        Lnocs{k}:""")
    a("Lnocs:")
    stamp(14)
    g.flush_stamps(8, 8)
    a("s_endpgm")
    a(f"""Lffn:
    s_cmp_ge_u32 s{sF}, 28
    s_cbranch_scc1 Lidle""")
    srd(a, sX, pWU, 1605632); srd(a, sW, pWD, 1605632); srd(a, sW2, pWG, 1605632)
    a(f"""s_lshl_b32 s40, s{sF}, 7
    s_mul_i32 s35, s{sWAVE}, {8*3584}
    s_add_u32 s40, s40, s35
    s_lshl_b32 s41, s{sWAVE}, 10
    s_and_b32 s36, s{sWAVE}, 1
    s_lshl_b32 s36, s36, 5
    v_and_b32 v3, 16, v2
    v_and_b32 v4, 0x70, v{GA}
    v_xor_b32 v3, v3, v4
    v_xor_b32 v3, s36, v3
    v_lshrrev_b32 v4, 3, v2
    v_mul_u32_u24 v4, 3584, v4
    v_add_u32 v5, v3, v4
    v_xor_b32 v6, 64, v5
    s_barrier""")
    for n in range(7):
        a(f"""s_add_u32 m0, s41, {L_W2 + n*8192}
        s_add_u32 s35, s40, {n*64*3584}
        buffer_load_dwordx4 v5, s[{sW2}:{sW2+3}], s35 offen lds
        s_add_u32 m0, s41, {L_WU + n*8192}
        buffer_load_dwordx4 v6, s[{sX}:{sX+3}], s35 offen lds""")
    a(f"""v_lshrrev_b32 v3, 3, v2
    v_and_b32 v4, 7, v2
    v_mul_u32_u24 v3, 896, v3
    v_lshl_add_u32 v3, v4, 4, v3
    s_mul_i32 s40, s{sF}, {64*896}
    s_min_u32 s35, s{sWAVE}, 6
    s_lshl_b32 s35, s35, 7
    s_add_u32 s40, s40, s35""")
    for n in range(8):
        a(f"s_add_u32 s35, s40, {n*8*896}\nbuffer_load_dwordx4 v[{64+4*n}:{67+4*n}], v3, s[{sW}:{sW+3}], s35 offen")
    F1, F2 = 128, 192
    srd(a, sOUT, pOUT, 1835008)
    a(f"""v_lshrrev_b32 v3, 4, v2
    v_bfe_u32 v4, v2, 2, 2
    v_lshl_add_u32 v5, v3, 3, v4
    v_lshlrev_b32 v5, 7, v5
    v_lshrrev_b32 v4, 1, v4
    v_and_b32 v1, 1, v3
    v_lshl_add_u32 v4, v1, 1, v4
    v_and_b32 v6, 3, v2
    s_lshl_b32 s41, s{sWAVE}, 12
    v_lshl_add_u32 v9, v6, 3, v5
    v_lshl_add_u32 v9, v4, 5, v9
    v_add_u32 v9, s41, v9
    v_lshlrev_b32 v10, 5, v1
    v_xor_b32 v10, v10, v{GA}
    v_add_u32 v10, s41, v10
    v_xor_b32 v14, 64, v10
    v_bfe_u32 v15, v2, 1, 1
    v_lshl_add_u32 v4, v15, 2, v4
    v_xor_b32 v4, s{sWAVE}, v4
    v_and_b32 v6, 1, v2
    v_lshl_add_u32 v8, v6, 3, v5
    v_lshl_add_u32 v8, v4, 4, v8
    v_mul_u32_u24 v15, {L_W2 - L_WU}, v15
    v_sub_u32 v8, v8, v15
    v_add_u32 v8, {L_W2}, v8
    v_bfe_u32 v15, v2, 2, 1
    v_lshl_add_u32 v15, v15, 1, v6
    v_mul_u32_u24 v11, 448, v15
    v_lshl_add_u32 v11, v3, 4, v11
    v_add_u32 v11, {L_XS}, v11
    v_mul_u32_u24 v44, 0xaaaa, v6
    v_add_u32 v44, 0x4444, v44
    v_bfe_u32 v15, v2, 1, 1
    v_lshl_add_u32 v13, v1, 1, v15
    v_lshlrev_b32 v13, 6, v13
    v_lshl_add_u32 v13, v6, 1, v13
    v_and_b32 v15, 4, v2
    s_lshl_b32 s35, s{sWAVE}, 3
    s_add_u32 s35, s35, {L_A}
    v_add3_u32 v13, v13, v15, s35
    v_and_b32 v15, 3, v2
    v_lshlrev_b32 v15, 6, v15
    v_lshl_add_u32 v15, v3, 4, v15
    v_add_u32 v15, {L_A}, v15
    v_mov_b32 v52, {L_A + 256}
    v_mov_b32 v53, v52
    v_mov_b32 v54, v52
    v_mov_b32 v55, v52
    ds_write_b128 v52, v[{ZR}:{ZR+3}]
    s_mov_b32 exec_lo, 0x000f000f
    s_mov_b32 exec_hi, 0x000f000f
    v_mov_b32 v52, v15
    s_lshl_b64 exec, exec, 4
    v_mov_b32 v53, v15
    s_lshl_b64 exec, exec, 4
    v_mov_b32 v54, v15
    s_lshl_b64 exec, exec, 4
    v_mov_b32 v55, v15
    s_mov_b64 exec, -1
    v_mov_b32 v32, 0
    v_mov_b32 v33, 0
    v_mov_b32 v34, 0
    v_mov_b32 v35, 0
    v_mov_b32 v36, 0
    v_mov_b32 v37, 0
    v_mov_b32 v38, 0
    v_mov_b32 v39, 0
    v_mov_b32 v49, s{sTAG}
    v_mov_b32 v51, s{sTAG}
    v_xor_b32 v16, 32, v9
    v_xor_b32 v17, 64, v9
    v_xor_b32 v18, 96, v9
    s_mul_i32 s35, s{sWAVE}, 56
    s_add_u32 s35, s35, s{sF}
    s_lshl_b32 s35, s35, 8
    s_add_u32 s42, s35, {WS_PART}
    s_add_u32 s43, s42, {14*28*256}
    v_lshrrev_b32 v15, 5, v2
    v_mul_u32_u24 v15, {28*256 - 256}, v15
    v_lshl_add_u32 v15, v2, 3, v15
    s_waitcnt vmcnt(8)
    s_barrier""")
    stamp(8)
    for ks in range(14):
        for s_ in range(2): a(f"ds_read_b64_tr_b16 v[{F1+4*ks+2*s_}:{F1+4*ks+2*s_+1}], v8 offset:{ks*4096 + s_*512}")
        if ks % 4 == 3: a("s_waitcnt lgkmcnt(4)")
    a(f"""s_cmp_eq_u32 s{sWAVE}, 7
    s_cbranch_scc1 Lf1""")
    for ks in range(2):
        a(f"s_waitcnt vmcnt({4 - 4*ks}) lgkmcnt(0)")
        for n in range(4): a(f"ds_write_b128 v{(10, 14)[n&1]}, v[{64+16*ks+4*n}:{67+16*ks+4*n}] offset:{1024*n}")
        for ct in range(4):
            for s_ in range(2):
                w = F2 + ct*8 + ks*4 + 2*s_
                a(f"ds_read_b64_tr_b16 v[{w}:{w+1}], v{(9, 16, 17, 18)[ct]} offset:{s_*512}")
    a(f"""s_branch Lf2
    Lf1:
    v_and_b32 v3, 31, v2
    v_lshlrev_b32 v3, 7, v3
    v_min_u32 v5, 55, v2
    v_lshlrev_b32 v4, 2, v5
    v_add_u32 v4, {L_XS}, v4
    v_add_u32 v12, 896, v4
    v_lshlrev_b32 v5, 4, v5
    s_cmp_ge_u32 s{sF}, 14
    s_cselect_b32 s36, 14, 0
    s_cselect_b32 s37, 896, 0
    s_sub_u32 s36, s{sF}, s36
    s_lshl_b32 s43, s36, 6
    s_lshr_b32 s35, s43, 1
    s_add_u32 s37, s37, s35
    s_add_u32 s37, s37, {L_XS}
    s_mul_i32 s41, s{sF}, {28*256}
    s_add_u32 s41, s41, {WS_PART}
    s_add_u32 s42, s41, 4096
    v_and_b32 v9, 15, v2
    v_lshlrev_b32 v10, 2, v9
    v_lshrrev_b32 v9, 1, v9
    v_and_b32 v6, 1, v2
    v_mul_u32_u24 v14, 448, v6
    v_lshl_add_u32 v14, v9, 2, v14
    v_add_u32 v14, s37, v14
    s_lshl_b32 s36, s36, 7
    v_lshl_add_u32 v9, v9, 4, s36
    v_cmp_eq_u32 s[44:45], 1, v6
""")
    stamp(9)
    def scores(l):
        a(f"""{l}:
        buffer_load_dwordx3 v[24:26], v3, {WSR}, s38 offen sc1""")
        g.spin_guard(l + "x")
        a(f"""s_waitcnt vmcnt(0)
        v_cmp_ne_u32 vcc, s{sTAG}, v26
        s_cbranch_vccnz {l}
        {l}x:
        s_waitcnt vmcnt(0)""")
        top2(24, 25, 26, sK1, sK2)
    a(f"""s_mov_b32 s{sK1}, 0
    s_mov_b32 s{sK2}, 0
    s_movk_i32 s47, {WS_SCORE}
    s_movk_i32 s70, {32 - int(opt.get("th", 24))}
    s_mov_b32 s48, -1
    s_mov_b32 s49, 0
    Lfs:
    s_mov_b64 exec, s[48:49]
    buffer_load_dwordx3 v[60:62], v3, {WSR}, s47 offen sc1""")
    g.spin_guard("Lfs2")
    a(f"""Lfs0:
    s_waitcnt vmcnt(0)
    v_cmp_ne_u32 s[48:49], s{sTAG}, v62
    s_bcnt1_i32_b32 s35, s48
    s_cmp_gt_i32 s35, s70
    s_cbranch_scc1 Lfs
    s_mov_b32 exec_lo, -1
    s_sub_u32 s70, s35, 1
    v_cndmask_b32 v56, v60, 0, s[48:49]
    v_cndmask_b32 v57, v61, 0, s[48:49]
    v_cmp_lt_u32 vcc, s{sK2}, v56
    v_cmp_ne_u32 s[68:69], s{sK1}, v56
    s_and_b64 vcc, vcc, s[68:69]
    s_cbranch_scc1 Lfnew
    s_cmp_lg_u32 s48, 0
    s_cbranch_scc1 Lfs
    Lfs2:
    s_mov_b64 exec, -1
    Lf2:
    s_waitcnt lgkmcnt(0)
    s_barrier""")
    o = g.a; g.a = a2 = Asm(); A[0] = a2
    a2("Lfnew:\ns_mov_b64 exec, -1")
    top2(56, 57, 58, sK1, sK2)
    stamp(10)
    a2(f"""s_bfe_u32 s38, s{sK1}, 0x50006
    s_bfe_u32 s39, s{sK2}, 0x50006
    s_cmp_eq_u32 s38, s39
    s_cselect_b32 s35, 4096, 0
    s_lshl_b32 s38, s38, 13
    s_add_u32 s38, s38, {WS_CAND}
    s_lshl_b32 s39, s39, 13
    s_add_u32 s39, s39, s35
    s_add_u32 s39, s39, {WS_CAND}
    s_cmp_ge_u32 s{sF}, 14
    s_cselect_b32 s46, s39, s38
    s_cselect_b32 s40, s{sK2}, s{sK1}
    Lfc:
    buffer_load_dwordx3 v[16:18], v5, {WSR}, s38 offen sc1
    buffer_load_dwordx3 v[20:22], v5, {WSR}, s38 offen offset:896 sc1
    buffer_load_dwordx3 v[24:26], v5, {WSR}, s39 offen sc1
    buffer_load_dwordx3 v[28:30], v5, {WSR}, s39 offen offset:896 sc1
    buffer_load_dwordx4 v[40:43], v9, {WSR}, s46 offen offset:2048 sc1
    s_max_u32 exec_lo, s48, 1
    s_mov_b32 exec_hi, 0
    buffer_load_dwordx3 v[60:62], v3, {WSR}, s47 offen sc1
    s_mov_b64 exec, -1""")
    g.spin_guard("Lf2")
    a2(f"""s_waitcnt vmcnt(2)
    v_xor_b32 v18, s{sTAG}, v18
    v_xor_b32 v22, s{sTAG}, v22
    v_xor_b32 v26, s{sTAG}, v26
    v_xor_b32 v30, s{sTAG}, v30
    v_or3_b32 v18, v18, v22, v26
    v_or_b32 v18, v18, v30
    v_cmp_ne_u32 vcc, 0, v18
    s_cbranch_vccnz Lfc
    ds_write2_b32 v4, v16, v17 offset1:112
    ds_write2_b32 v4, v20, v21 offset0:56 offset1:168
    ds_write2_b32 v12, v24, v25 offset1:112
    ds_write2_b32 v12, v28, v29 offset0:56 offset1:168
    s_cmp_eq_u32 s48, 0
    s_cbranch_scc1 Lf2
    s_mov_b64 exec, s[48:49]
    s_branch Lfs0""")
    g.a = o; A[0] = o; newcode = "\n".join(a2.L)
    stamp(11)
    for s_ in range(7): a(f"ds_read_b128 v[{64+4*s_}:{67+4*s_}], v11 offset:{64*s_}")
    for s_ in range(7):
        a(f"s_waitcnt lgkmcnt({6-s_})")
        a(f"{S16} v[32:35], v[{64+4*s_}:{67+4*s_}], v[{F1+8*s_}:{F1+8*s_+7}], v44")
    a(f"""s_cmp_eq_u32 s{sWAVE}, 7
    v_add_f32 v20, v32, v33""")
    g.rbf(20, 20)
    a(f"""v_mul_f32 v21, {hex(f2u(-math.log2(math.e)))}, v20
    v_exp_f32 v21, v21
    v_mov_b32_dpp v22, v20 row_ror:8 row_mask:0xf bank_mask:0xf
    v_add_f32 v21, 1.0, v21
    v_rcp_f32 v21, v21
    s_mov_b32 exec_lo, 0x00ff00ff
    v_mul_f32 v20, v20, v21""")
    g.rbf(20, 20)
    a(f"""s_mov_b32 exec_hi, 0
    v_mul_f32 v20, v20, v22
    v_cvt_pk_bf16_f32 v20, v20, v20
    ds_write_b16 v13, v20
    s_mov_b64 exec, -1
    s_waitcnt lgkmcnt(0)
    s_barrier""")
    stamp(12)
    a("s_cbranch_scc1 Lfin")
    for ct in range(4): a(f"ds_read_b128 v[{64+4*ct}:{67+4*ct}], v{52+ct}")
    for ct in range(4):
        a(f"s_waitcnt lgkmcnt({3-ct})\n{S16} v[36:39], v[{64+4*ct}:{67+4*ct}], v[{F2+8*ct}:{F2+8*ct+7}], v44")
    for t in range(2):
        a(f"""v_add_f32 v{48+2*t}, v{36+2*t}, v{37+2*t}
        buffer_store_dwordx2 v[{48+2*t}:{49+2*t}], v15, {WSR}, s{42+t} offen sc1""")
    if opt.get("pd") == "2": a("s_barrier")
    a("Lfend:")
    stamp(13)
    g.flush_stamps(8, 8)
    a("s_endpgm")
    a(newcode)
    PD = int(opt.get("pd", 1))
    if PD == 2: a("Lfin:\ns_barrier")
    a(f"""Lfh:
    buffer_load_dwordx4 v[40:43], v9, {WSR}, s46 offen offset:2048 sc1""")
    g.spin_guard("Lfhx")
    a(f"""{"Lfin:" if PD < 2 else ""}
    ds_read_b32 v20, v14
    s_waitcnt vmcnt(0)
    v_cmp_ne_u32 vcc, s{sTAG}, v42
    s_cbranch_vccnz Lfh
    Lfhx:
    s_and_b32 s40, s40, 0x7ff
    s_mul_i32 s40, s40, 896
    s_add_u32 s40, s40, s43
    s_waitcnt vmcnt(0) lgkmcnt(0)
    {f"buffer_load_dword v118, v10, s[{sOUT}:{sOUT+3}], s40 offen sc1" if opt.get("ft") else ""}
    v_cndmask_b32 v16, v40, v41, s[44:45]""")
    g.rbf(19, 43)
    a(f"""v_mul_f32 v19, {hex(f2u(-math.log2(math.e)))}, v19
    v_exp_f32 v19, v19
    v_lshlrev_b32 v22, 16, v20
    v_add_f32 v19, 1.0, v19
    v_rcp_f32 v19, v19
    v_and_b32 v23, 0xffff0000, v20
    v_cvt_pk_bf16_f32 v18, v19, v19
    v_and_b32 v17, 0xffff0000, v16
    v_lshlrev_b32 v16, 16, v16
    v_lshlrev_b32 v18, 16, v18""")
    if PD == 1: a("s_barrier")
    stamp(15)
    a("Lfp:")
    for n in range(7): a(f"buffer_load_dwordx4 v[{64+4*n}:{67+4*n}], v{GA}, {WSR}, s{41 + n // 4} offen offset:{1024*(n % 4)} sc1")
    g.spin_guard("Lfpx")
    for n in range(7):
        a(f"s_waitcnt vmcnt({6-n})")
        b = 64 + 4*n
        if n == 0: a(f"v_and_b32 v24, v{b+1}, v{b+3}\nv_or_b32 v25, v{b+1}, v{b+3}")
        else:
            a(f"""v_bitop3_b32 v24, v24, v{b+1}, v{b+3} bitop3:0x80
            v_or3_b32 v25, v25, v{b+1}, v{b+3}
            v_add_f32 v64, v64, v{b}
            v_add_f32 v66, v66, v{b+2}""")
    a(f"""v_cmp_ne_u32 vcc, s{sTAG}, v24
    v_cmp_ne_u32 s[46:47], s{sTAG}, v25
    v_mov_b32 v65, v64
    v_mov_b32 v67, v66
    s_or_b64 vcc, vcc, s[46:47]
    s_cbranch_scc1 Lfp
    Lfpx:
    s_waitcnt vmcnt(0)
    v_permlane32_swap_b32 v65, v64
    v_permlane32_swap_b32 v67, v66
    v_add_f32 v64, v64, v65
    v_add_f32 v66, v66, v67
    v_mov_b32 v65, v64
    v_mov_b32 v67, v66
    v_permlane16_swap_b32 v65, v64
    v_permlane16_swap_b32 v67, v66
    v_add_f32 v64, v64, v65
    v_add_f32 v66, v66, v67
    v_cvt_pk_bf16_f32 v65, v64, v66
    v_lshlrev_b32 v64, 16, v65
    v_and_b32 v65, 0xffff0000, v65
    v_mul_f32 v64, v64, v18
    v_mul_f32 v65, v65, v18
    v_cvt_pk_bf16_f32 v65, v64, v65
    v_lshlrev_b32 v64, 16, v65
    v_and_b32 v65, 0xffff0000, v65
    v_add_f32 v64, v64, v22
    v_add_f32 v65, v65, v23
    v_cvt_pk_bf16_f32 v65, v64, v65
    v_lshlrev_b32 v64, 16, v65
    v_and_b32 v65, 0xffff0000, v65
    v_add_f32 v64, v64, v16
    v_add_f32 v65, v65, v17
    v_cvt_pk_bf16_f32 v64, v64, v65
    s_mov_b64 exec, 0xffff
    buffer_store_dword v64, v10, s[{sOUT}:{sOUT+3}], s40 offen {opt.get('fs', 'plain').replace('plain', '')}
    s_mov_b64 exec, -1""")
    stamp(14)
    g.flush_stamps(8, 8)
    a("s_endpgm")
    a(f"""Lidle:
    s_lshl_b32 s35, s{sF}, 3
    s_add_u32 s35, s35, s{sWAVE}
    s_cmp_eq_u32 s35, {28*8}
    s_cbranch_scc0 Lfend
    v_and_b32 v3, 31, v2
    v_lshlrev_b32 v3, 7, v3
    s_movk_i32 s38, {WS_SCORE}""")
    scores("Lan")
    a(f"""v_mov_b32 v32, s{sK1}
    v_mov_b32 v33, s{sK2}
    v_mov_b32 v34, s{sTAG}
    s_mov_b64 exec, 1
    buffer_store_dwordx3 v[32:34], v{ZR}, {WSR}, 0 offen offset:{WS_SEL} sc1
    buffer_store_dword v34, v{ZR}, {WSR}, 0 offen
    s_mov_b64 exec, -1
    s_branch Lfend""")
```

```python
import sys, math, struct
sys.path.insert(0, "gen")
from asmlib import *
import hazard

NAME = "sequential_preLN__mha_block__moe_arch_mod__prompt"
MF = "v_mfma_f32_32x32x16_bf16"
M16 = "v_mfma_f32_16x16x32_bf16"
SM = "v_smfmac_f32_32x32x32_bf16"
WS_SEL = 0x800; WS_SCORE = 0x1000; WS_XCC = 0x2000; WS_FLAG = 0x3000
WS_PART = 0x8000; WS_CAND = 0x40000; WS_STAT = 0x80000; WS_FLAG2 = 0xC0000
WS_KV = 0x100000; WS_O = 0x600000; WS_DBG = 0xC00000; WS_SIZE = 0x1000000
L_W = 65536
L_W2 = 98304
L_QX = 0
L_MISC = 155648
L_SCR = L_MISC
L_BAD = L_MISC + 1024
L_KEY = L_MISC + 1280
L_SEL = L_MISC + 1536
L_LOC = L_MISC + 1600
L_CNT = L_BAD + 4
L_ST = L_MISC + 2048
L_CS = L_MISC + 4608
L_XS = L_MISC + 2048
L_A = L_MISC + 4096
L_EX = 32768
L_WU = 32768
sOO, sF2, sF2C, sTCH, sLOC = 3, 4, 5, 6, 7
sX, sW, sWS, sW2, sOUT = 8, 12, 16, 20, 24
sWAVE, sRT, sGRP, sQB, sH, sTAG, sROT = 28, 29, 30, 31, 32, 33, 34
sKVS, sKVL, sXCC, sFLG, sFLS, sEARLY = 39, 40, 50, 38, 61, 62
sJ, sXCD, sRB, sCG, sF, sRETRY, sONES, sSPIN = 51, 52, 53, 54, 55, 56, 57, 58
sK1, sK2, sW2X, sW2M, sG = 59, 60, 61, 62, 63
pX, pW, pWO, pWR, pWG, pWU, pWD, pOUT, pWS = 64, 66, 68, 72, 74, 76, 78, 80, 84
sW2L, sW2G, sW2Ls, sW2Gs = 70, 71, 82, 83
GA = 7
W2A, CW, TCH, F2A, F2V, TC2, ZR = 112, 113, 114, 115, 116, 117, 120
TA, EW, TR, TD, STL, KW, ROW, CA, KR = 96, 104, 105, 106, 107, 108, 109, 110, 111
ER = TR
sOA, sOB, sTS, sSTA, sCND, sSGN, sKM = 6, 34, 48, 49, 50, 82, 83
OA, XA, PF = 124, 127, 80
SPIN = 50000
EPS = 0x3727C5AC
WSR = f"s[{sWS}:{sWS+3}]"
def f2u(x): return struct.unpack("<I", struct.pack("<f", x))[0]

class Vm:
    def __init__(self): self.q = []
    def add(self, tag, n=1): self.q += [tag] * n
    def wait(self, tag):
        idx = max(i for i, t in enumerate(self.q) if t == tag)
        n = len(self.q) - 1 - idx
        self.q = self.q[idx + 1:]
        return n

class G:
    def __init__(self, opt):
        self.opt = opt; self.a = Asm(); self.stamps = opt.get("stamps", False); self.n = 0
    def lab(self, p):
        self.n += 1
        return f"L{p}_{self.n}"
    def stamp(self, k, att=False):
        mode = "a" if self.opt.get("astamps") else "c" if self.opt.get("cstamps") else "s" if self.opt.get("sstamps") else "e" if self.opt.get("estamps") else False
        if att is True: att = "a"
        if 0 < k < 8 and att != mode: return
        if self.stamps: self.a(f"{'s_memtime' if self.opt.get('cyc') else 's_memrealtime'} s[{86+2*(k%8)}:{87+2*(k%8)}]")
    def flush_stamps(self, base, n, final=True):
        a = self.a
        if not self.stamps: return
        a("s_waitcnt lgkmcnt(0)")
        for k in range(base, base + n): a(f"v_writelane_b32 v125, s{86+2*(k%8)}, {k}")
        if not final: return
        if self.opt.get("probe"):
            k, wv, wg = [int(x) for x in self.opt["probe"].split(",")]
            l1, l2 = self.lab("pr"), self.lab("prx")
            a(f"""s_cmp_eq_u32 s2, {wg}
            s_cbranch_scc0 {l2}
            s_cmp_eq_u32 s{sWAVE}, {wv}
            s_cbranch_scc0 {l2}
            s_nop 4
            v_readlane_b32 s35, v125, 0
            v_readlane_b32 s36, v125, {k}
            s_sub_u32 s36, s36, s35
            s_min_u32 s36, s36, 6000
            s_lshl_b32 s36, s36, 2
            s_add_u32 s36, s36, {self.opt.get("pspan", 4000)}
            {l1}:
            s_memrealtime s[86:87]
            s_waitcnt lgkmcnt(0)
            s_sub_u32 s37, s86, s35
            s_cmp_lt_u32 s37, s36
            s_cbranch_scc1 {l1}
            {l2}:""")
            return
        a(f"s_lshl_b32 s35, s2, 3\ns_add_u32 s35, s35, s{sWAVE}\ns_lshl_b32 s35, s35, 7\ns_add_u32 s35, s35, {WS_DBG + 0x300000}")
        a(f"v_lshlrev_b32 v126, 2, v2\ns_mov_b32 exec_hi, 0\nbuffer_store_dword v125, v126, {WSR}, s35 offen {self.opt.get('ds', '')}")
    def spin_guard(self, out):
        self.a(f"s_sub_u32 s{sSPIN}, s{sSPIN}, 1\ns_bitcmp1_b32 s{sSPIN}, 31\ns_cbranch_scc1 {out}")
    def rbf(self, dst, src):
        self.a(f"v_cvt_pk_bf16_f32 v{dst}, v{src}, v{src}\nv_lshlrev_b32 v{dst}, 16, v{dst}")
    def ln_stats(self, s1, s2, nmb, rstd, t):
        a = self.a
        a(f"""v_mul_f32 v{s1}, {hex(f2u(1/448))}, v{s1}
        v_mul_f32 v{s2}, {hex(f2u(1/448))}, v{s2}
        v_fma_f32 v{s2}, -v{s1}, v{s1}, v{s2}
        v_max_f32 v{s2}, 0, v{s2}
        v_cvt_pk_bf16_f32 v{t}, v{s2}, -v{s1}
        v_lshlrev_b32 v{s2}, 16, v{t}
        v_add_f32 v{s2}, {hex(EPS)}, v{s2}""")
        self.rbf(s2, s2)
        a(f"v_sqrt_f32 v{s2}, v{s2}\nv_and_b32 v{nmb}, 0xffff0000, v{t}")
        self.rbf(s2, s2)
        a(f"v_rcp_f32 v{rstd}, v{s2}")
    def allred32(self, pairs):
        a = self.a
        for r, t in pairs: a(f"v_mov_b32 v{t}, v{r}")
        for r, t in pairs: a(f"v_permlane32_swap_b32 v{t}, v{r}")
        for r, t in pairs: a(f"v_add_f32 v{r}, v{t}, v{r}")
    def dual(self, lines, cond=sLOC):
        a = self.a
        if self.opt.get("force") == "global":
            for l in lines: a(l.replace("@", "sc1").replace("#", "128"))
            return
        l1, l2 = self.lab("glob"), self.lab("join")
        a(f"s_cmp_eq_u32 s{cond}, 0\ns_cbranch_scc1 {l1}")
        for l in lines: a(l.replace("@", self.opt.get("lst", "").replace("_", " ")).replace("#", "0"))
        a(f"{l2}:")
        self.ool.append(f"{l1}:\n" + "\n".join(l.replace("@", "sc1").replace("#", "128") for l in lines) + f"\ns_branch {l2}")
    def xcc_load(self, d, t):
        self.a(f"""v_and_b32 v{t}, 31, v2
        v_lshlrev_b32 v{t}, 3, v{t}
        s_lshl_b32 s35, s{sXCD}, 8
        s_add_u32 s35, s35, {WS_XCC}
        buffer_load_dwordx2 v[{d}:{d+1}], v{t}, {WSR}, s35 offen sc1""")
    def xcc_eval(self, d):
        self.a(f"""v_cmp_ne_u32 vcc, s{sTAG}, v{d}
        v_cmp_ne_u32 s[36:37], s{sXCC}, v{d+1}
        s_or_b64 vcc, vcc, s[36:37]
        s_cselect_b32 s{sLOC}, 0, 1""")
    def tr_addr(self, d):
        self.a(f"""v_lshrrev_b32 v4, 5, v2
        v_bfe_u32 v5, v2, 2, 2
        v_lshl_add_u32 v6, v4, 3, v5
        v_bfe_u32 v{d}, v2, 4, 1
        v_and_b32 v25, 3, v2
        v_lshl_add_u32 v{d}, v{d}, 2, v25
        v_add_u32 v25, 2, v{d}
        v_lshrrev_b32 v25, 3, v25
        v_xor_b32 v{d}, v{d}, v25
        v_lshlrev_b32 v25, 3, v{d}
        v_lshl_add_u32 v{d}, v6, 7, v25
        v_lshrrev_b32 v5, 1, v5
        v_lshl_add_u32 v{d}, v5, 6, v{d}""")
    def x_addr(self, XR):
        self.a(f"""v_and_b32 v3, 31, v2
        v_lshrrev_b32 v4, 5, v2
        v_bfe_u32 v5, v2, 1, 3
        v_xor_b32 v5, v5, v4
        v_lshlrev_b32 v5, 4, v5
        v_lshl_add_u32 v5, v3, 7, v5
        v_add_u32 v{XR}, s43, v5
        v_xor_b32 v{XR+1}, 32, v{XR}
        v_xor_b32 v{XR+2}, 64, v{XR}
        v_xor_b32 v{XR+3}, 96, v{XR}
        v_lshlrev_b32 v119, 4, v4
        v_lshl_add_u32 v119, v3, 5, v119
        v_add_u32 v119, {L_CS}, v119""")
    def scale_pack(self, c, mul, mul_vec, out, pk=True):
        a = self.a
        if not pk:
            for p in range(8):
                for e in (2*p, 2*p + 1): a(f"v_mul_f32 v{c+e}, v{c+e}, v{mul + e if mul_vec else mul}")
                a(f"v_cvt_pk_bf16_f32 v{out+p}, v{c+2*p}, v{c+2*p+1}")
            return
        for p in range(8):
            if mul_vec: a(f"v_pk_mul_f32 v[{c+2*p}:{c+2*p+1}], v[{c+2*p}:{c+2*p+1}], v[{mul+2*p}:{mul+2*p+1}]")
            else: a(f"v_pk_mul_f32 v[{c+2*p}:{c+2*p+1}], v[{c+2*p}:{c+2*p+1}], v[{mul}:{mul+1}] op_sel_hi:[1,0]")
        for p in range(8): a(f"v_cvt_pk_bf16_f32 v{out+p}, v{c+2*p}, v{c+2*p+1}")
    def roles(self, grp, t=3):
        a = self.a
        a(f"""s_mul_i32 s35, s{sJ}, 37
        s_lshr_b32 s35, s35, 8
        s_mul_i32 s36, s35, 7
        s_sub_u32 s{sCG}, s{sJ}, s36
        s_lshl_b32 s36, s{sXCD}, 2
        s_add_u32 s{sF}, s36, s{sCG}
        s_min_u32 s35, s35, 3
        s_add_u32 s{sRB}, s36, s35
        s_lshl_b32 s35, s{sH}, 3
        s_add_u32 s35, s35, s{sRT}
        s_lshl_b32 s36, s35, 12
        s_add_u32 s{sKVS}, s36, {WS_KV + grp*4*4096}
        s_lshl_b32 s35, s{sH}, 6
        s_add_u32 s35, s35, s{sRT}
        s_lshl_b32 s36, s{sQB}, 2
        s_add_u32 s35, s35, s36
        s_lshl_b32 s36, s35, 11
        s_add_u32 s{sOO}, s36, {WS_O + grp*1024}
        s_lshl_b32 s36, s35, 8
        s_add_u32 s{sF2}, s36, {WS_FLAG2 + grp*128}
        s_lshl_b32 s36, s{sRB}, 1
        s_lshr_b32 s35, s{sRT}, 1
        s_add_u32 s35, s35, s36
        s_lshl_b32 s35, s35, 8
        s_add_u32 s{sF2C}, s35, {WS_FLAG2 + grp*8*64*256}
        v_bfe_u32 v1, v2, 1, 3
        v_and_b32 v{t}, 1, v2
        v_lshlrev_b32 v1, 14, v1
        v_lshl_add_u32 v{F2A}, v{t}, 7, v1
        s_mul_i32 s35, s{sWAVE}, 12288
        v_add_u32 v{CW}, s35, v{GA}
        v_mov_b32 v{ZR}, 0
        v_mov_b32 v{ZR+1}, 0
        v_mov_b32 v{ZR+2}, 0
        v_mov_b32 v{ZR+3}, 0
        s_lshl_b32 s35, s{sXCD}, 2
        s_add_u32 s35, s35, s{sRT}
        s_lshl_b32 s35, s35, 8
        s_add_u32 s{sFLG}, s35, {WS_FLAG}
        s_mul_i32 s35, s{sQB}, 43
        s_lshr_b32 s35, s35, 8
        s_mul_i32 s35, s35, 6
        s_sub_u32 s{sKVL}, s{sQB}, s35
        s_lshl_b32 s35, s{sRB}, 2
        s_add_u32 s35, s35, s{sRT}
        s_lshl_b32 s36, s35, 4
        v_lshrrev_b32 v1, 3, v2
        v_mul_u32_u24 v{W2A}, 896, v1
        s_mulk_i32 s36, 896
        v_and_b32 v{t}, 0x70, v{GA}
        v_add3_u32 v{XA}, v{W2A}, v{t}, s36
        s_and_b32 s36, s{sRT}, 1
        s_lshl_b32 s37, s36, 6
        v_xor_b32 v{t}, s37, v{t}
        v_and_b32 v1, 16, v2
        v_lshlrev_b32 v1, 1, v1
        v_xor_b32 v{t}, v1, v{t}
        v_add_u32 v{W2A}, v{W2A}, v{t}
        s_lshl_b32 s36, s36, 8
        v_and_b32 v1, 0xf0, v{GA}
        v_and_b32 v{t}, 0x300, v{GA}
        v_lshl_add_u32 v1, v{t}, 1, v1
        v_add_u32 v{OA}, s36, v1
        s_lshl_b32 s{sW2G}, s{sCG}, 7
        s_mul_i32 s36, s{sWAVE}, {7*896}
        s_mul_i32 s{sW2L}, s{sWAVE}, 896""")
        srd(a, sW2, pWO, 401408)
        a(f"""s_lshl_b32 s37, s{sJ}, 3
        s_add_u32 s37, s37, s{sWAVE}
        s_mulk_i32 s37, {13*128}
        v_min_u32 v1, 12, v2
        v_lshl_add_u32 v{TC2}, v1, 7, s37""")
        if grp == 0:
            a(f"""s_lshl_b32 s35, s35, 11
            s_add_u32 s35, s35, s{sW2G}
            s_add_u32 s35, s35, s{sW2G}
            s_add_u32 s35, s35, {WS_STAT}
            s_lshl_b32 s37, s2, 2
            s_add_u32 s37, s37, s{sRT}
            s_lshl_b32 s37, s37, 9
            v_and_b32 v1, 3, v2
            v_lshl_add_u32 v{TCH}, v1, 7, s37
            v_and_b32 v1, 1, v2
            v_lshl_add_u32 v1, v1, 7, s35
            s_mov_b32 exec_lo, 0
            v_mov_b32 v{TCH}, v1
            s_mov_b32 exec_lo, -1
            s_add_u32 s{sW2G}, s{sW2G}, s36""")
            srd(a, sOUT, pWS, WS_SIZE)
            return
        a(f"""s_add_u32 s{sW2G}, s{sW2G}, s36
        s_lshr_b32 s35, s{sJ}, 3
        s_lshl_b32 s36, s{sXCD}, 2
        s_add_u32 s35, s35, s36
        s_min_u32 s35, s35, 27
        s_cmp_eq_u32 s{sRT}, 1
        s_cselect_b64 s[{sOUT}:{sOUT+1}], s[{pWG}:{pWG+1}], s[{pWU}:{pWU+1}]
        s_add_u32 s36, s{sRT}, 1
        s_bitcmp0_b32 s36, 1
        s_cselect_b64 s[{sOUT}:{sOUT+1}], s[{pWD}:{pWD+1}], s[{sOUT}:{sOUT+1}]
        s_mov_b32 s{sOUT+2}, 1605632
        s_mov_b32 s{sOUT+3}, 0x00020000
        s_movk_i32 s36, 128
        s_cselect_b32 s37, s36, 3584
        s_cselect_b32 s36, 57344, s36
        s_mul_i32 s36, s35, s36
        s_and_b32 s35, s{sJ}, 7
        s_mul_i32 s35, s35, 56
        s_mul_i32 s35, s35, s37
        s_add_u32 s36, s36, s35
        v_min_u32 v1, 55, v2
        v_mul_u32_u24 v1, s37, v1
        v_add_u32 v{TCH}, s36, v1""")

    def head(self):
        a = self.a; opt = self.opt
        ra, rb_, rc = [int(x) for x in opt.get("rot", "1,0,1").split(",")]
        EMU = ""
        WRT = ""
        if opt.get("st"):
            step = int(opt["st"])
            WRT = f"""s_lshl_b32 s36, s{sXCD}, 19
            s_bfe_u32 s37, s{sJ}, 0x20003
            s_lshl_b32 s37, s37, 17
            s_add_u32 s36, s36, s37
            s_and_b32 s37, s{sJ}, 7
            s_lshl_b32 s37, s37, 2
            s_add_u32 s37, s37, s{sRT}
            s_lshl_b32 s37, s37, 10
            s_add_u32 s36, s36, s37
            s_add_u32 s36, s36, {WS_KV}
            s_lshl_b32 s37, s{sXCD}, 2
            s_add_u32 s37, s37, s{sRT}
            s_lshl_b32 s37, s37, 8
            s_lshl_b32 s38, s{sRT}, 6
            s_lshl_b32 s39, s{sXCD}, 8
            s_add_u32 s38, s38, s39
            s_and_b32 s39, s{sJ}, 3
            s_lshl_b32 s39, s39, 6
            s_add_u32 s37, s37, s39
            s_add_u32 s37, s37, {WS_FLAG}
            s_add_u32 s38, s38, {WS_XCC}
            s_waitcnt lgkmcnt(0)
            s_load_dword s{sTAG}, s[{pWS}:{pWS+1}], 0
            s_add_u32 s40, s{pWS}, s36
            s_addc_u32 s41, s{pWS+1}, 0
            s_load_dword s42, s[{pWS}:{pWS+1}], s37
            s_load_dword s42, s[{pWS}:{pWS+1}], s38
            """ + "\n".join(f"s_load_dword s42, s[40:41], {k}" for k in range(0, 1024 if step != 1024 else 0, step))
        if opt.get("emu"):
            nq = int(opt["emu"]); lq = nq.bit_length() - 1; gx = 16 // nq; lg = gx.bit_length() - 1
            EMU = f"""s_and_b32 s36, s{sXCD}, {gx - 1}
            s_lshl_b32 s36, s36, {lq}
            s_and_b32 s{sQB}, s{sJ}, {nq - 1}
            s_add_u32 s{sQB}, s{sQB}, s36
            s_lshr_b32 s36, s{sXCD}, {lg}
            s_lshr_b32 s35, s{sJ}, {lq}
            s_mul_i32 s{sH}, s36, {32 // nq}
            s_add_u32 s{sH}, s{sH}, s35
            s_lshr_b32 s{sG}, s{sH}, 1
            s_and_b32 s36, s{sH}, 1
            s_lshl_b32 s36, s36, 3
            s_add_u32 s{sG}, s{sG}, s36"""
        a(khead(NAME + "_kernel"))
        a("s_cmp_ge_u32 s2, 256\ns_cbranch_scc1 Lexit")
        self.stamp(0)
        a(f"""s_load_dwordx16 s[64:79], s[0:1], 0
        s_load_dwordx2 s[80:81], s[0:1], 64
        s_load_dwordx2 s[84:85], s[0:1], 80
        v_lshrrev_b32 v1, 6, v0
        v_and_b32 v2, 63, v0
        v_readfirstlane_b32 s{sWAVE}, v1
        s_and_b32 s{sXCD}, s2, 7
        s_lshr_b32 s{sJ}, s2, 3
        s_and_b32 s{sQB}, s{sJ}, 15
        s_lshr_b32 s35, s{sJ}, 4
        s_lshl_b32 s36, s{sXCD}, 1
        s_add_u32 s{sH}, s36, s35
        s_lshl_b32 s36, s35, 3
        s_add_u32 s{sG}, s36, s{sXCD}
        {EMU}
        s_and_b32 s{sRT}, s{sWAVE}, 3
        s_lshr_b32 s{sGRP}, s{sWAVE}, 2
        s_cmp_eq_u32 s{sGRP}, 0
        s_cbranch_scc1 Lload
        {WRT}
        @TOUR
        s_branch Lcomp
        Lload:
        s_mul_i32 s36, s{sXCD}, {ra}
        s_mul_i32 s35, s35, {rb_}
        s_add_u32 s36, s36, s35
        s_mul_i32 s35, s{sQB}, {rc}
        s_add_u32 s36, s36, s35
        s_mul_i32 s37, s36, 37
        s_lshr_b32 s37, s37, 8
        s_mul_i32 s37, s37, 7
        s_sub_u32 s{sROT}, s36, s37""")
    def consts(self):
        self.a(f"""s_mov_b32 s{sSPIN}, {self.opt.get("spin", SPIN)}
        s_mov_b32 s{sRETRY}, {-1 if self.opt.get('linst') else 0}
        s_mov_b32 s{sONES}, 0x3f803f80
        v_lshlrev_b32 v{GA}, 4, v2""")
        if self.stamps: self.a("v_mov_b32 v125, 0")
    def epoch_to_tag(self):
        self.a(f"s_mul_i32 s{sTAG}, s{sTAG}, 0x9e3779b1\ns_add_u32 s{sTAG}, s{sTAG}, 0x7f4a7c15")

    def loader(self):
        a = self.a; stamp = self.stamp
        XA, WA, QA = 8, 12, 14
        a(f"""v_lshrrev_b32 v3, 3, v2
        v_and_b32 v4, 7, v2
        v_lshrrev_b32 v5, 4, v2
        v_xor_b32 v6, v4, v5
        v_mul_u32_u24 v15, 896, v3
        v_lshl_add_u32 v{XA}, v6, 4, v15
        v_xor_b32 v6, 4, v6
        v_lshl_add_u32 v{XA+1}, v6, 4, v15
        v_add_u32 v{XA+2}, {2*6144}, v{XA}
        v_add_u32 v{XA+3}, {3*6144}, v{XA+1}
        v_add_u32 v{XA+1}, {6144}, v{XA+1}
        v_and_b32 v4, 3, v2
        v_lshlrev_b32 v4, 4, v4
        v_min_u32 v4, 40, v4
        v_lshrrev_b32 v6, 2, v2
        v_mul_u32_u24 v15, 2688, v6
        v_add_u32 v{QA}, v15, v4
        v_xor_b32 v6, v6, v5
        v_and_b32 v6, 1, v6
        v_mul_u32_u24 v6, 56, v6
        v_mul_u32_u24 v15, 2688, v3
        v_add3_u32 v{WA}, v15, v6, v4
        v_add_u32 v{WA+1}, {8*2688-1024}, v{WA}
        s_mul_i32 s48, s{sQB}, 114688
        s_mul_i32 s35, s{sRT}, 28672
        s_add_u32 s48, s48, s35
        s_mul_i32 s41, s{sRT}, {16*2688}
        s_mul_i32 s42, s{sH}, 56
        s_add_u32 s42, s42, s41
        s_mul_i32 s35, s{sG}, 112
        s_add_u32 s41, s41, s35
        s_add_u32 s41, s41, 896
        s_lshl_b32 s43, s{sRT}, 12
        s_lshl_b32 s44, s{sRT}, 11
        s_lshl_b32 s45, s{sRT}, 10
        s_mov_b32 s46, s{sROT}
        s_mov_b32 s{sX+2}, 1835008
        s_mov_b32 s{sX+3}, 0x00020000
        s_mov_b32 s{sW+2}, 1204224
        s_mov_b32 s{sW+3}, 0x00020000""")
        def touch_addr():
            FX = ""
            if "f" in self.opt.get("lt", ""):
                FX = f"""s_and_b32 s35, s{sJ}, 3
                s_lshl_b32 s35, s35, 6
                s_add_u32 s36, s35, s47
                s_add_u32 s35, s35, s49
                s_load_dword s61, s[{pWS}:{pWS+1}], s35
                s_load_dword s61, s[{pWS}:{pWS+1}], s36"""
            a(f"""s_lshl_b32 s35, s{sXCD}, 16
            s_lshr_b32 s36, s{sJ}, 4
            s_lshl_b32 s36, s36, 19
            s_add_u32 s35, s35, s36
            s_lshl_b32 s36, s{sQB}, 12
            s_add_u32 s35, s35, s36
            s_add_u32 s35, s35, s45
            s_add_u32 s35, s35, {WS_KV}
            v_and_b32 v28, 7, v2
            v_lshl_add_u32 v29, v28, 7, s35
            {f"s_load_dword s61, s[{pWS}:{pWS+1}], s35" if "k" in self.opt.get("lt", "") else ""}
            s_lshl_b32 s35, s{sXCD}, 2
            s_add_u32 s35, s35, s{sRT}
            s_lshl_b32 s35, s35, 8
            s_add_u32 s49, s35, {WS_FLAG}
            s_lshl_b32 s36, s{sXCD}, 8
            s_add_u32 s47, s36, {WS_XCC}
            {FX}
            v_and_b32 v28, 1, v2
            s_mov_b32 exec_lo, 0
            v_lshl_add_u32 v29, v28, 7, s49
            s_mov_b32 exec_hi, 0xffff
            v_lshl_add_u32 v29, v28, 7, s47
            s_mov_b64 exec, -1""")
        PRE = self.opt.get("pre", "late"); self.opt.setdefault("lt", "f"); self.opt.setdefault("tl", "4")
        if PRE == "first": touch_addr()
        a(f"s_mov_b32 s{sWS+2}, {WS_SIZE}\ns_mov_b32 s{sWS+3}, 0x00020000")
        stamp(1, "s")
        a(f"s_waitcnt lgkmcnt(0)\ns_mov_b64 s[{sX}:{sX+1}], s[{pX}:{pX+1}]\ns_mov_b64 s[{sW}:{sW+1}], s[{pW}:{pW+1}]\ns_mov_b64 s[{sWS}:{sWS+1}], s[{pWS}:{pWS+1}]")
        stamp(2, "s")
        vm = Vm()
        def touch():
            if not self.opt.get("nokvt") and int(self.opt.get("st", 9999)) > 1024: a(f"buffer_load_dword v118, v29, {WSR}, 0 offen sc1"); vm.add("pre")
        def adv(r): a(f"s_add_u32 s{r}, s{r}, 1\ns_cmp_eq_u32 s{r}, 7\ns_cselect_b32 s{r}, 0, s{r}")
        def issue_chunk(i):
            a(f"""s_mul_i32 s35, s46, {64*2688}
            s_add_u32 s35, s35, s41
            s_add_u32 m0, s44, {L_W + (i % 4) * 8192}
            s_lshl_b32 s36, s46, 7
            buffer_load_dwordx4 v{WA}, s[{sW}:{sW+3}], s35 offen lds
            buffer_load_dwordx4 v{WA+1}, s[{sW}:{sW+3}], s35 offen offset:1024 lds
            s_add_u32 m0, s43, {(i % 4) * 16384}
            s_add_u32 s36, s36, s48""")
            for n in range(4): a(f"buffer_load_dwordx4 v{XA+n}, s[{sX}:{sX+3}], s36 offen offset:{n*1024} lds")
            if i < 6: adv(46)
            vm.add(("c", i), 6)
        def issue_q(i):
            a(f"""s_mul_i32 s35, s{sROT}, {64*2688}
            s_add_u32 m0, s45, {L_W2 + i * 4096}
            s_add_u32 s35, s35, s42
            buffer_load_dwordx4 v{QA}, s[{sW}:{sW+3}], s35 offen lds""")
            if i < 6: adv(sROT)
            vm.add(("q", i))
        LA = 2
        XF, QW, QC = 128, 80, 64
        def qchunks(i0, i1, hook=lambda n: None):
            steps = [(i, j) for i in range(i0, i1) for j in range(4)]
            def rd(n):
                i, j = steps[n]; w = (80, 84, 88, 92, 240, 244, 248, 252)[n % 8]
                for s in range(2): a(f"ds_read_b64_tr_b16 v[{w+2*s}:{w+2*s+1}], v26 offset:{i*4096 + j*1024 + s*256}")
            AH = 6
            for n in range(min(AH, len(steps))): rd(n)
            for n, (i, j) in enumerate(steps):
                left = min(AH - 1, len(steps) - 1 - n)
                a(f"s_waitcnt lgkmcnt({2*left})")
                w = (80, 84, 88, 92, 240, 244, 248, 252)[n % 8]; x = XF + 16*i + 4*j
                a(f"{MF} v[{QC}:{QC+15}], v[{w}:{w+3}], v[{x}:{x+3}], {'0' if i + j == 0 else f'v[{QC}:{QC+15}]'}")
                if n + AH < len(steps): rd(n + AH)
                hook(n)
        def arrive(k): a(f"s_mov_b64 exec, 1\nds_add_u32 v21, v20 offset:{4*k}\ns_mov_b64 exec, -1")
        def await_(k, n):
            l = self.lab("cnt")
            a(f"{l}:\nds_read_b32 v19, v21 offset:{4*k}\ns_waitcnt lgkmcnt(0)\nv_cmp_gt_u32 vcc, {n}, v19\ns_cbranch_vccnz {l}")
        a(f"s_load_dword s{sTAG}, s[{pWS}:{pWS+1}], 0")
        ORD = self.opt.get("ord", "0|1q")
        def run(seq):
            for ch in seq:
                if ch == "t": touch()
                elif ch == "q": issue_q(0)
                else: issue_chunk(int(ch))
        run(ORD.split("|")[0])
        stamp(3, "s")
        self.consts()
        if PRE != "first": touch_addr()
        a(f"""s_getreg_b32 s{sXCC}, hwreg(HW_REG_XCC_ID, 0, 4)
        v_mov_b32 v20, 0
        v_lshlrev_b32 v23, 2, v2
        v_add_u32 v21, {L_BAD}, v23
        ds_write_b32 v21, v20
        v_mov_b32 v21, {L_CNT}
        v_mov_b32 v20, 1""")
        self.x_addr(60)
        self.tr_addr(24)
        a(f"""s_add_u32 s36, s44, {L_W}
        v_add_u32 v24, s36, v24
        v_xor_b32 v31, 64, v24
        v_and_b32 v22, 15, v2
        v_lshl_add_u32 v22, v4, 4, v22
        s_lshl_b32 s35, s{sRT}, 3
        s_add_u32 s35, s35, {L_CS}
        v_lshl_add_u32 v22, v22, 5, s35
        v_lshl_add_u32 v26, v6, 6, v25
        v_add_u32 v26, {L_W2}, v26
        v_add_u32 v30, s45, v26
        v_and_b32 v27, 31, v2
        v_lshlrev_b32 v27, 3, v27
        s_lshl_b32 s35, s{sRT}, 2
        s_add_u32 s35, s35, {L_LOC}
        v_mov_b32 v18, s35
        v_mov_b32 v52, 0
        s_mov_b32 exec_lo, 0xff0000ff
        s_mov_b32 exec_hi, 0xff0000ff
        v_mov_b32 v52, s{sONES}
        s_mov_b64 exec, -1
        v_mov_b32 v53, v52
        v_mov_b32 v54, v52
        v_mov_b32 v55, v52""")
        self.roles(0)
        self.tail_addr(0, "v")
        stamp(4, "s")
        run(ORD.split("|")[1])
        for i in range(7):
            if i == 0: stamp(5, "s")
            a(f"s_waitcnt vmcnt({vm.wait(('c', i))}) lgkmcnt(0)")
            if i == 0: stamp(6, "s")
            a("s_barrier")
            if i == 0: stamp(1); stamp(7, "s")
            stamp(i + 1, "c")
            if i == 6: stamp(1, "e")
            for k in range(4): a(f"ds_read_b64_tr_b16 v[{32+2*k}:{33+2*k}], v{(24, 31)[k>>1]} offset:{(i%4)*8192 + (k&1)*512}")
            if i == 0:
                self.epoch_to_tag()
                a(f"""s_lshl_b32 s35, s{sJ}, 3
                s_add_u32 s35, s35, s47
                v_mov_b32 v16, s{sTAG}
                v_mov_b32 v17, s{sXCC}
                s_mov_b64 exec, 1
                buffer_store_dwordx2 v[16:17], v{ZR}, {WSR}, s35 offen
                s_mov_b64 exec, -1""")
                vm.add("xs")
            xr = [f"ds_read_b128 v[{XF+16*i+4*j}:{XF+16*i+4*j+3}], v{60+j} offset:{(i%4)*16384}" for j in range(4)]
            if i < 6: a("\n".join(xr))
            if 2 <= i < 6:
                for s_ in range(2): a(f"ds_read_b64_tr_b16 v[{QW+2*s_}:{QW+2*s_+1}], v26 offset:{(i-2)*1024 + s_*256}")
            XP_ = self.opt.get("xp", "early")
            if i == 3 and XP_ != "late": a(f"buffer_load_dwordx2 v[46:47], v27, {WSR}, s47 offen sc1"); vm.add("xcc")
            if i + LA <= 6: issue_chunk(i + LA)
            if str(i) == self.opt.get("tl"): touch()
            if i == 4 and XP_ == "late": a(f"buffer_load_dwordx2 v[46:47], v27, {WSR}, s47 offen sc1"); vm.add("xcc")
            QE = self.opt.get("qe", "7")
            if i == 5:
                for k in range(1, 7 if QE == "5" else 4): issue_q(k)
                if self.opt.get("tl") == "q": touch()
            if i == 6 and QE == "6":
                for k in range(4, 7): issue_q(k)
            if i == (6 if XP_ == "late" else 5):
                if "xcc" in vm.q: a(f"s_waitcnt vmcnt({vm.wait('xcc')})")
                self.xcc_eval(46)
                a(f"v_mov_b32 v19, s{sLOC}\nds_write_b32 v18, v19")
            a("s_waitcnt lgkmcnt(0)")
            for k in range(2): a(f"{M16} v[{48+8*k}:{51+8*k}], v[52:55], v[{32+4*k}:{35+4*k}], {'0' if i == 0 else f'v[{48+8*k}:{51+8*k}]'}")
            if i == 6: a("\n".join(xr))
            if 2 <= i < 6: a(f"{MF} v[{QC}:{QC+15}], v[{QW}:{QW+3}], v[{XF+4*(i-2)}:{XF+4*(i-2)+3}], {'0' if i == 2 else f'v[{QC}:{QC+15}]'}")
        def cs_pub(regs):
            for r, _ in regs: a(f"v_and_b32 v{r+1}, 0xffff0000, v{r}")
            for r, _ in regs: a(f"v_sub_f32 v{r+1}, v{r}, v{r+1}")
            for r, _ in regs: a(f"v_and_b32 v{r+2}, 0xffff0000, v{r+1}\nv_perm_b32 v{r}, v{r+1}, v{r}, s37")
            for r, _ in regs: a(f"v_sub_f32 v{r+1}, v{r+1}, v{r+2}")
            for r, k in regs: a(f"v_lshrrev_b32 v{r+1}, 16, v{r+1}\nds_write_b64 v22, v[{r}:{r+1}] offset:{1024*k}")
        a("s_mov_b32 s37, 0x07060302")
        cs_pub([(48, 0), (56, 1)])
        stamp(2, "e")
        a("s_waitcnt lgkmcnt(0)\ns_barrier")
        stamp(3, "e")
        stamp(2)
        if QE == "7":
            for k in range(4, 7): issue_q(k)
        def cs_q(i0, i1):
            for i in range(i0, i1):
                for s_ in range(2): a(f"ds_read_b64_tr_b16 v[{32+4*(i-i0)+2*s_}:{33+4*(i-i0)+2*s_}], v30 offset:{i*4096 + s_*256}")
            a("s_waitcnt lgkmcnt(0)")
            for k in range(i1 - i0): a(f"{M16} v[48:51], v[52:55], v[{32+4*k}:{35+4*k}], {'0' if i0 + k == 0 else 'v[48:51]'}")
        QS = int(self.opt.get("qs", 4))
        a(f"s_waitcnt vmcnt({vm.wait(('q', QS - 1))})")
        stamp(4, "e")
        arrive(0)
        a(f"""v_add_u32 v3, s44, v{GA}
        s_lshl_b32 s35, s{sRT}, 9
        s_add_u32 s35, s35, {L_ST}
        v_lshl_add_u32 v5, v2, 3, s35""")
        self.tail_addr(0, "s")
        a("s_mov_b32 s37, 0x07060302")
        await_(0, 4)
        stamp(5, "e")
        qchunks(1, QS)
        a("s_waitcnt vmcnt(0)")
        arrive(1)
        cs_q(0, 4)
        if QS > 4: cs_q(4, QS)
        await_(1, 4)
        stamp(3); stamp(6, "e")
        cs_q(QS, 7)
        nn = 4 * (7 - QS)
        def h(n):
            if n == max(nn - 6, 1): cs_pub([(48, 2)])
            if n == max(nn - 4, 2): arrive(2)
        qchunks(QS, 7, h)
        await_(2, 8)
        stamp(7, "e")
        a(f"""ds_read_b64 v[40:41], v5
        ds_read_b128 v[36:39], v119 offset:2048
        s_waitcnt lgkmcnt(1)
        v_mul_f32 v44, {hex(f2u(math.log2(math.e) / math.sqrt(28)))}, v41
        v_mov_b32 v41, v40
        v_mov_b32 v42, v40
        v_mov_b32 v43, v40
        s_waitcnt lgkmcnt(0)
        {MF} v[{QC}:{QC+15}], v[36:39], v[40:43], v[{QC}:{QC+15}]""")
        self.q_addr()
        self.scale_pack(QC, 44, False, 8)
        a(f"""s_mov_b32 exec_lo, 0
        v_mov_b32 v14, {self.opt.get('sh', '0xc220')}
        v_mov_b32 v15, 0
        s_mov_b32 exec_lo, -1
        ds_write_b128 v3, v[8:11]
        ds_write_b128 v3, v[12:15] offset:1024""")
        stamp(4)
        a("Lattn1:")
        ZP = self.opt.get("zp", "post")
        if ZP == "pre": self.zero_o()
        a("s_waitcnt lgkmcnt(0)\ns_barrier\ns_setprio 3")
        if ZP == "mid": self.zero_o()
        a("\n".join(self.kv_load(0)))
        if ZP == "post": self.zero_o()
        a("s_branch Lattn")

    def compute(self):
        a = self.a; stamp = self.stamp
        XF, ACC, WF, PK = 192, 32, 64, 64
        XR, WR, QR, SC, SCR, ST = 8, 12, 14, 15, 26, 27
        S1, S2, T1, T2, NMB, RSTD, XC = 16, 17, 18, 19, 20, 22, 118
        a("Lcomp:")
        a(f"s_lshl_b32 s43, s{sRT}, 12\ns_setprio {self.opt.get('cpri', 1)}")
        self.x_addr(XR)
        self.tr_addr(24)
        a(f"""v_add_u32 v{WR}, {L_W}, v24
        v_xor_b32 v{WR+1}, 64, v{WR}
        s_lshl_b32 s35, s{sRT}, 8
        s_add_u32 s35, s35, {L_SCR}
        v_lshl_add_u32 v{SC}, v2, 2, s35
        v_lshl_add_u32 v{SCR}, v4, 4, s35
        s_lshl_b32 s35, s{sRT}, 9
        s_add_u32 s35, s35, {L_ST}
        v_lshl_add_u32 v{QR}, v2, 3, s35""")
        stamp(1, "s")
        if not self.opt.get("st"): a(f"s_waitcnt lgkmcnt(0)\ns_load_dword s{sTAG}, s[{pWS}:{pWS+1}], 0")
        self.consts()
        def capture(f):
            old = self.a; self.a = Asm(); f(self.a); L = self.a.L; self.a = old
            return L
        def late(b):
            srd(b, sX, pX, 1835008); srd(b, sWS, pWS, WS_SIZE)
            self.epoch_to_tag()
            self.roles(1, 4)
            b(f"""s_and_b32 s35, s{sQB}, 7
            s_lshl_b32 s35, s35, 3
            s_add_u32 s35, s35, s{sXCD}
            s_lshl_b32 s35, s35, 2
            s_lshr_b32 s36, s{sQB}, 3
            s_add_u32 s35, s35, s36
            s_lshl_b32 s35, s35, 2
            s_add_u32 s35, s35, s{sRT}
            s_lshl_b32 s35, s35, 12
            s_lshr_b32 s36, s{sG}, 3
            s_lshl_b32 s36, s36, 11
            s_add_u32 s35, s35, s36
            s_add_u32 s46, s35, {WS_KV}
            s_add_u32 s47, s46, {8*4096}
            s_lshl_b32 s35, s{sXCD}, 2
            s_add_u32 s35, s35, s{sRT}
            s_lshl_b32 s35, s35, 8
            s_lshl_b32 s36, s{sJ}, 2
            s_add_u32 s35, s35, s36
            s_add_u32 s{sFLS}, s35, {WS_FLAG}
            s_lshl_b32 s35, s{sRT}, 2
            s_add_u32 s35, s35, {L_LOC}
            v_mov_b32 v{XC}, s35""")
            self.tail_addr(1, "s")
            self.tail_addr(1, "v")
        def atoms(L):
            out = []; hold = False
            for l in L:
                if hold: out[-1] += "\n" + l
                else: out.append(l)
                if "exec" in l: hold = "-1" not in l
            return out
        a(f"""s_cmp_ge_u32 s{sG}, 8
        s_cbranch_scc1 LcompV""")
        DA, NB, CA, CSF = (16, 17, 18, 19, 28, 29, 30, 31), 28, 119, 224
        def kloop(isV):
            order = [(j, m) for m in range(2) for j in range(4)]
            def wreg(i, j, m): return (WF, 224)[i % 2] + 8*j + 4*m
            def rlist(i):
                L = [(("x", i, j), f"ds_read_b128 v[{XF+16*(i%2)+4*j}:{XF+16*(i%2)+4*j+3}], v{XR+j} offset:{(i%4)*16384}") for j in range(4)]
                for k, (j, m) in enumerate(order):
                    for s in range(2):
                        w = wreg(i, j, m) + 2*s
                        L.append((("w", i, k), f"ds_read_b64_tr_b16 v[{w}:{w+1}], v{WR+m} offset:{(i%4)*8192 + j*2048 + s*512}"))
                return L
            def mm(c, w, x, src):
                if isV: a(f"{MF} v[{c}:{c+15}], v[{x}:{x+3}], v[{w}:{w+3}], {src}")
                else: a(f"{MF} v[{c}:{c+15}], v[{w}:{w+3}], v[{x}:{x+3}], {src}")
            BP = int(self.opt.get("bp", 3)); BPL = int(self.opt.get("bpl", 8)); CSP = int(self.opt.get("csp", 3))
            lg = Vm(); R = []
            def issue(n):
                c = 0
                while c < n and R and len(lg.q) < 15:
                    t, l = R.pop(0); a(l); lg.add(t); c += 1
                return c
            def need(t):
                assert all(u != t for u, _ in R)
                if t in lg.q: a(f"s_waitcnt lgkmcnt({lg.wait(t)})")
            def bar():
                assert not R
                a("s_waitcnt lgkmcnt(0)\ns_barrier"); lg.q = []
            LT = atoms(capture(late))
            NE = 40; NF = int(self.opt.get('nf', 7))
            for l in LT[-NE:]: a(l)
            LT = LT[:-NE]
            for e in DA: a(f"v_mov_b32 v{e}, 0")
            if self.opt.get("zc") != "late":
                for o_ in self.O: a(f"{MF} v[{o_}:{o_+15}], v[16:19], v[16:19], 0")
            stamp(5, "s"); bar(); stamp(7, "s")
            R += rlist(0)
            for i in range(7):
                issue(int(self.opt.get("li", 8)) if len(R) == 20 else 14)
                for j in range(4):
                    need(("x", i, j))
                    for e in range(4):
                        x = XF + 16*(i%2) + 4*j + e
                        a(f"v_dot2c_f32_bf16 v{DA[e]}, s{sONES}, v{x}\nv_dot2c_f32_bf16 v{DA[4+e]}, v{x}, v{x}")
                        issue(1)
                    if j == 3 and R: need(("w", i, 2)); issue(6)
                if i == 6: stamp(2, "e"); LT = capture(lambda b: stats(isV))
                bp = BP if i < 5 else BPL
                for k, (j, m) in enumerate(order):
                    if k == bp and i < 6: bar(); R += rlist(i + 1)
                    need(("w", i, k))
                    c = ACC + 16*m
                    mm(c, wreg(i, j, m), XF + 16*(i%2) + 4*j, "0" if (i == 0 and j == 0) else f"v[{c}:{c+15}]")
                    if i == 6 and k == CSP:
                        stamp(3, "e"); bar(); stamp(4, "e")
                        a(f"ds_read_b128 v[{CSF}:{CSF+3}], v{CA}\nds_read_b128 v[{CSF+4}:{CSF+7}], v{CA} offset:1024\nds_read_b32 v{XC}, v{XC}")
                    if issue(4) < 3:
                        for _ in range(6 if i == 6 else NF):
                            if LT: a(LT.pop(0))
                if bp >= 8 and i < 6: bar(); R += rlist(i + 1)
                if i == 5: stamp(1, "e"); assert not LT
            for l in LT: a(l)
            a(f"s_waitcnt lgkmcnt({5 if isV else 0})")
            for m in range(2): mm(ACC + 16*m, CSF + 4*m, NB, f"v[{ACC+16*m}:{ACC+16*m+15}]")
            a(f"""v_readfirstlane_b32 s{sLOC}, v{XC}
            s_and_b32 s35, s{sQB}, 6
            s_cselect_b32 s43, 0, {0 if self.opt.get("wt") else f"s{sLOC}"}
            ds_write2_b32 v{QR}, v{NB}, v{RSTD} offset1:1""")
        def stats(isV):
            b = self.a
            b(f"""v_add_f32 v{DA[0]}, v{DA[0]}, v{DA[1]}
            v_add_f32 v{DA[2]}, v{DA[2]}, v{DA[3]}
            v_add_f32 v{DA[4]}, v{DA[4]}, v{DA[5]}
            v_add_f32 v{DA[6]}, v{DA[6]}, v{DA[7]}
            v_add_f32 v{S1}, v{DA[0]}, v{DA[2]}
            v_add_f32 v{S2}, v{DA[4]}, v{DA[6]}""")
            self.allred32([(S1, 24), (S2, 25)])
            self.ln_stats(S1, S2, NMB, RSTD, 24)
            b(f"v_alignbit_b32 v{NB}, v{NMB}, v{NMB}, 16\nv_or_b32 v{NB}, v{NB}, v{NMB}")
            for e in range(1, 4): b(f"v_mov_b32 v{NB+e}, v{NB}")
            if isV:
                b(f"ds_write_b32 v{SC}, v{RSTD}")
                for q in range(4): b(f"ds_read_b128 v[{240+4*q}:{243+4*q}], v{SCR} offset:{q*32}")
        scale_pack = self.scale_pack
        def stores(m):
            stamp(5 + m, "e")
            if self.opt.get("linst"): a(f"v_mov_b32 v{ST}, v{GA}")
            self.dual([f"buffer_store_dwordx4 v[{PK+8*m}:{PK+8*m+3}], v{ST}, {WSR}, s{46+m} offen @",
                       f"buffer_store_dwordx4 v[{PK+8*m+4}:{PK+8*m+7}], v{ST}, {WSR}, s{46+m} offen offset:1024 @"], 43)
        a(f"""v_bfe_u32 v3, v2, 2, 1
        v_bfe_u32 v4, v2, 3, 1
        v_and_b32 v5, 0x33, v2
        v_lshl_add_u32 v5, v3, 3, v5
        v_lshl_add_u32 v5, v4, 2, v5
        v_lshlrev_b32 v{ST}, 4, v5
""")
        kloop(False)
        stamp(1)
        for m in range(2):
            scale_pack(ACC + 16*m, RSTD, False, PK + 8*m, False)
            a(f"""s_mov_b32 exec_lo, 0
            v_mov_b32 v{PK+8*m+6}, s{sONES}
            v_mov_b32 v{PK+8*m+7}, 0x3f80
            s_mov_b32 exec_lo, -1""")
            stores(m)
        a("s_branch LcompQ")
        a("LcompV:")
        a(f"""v_and_b32 v3, 31, v2
        v_mul_u32_u24 v4, 37, v3
        v_lshrrev_b32 v4, 8, v4
        v_mul_u32_u24 v5, 7, v4
        v_sub_u32 v5, v3, v5
        v_cmp_le_u32 vcc, 28, v3
        v_cndmask_b32 v4, v4, v5, vcc
        v_cndmask_b32 v5, v5, 7, vcc
        v_lshrrev_b32 v6, 1, v4
        v_and_b32 v4, 1, v4
        v_lshlrev_b32 v6, 4, v6
        v_lshl_add_u32 v6, v4, 2, v6
        v_lshrrev_b32 v4, 2, v5
        v_and_b32 v5, 3, v5
        v_lshl_add_u32 v6, v4, 3, v6
        v_add_u32 v6, v6, v5
        v_and_b32 v4, 32, v2
        v_add_u32 v6, v6, v4
        s_and_b32 s35, s{sQB}, 8
        s_lshl_b32 s35, s35, 1
        v_xor_b32 v6, s35, v6
        v_lshlrev_b32 v{ST}, 4, v6
""")
        kloop(True)
        stamp(1)
        a("s_mov_b32 exec_lo, 0xf0000000\ns_mov_b32 exec_hi, 0xf0000000")
        for p in range(16): a(f"v_mov_b32 v{PK+p}, s{sONES}")
        a("s_waitcnt lgkmcnt(0)")
        for m in range(2):
            a("s_mov_b32 exec_lo, 0x0fffffff\ns_mov_b32 exec_hi, 0x0fffffff")
            scale_pack(ACC + 16*m, 240, True, PK + 8*m, False)
            a("s_mov_b64 exec, -1")
            stores(m)
        a("LcompQ:")
        stamp(2); stamp(7, "e")
        a(f"""s_setprio 0
        v_mov_b32 v4, s{sTAG}
        v_mov_b32 v5, {L_CNT}
        v_mov_b32 v6, 1
        s_mov_b64 exec, 1
        ds_add_u32 v5, v6 offset:8
        s_mov_b64 exec, -1
        v_lshlrev_b32 v23, 2, v2""")
        self.q_addr()
        if self.opt.get("zc") == "late": self.zero_o()
        a("s_waitcnt vmcnt(0)\ns_mov_b64 exec, 1")
        self.dual([f"buffer_store_dword v4, v{ZR}, {WSR}, s{sFLS} offen offset:# @"])
        a("s_mov_b64 exec, -1")
        stamp(3)
        a(f"""Lpoll1:
        buffer_load_dword v26, v23, {WSR}, s{sFLG} offen sc1""")
        self.spin_guard("Lpoll1x")
        a(f"""s_waitcnt vmcnt(0)
        v_cmp_ne_u32 vcc, s{sTAG}, v26
        s_and_b32 s35, vcc_lo, vcc_hi
        s_and_b32 s35, s35, 0x03030303
        s_cbranch_scc1 Lpoll1
        Lpoll1x:""")
        stamp(4)
        a("\n".join(self.kv_load(0)))
        a("s_barrier")

    Q = (48, 56, 64, 72); O = (128, 144, 160, 176); KV = (192, 208, 224, 240, 80)
    def kv_load(self, kt):
        b = self.KV[kt % 5]
        if kt < 2: p = f"s_add_u32 s41, s{sKVS}, {kt << 19}\n"
        else: p = f"""s_add_u32 s41, s{sKVL}, {kt}
            s_cmp_ge_u32 s41, 8
            s_cselect_b32 s35, 6, 0
            s_sub_u32 s41, s41, s35
            s_lshl_b32 s41, s41, 19
            s_add_u32 s41, s41, s{sKVS}
            """
        return [(p if j == 0 else "") + f"buffer_load_dwordx4 v[{b+4*j}:{b+4*j+3}], v{GA}, {WSR}, s41 offen offset:{j*1024} sc1" for j in range(4)]
    def tail_addr(self, grp, part):
        a = self.a
        if part == "s":
            OWN = f"""s_bfe_u32 s37, s{sXCD}, 0x10001
            s_xor_b32 s37, s37, 1
            s_bitcmp{grp}_b32 s{sXCD}, 2
            s_cselect_b32 s36, s37, s36""" if not self.opt.get("noown") else ""
            a(f"""s_sub_u32 s35, s{sF2C}, {WS_FLAG2}
            s_lshl_b32 s35, s35, 3
            s_add_u32 s35, s35, {WS_O}
            s_and_b32 s36, s{sCG}, 1
            {OWN}
            s_lshl_b32 s37, s36, 19
            s_sub_u32 s{sOB}, s35, s37
            s_add_u32 s{sOA}, s35, s37
            s_mul_i32 s35, s36, {4*3584}
            s_lshl_b32 s{sTS}, s35, 1""")
            for k in range(8): a(f"v_add_u32 v{TA+k}, s35, v{TA+k}")
            a(f"""s_lshl_b32 s36, s{sRB}, 6
            v_add_u32 v{ROW}, s36, v{ROW}
            s_lshl_b32 s35, s{sRT}, 4
            s_add_u32 s35, s35, s36
            s_lshl_b32 s35, s35, 7
            s_add_u32 s{sSTA}, s35, {WS_STAT}
            s_lshl_b32 s35, s{sCG}, 8
            s_lshl_b32 s36, s36, 7
            s_add_u32 s35, s35, s36
            s_add_u32 s{sCND}, s35, {WS_CAND}
            s_brev_b32 s{sSGN}, 1
            s_movk_i32 s{sKM}, 0xf800""")
            return
        a(f"""v_lshrrev_b32 v{KR}, 4, v2
        v_bfe_u32 v{KW}, v2, 2, 2
        v_and_b32 v1, 3, v2
        v_mul_u32_u24 v{ER}, 896, v{KR}
        v_lshl_add_u32 v{ER}, v1, 3, v{ER}
        v_and_b32 v1, 1, v{KR}
        v_lshl_add_u32 v{ER}, v1, 6, v{ER}
        v_lshrrev_b32 v1, 1, v{KW}
        v_lshl_add_u32 v{ER}, v1, 5, v{ER}
        v_add_u32 v{ER}, {L_W2 + grp*8*3584}, v{ER}
        v_lshl_add_u32 v{TA}, v{KW}, 7, v{ER}
        v_min_u32 v{KW}, 2, v{KW}
        v_lshl_add_u32 v{TA+4}, v{KW}, 7, v{ER}""")
        for ct in range(1, 4): a(f"v_xor_b32 v{TA+ct}, {32*ct}, v{TA}\nv_xor_b32 v{TA+4+ct}, {32*ct}, v{TA+4}")
        a(f"""s_lshl_b32 s36, s{sRT}, 12
        s_add_u32 s35, s36, {L_EX}
        v_add_u32 v{EW}, s35, v{GA}
        s_add_u32 s35, s36, {L_EX + 16384}
        v_and_b32 v{ROW}, 15, v2
        v_mul_u32_u24 v{TD}, 144, v{ROW}
        v_lshl_add_u32 v{TD}, v{KR}, 3, v{TD}
        v_add_u32 v{TD}, s35, v{TD}
        v_lshrrev_b32 v1, 3, v2
        v_lshl_add_u32 v1, v1, 4, v{GA}
        v_add_u32 v{TR}, s35, v1
        v_lshlrev_b32 v{CA}, 4, v{KR}
        v_add_u32 v1, 1, v{KR}
        v_lshrrev_b32 v1, 2, v1
        v_lshl_add_u32 v{STL}, v1, 30, v{GA}
        v_lshlrev_b32 v1, 4, v{ROW}
        v_add_u32 v{KR}, {L_KEY}, v1
        s_lshl_b32 s35, s{sRT}, 4
        v_add_u32 v{ROW}, s35, v{ROW}
        v_lshlrev_b32 v{KW}, 2, v{ROW}
        v_add_u32 v{KW}, {L_KEY}, v{KW}""")
    def zero_o(self):
        for o in self.O: self.a(f"{MF} v[{o}:{o+15}], v[{ZR}:{ZR+3}], v[{ZR}:{ZR+3}], {self.opt.get('oi', 0)}")
    def q_addr(self):
        for p in range(4):
            self.a(f"s_add_u32 s35, s{sRT}, {p + 1}\ns_and_b32 s{44+p}, s35, 3\ns_lshl_b32 s35, s{44+p}, 11\nv_add_u32 v{16+p}, s35, v{GA}")
    def attention(self):
        a = self.a; stamp = self.stamp
        Q, O, KV = self.Q, self.O, self.KV
        S = (16, 32); IDX = 4
        PT = [O[0] + 8*i for i in range(6)]
        o = lambda k, d: int(self.opt.get(k, d))
        a("Lattn:")
        stamp(5); stamp(1, True)
        for p in range(4):
            for f in range(2): a(f"ds_read_b128 v[{Q[p]+4*f}:{Q[p]+4*f+3}], v{16+p} offset:{L_QX + 1024*f}")
        vm = Vm(); vm.add(("kv", 0), 4)
        RR = o("rr", 4); LW = self.opt.get("lw", "b")
        steps = [(t // 4, t % 4) for t in range(32 - 4*RR)] + [(8 - RR + t % RR, t // RR) for t in range(4*RR)]
        def qk(t):
            kt, p = steps[t]; n = S[t & 1]; k = KV[kt % 5]
            u, w = (4, 0) if not self.opt.get("noqo") else (0, 4)
            return [f"{MF} v[{n}:{n+15}], v[{k+u}:{k+u+3}], v[{Q[p]+u}:{Q[p]+u+3}], 0", f"{MF} v[{n}:{n+15}], v[{k+w}:{k+w+3}], v[{Q[p]+w}:{Q[p]+w+3}], v[{n}:{n+15}]"]
        def pv(t, f):
            kt, p = steps[t]; c = S[t & 1] + 8*f; v = KV[kt % 5] + 8 + 4*f
            return f"{SM} v[{O[p]}:{O[p]+15}], v[{v}:{v+3}], v[{c}:{c+7}], v{IDX}"
        a(f"v_mov_b32 v{IDX}, 0xdddddddd\ns_mul_i32 s36, s{sGRP}, {4*12288 + 2048}\ns_mul_i32 s37, s{sGRP}, {-8*12288}\ns_add_u32 s37, s37, {4*12288}")
        a(f"s_waitcnt vmcnt(2) lgkmcnt(6)")
        a("\n".join(qk(0)))
        for p in range(3):
            a(f"s_mul_i32 s35, s{44+p}, 12288\ns_add_u32 s35, s35, s36\nv_add_u32 v{8+2*p}, s35, v{GA}\nv_add_u32 v{9+2*p}, s37, v{8+2*p}")
        a("s_waitcnt lgkmcnt(0)")
        sd = {}
        def put(t, pos, tag, x):
            assert (t, pos) not in sd, (t, pos)
            sd[(t, pos)] = (tag, x)
        K3 = o("k3", 6)
        for j, x in enumerate(self.kv_load(1)): put(0, 1 + j, ("kv", 1), x)
        K2 = o("k2", 3)
        put(K2 - 1, 0, "fl", f"v_lshrrev_b32 v14, 2, v{GA}\nbuffer_load_dword v15, v14, {WSR}, s{sFLG} offen sc1")
        put(K2, 0, "flc", None)
        self.ool.append(f"""Lfl:
        buffer_load_dword v15, v14, {WSR}, s{sFLG} offen sc1
        s_sub_u32 s{sSPIN}, s{sSPIN}, 1
        s_bitcmp1_b32 s{sSPIN}, 31
        s_cbranch_scc1 Lflx
        s_waitcnt vmcnt(0)
        v_cmp_ne_u32 vcc, s{sTAG}, v15
        s_and_b32 s35, vcc_lo, vcc_hi
        s_cbranch_scc1 Lfl
        s_branch Lflx""")
        for j, x in enumerate(self.kv_load(2)): put(K2, 1 + j, ("kv", 2), x)
        if self.opt.get("xc2"): put(K2 + 1, 1, "xc", f"""v_bfe_u32 v14, v{GA}, 1, 8
        s_lshl_b32 s35, s{sXCD}, 8
        s_add_u32 s35, s35, {WS_XCC}
        buffer_load_dwordx2 v[14:15], v14, {WSR}, s35 offen sc1""")
        if self.opt.get("xc2"): put(12, 0, "xce", None)
        KR = o("kr", 4)
        pat = {2: ((0, 1), (1, 1)), 3: ((0, 1), (0, 4), (1, 3)), 4: ((0, 1), (0, 3), (1, 1), (1, 3))}[KR]
        n = 0
        for kt in range(3, 8):
            for j, x in enumerate(self.kv_load(kt)):
                u = K3 + 2*(n // KR) + pat[n % KR][0]
                assert kt < 5 or u > 4*(kt - 4)
                put(u, pat[n % KR][1], ("kv", kt), x); n += 1
        put(o("tw0", 16), 1, "t", f"buffer_load_dword v118, v{TC2}, s[{sW2}:{sW2+3}], 0 offen")
        put(o("s0", 8), 2, "clr", f"buffer_store_dwordx4 v[{ZR}:{ZR+3}], v{GA}, {WSR}, s{sOO} offen sc1")
        put(o("sf2", 18), 0, "f2", None)
        S1 = o("s1", 24)
        for n in range(8):
            put(*((S1 + n // 2, 1 + 2*(n % 2)) if o("wr", 2) == 2 else (S1 + n, 3)), "w2", f"""s_add_u32 m0, s{sW2L}, {L_W2 + n*8*896}
            s_add_u32 s35, s{sW2G}, {n*8*7*896}
            s_mov_b32 exec_hi, 0x00ffffff
            buffer_load_dwordx4 v{W2A}, s[{sW2}:{sW2+3}], s35 offen lds
            s_mov_b32 exec_hi, -1""")
        S2 = o("s2", 28)
        put(S2, 3, "f2c", f"buffer_load_dword v{F2V}, v{F2A}, {WSR}, s{sF2C} offen sc1")
        put(o("t0", 16), 3, "t", f"buffer_load_dword v118, v{TCH}, s[{sOUT}:{sOUT+3}], 0 offen")
        ns = self.opt.get("noside", "")
        for k in list(sd):
            if sd[k][0] in ns.split(","): del sd[k]
        lds = {}
        for p in range(3):
            w = [f"ds_write_b128 v{8+2*p+(i>>1)}, v[{O[p]+4*i}:{O[p]+4*i+3}] offset:{4096*p + 1024*(i&1)}" for i in range(4)]
            if self.opt.get("w64"):
                w = [f"ds_write_b64 v{8+2*p+(i>>1)}, v[{O[p]+4*i}:{O[p]+4*i+1}] offset:{4096*p + 1024*(i&1)}\nds_write_b64 v{8+2*p+(i>>1)}, v[{O[p]+4*i+2}:{O[p]+4*i+3}] offset:{4096*p + 1024*(i&1) + 8}" for i in range(4)]
            t0 = 32 - RR*(3 - p)
            if LW == "a": pl = [(t0 + 1, i) for i in range(4)] if p < 2 else [(t0, 3), (t0, 3), (t0, 4), (t0, 4)]
            elif RR == 3: pl = [(t0, 4), (t0 + 1, 1), (t0 + 1, 4), (t0 + 2, 2)] if p < 2 else [(t0, 2), (t0, 4), (t0 + 1, 0), (t0 + 1, 2)]
            else: pl = [(t0 + i, 2) for i in range(4)] if p < 2 else [(t0, 2), (t0 + 1, 0), (t0 + 1, 4), (t0 + 2, 2)]
            for i in range(4): lds.setdefault(pl[i], []).append(w[i])
        rd = [f"ds_read_b128 v[{PT[i>>1]+4*(i&1)}:{PT[i>>1]+4*(i&1)+3}], v{CW} offset:{1024*i}" for i in range(12)]
        BA = (30, 1) if LW == "a" else (30, 4)
        rp = ((30, 1), (30, 2), (30, 2), (30, 3), (30, 4), (30, 4), (31, 0), (31, 0), (31, 1), (31, 1), (31, 2), (31, 2)) if LW == "a" else \
             ((30, 4), (30, 4), (30, 4), (31, 5), (31, 5), (31, 5), (31, 0), (31, 0), (31, 0), (31, 1), (31, 1), (31, 1))
        for i, k in enumerate(rp): lds.setdefault(k, []).append(rd[i])
        QBAR = o("qbar", 16)
        def side(t, pos):
            if (t, pos) == (QBAR, 0): a("s_barrier")
            if (t, pos) == BA and "bara" not in ns: a("s_waitcnt lgkmcnt(0)\ns_barrier")
            for x in lds.get((t, pos), []):
                if not (("ldw" in ns and "write" in x) or ("ldr" in ns and "read" in x)): a(x)
            if (t, pos) not in sd: return
            tag, x = sd[(t, pos)]
            if tag == "flc":
                a(f"s_waitcnt vmcnt({vm.wait('fl')})\nv_cmp_ne_u32 vcc, s{sTAG}, v15\ns_and_b32 s35, vcc_lo, vcc_hi\ns_cbranch_scc1 Lfl\nLflx:")
                return
            if tag == "xce":
                assert "xc" not in vm.q
                a(f"""s_getreg_b32 s35, hwreg(HW_REG_XCC_ID, 0, 4)
                v_cmp_ne_u32 vcc, s{sTAG}, v14
                v_cmp_ne_u32 s[36:37], s35, v15
                s_or_b64 vcc, vcc, s[36:37]
                s_cselect_b32 s{sLOC}, 0, 1""")
                return
            if tag == "f2":
                w = f"s_waitcnt vmcnt({vm.wait('clr')})\n" if "clr" in vm.q else ""
                x = f"v_mov_b32 v{F2V}, s{sTAG}\n{w}s_mov_b64 exec, 1\nbuffer_store_dword v{F2V}, v{ZR}, {WSR}, s{sF2} offen sc1\ns_mov_b64 exec, -1"
            a(x); vm.add(tag)
        seq = {"a": "e e P 5 e e e W Q0 e e e Q1 0 e e 1 e e C 2 e e 3 e 4 e",
               "c": "e e P 5 e e W Q0 e e e Q1 0 e e 1 e e e C 2 e e 3 e 4 e",
               "e": "e e e e P 5 e e e W Q0 e e e Q1 0 e 1 e e C 2 e 3 e 4 e",
               "f": "e e e P 5 e e e W Q0 e e e Q1 0 e e 1 e C 2 e e 3 e 4 e",
               "g": "e e e e P 5 e e e W Q0 0 e e e Q1 1 e e e C 2 e 3 e 4 e",
               "h": "e e P 5 e e e e W Q0 0 e e e e Q1 1 e e e e C 2 3 e 4 e"}[self.opt.get("seq", "c")]
        NT = 32
        PRI = {}
        for x in self.opt.get("pri", "0.0.3,8.8.2,13.0.1,15.4.0,16.7.3,24.0.2,28.0.1,30.0.0,30.15.1,31.9.0").split(","):
            u, v, w = [int(y) for y in x.split(".")]; PRI[(u, v)] = w
        for t in range(NT):
            c = S[t & 1]; ei = 0
            AS = [int(x) for x in self.opt.get("as", "4,8,16,24,28,31").split(",")]
            if t in AS: stamp(AS.index(t) + 2, True)
            for tok in seq.split():
                if tok == "e":
                    p = PRI.get((t, ei))
                    if p is not None: a(f"s_setprio {p}")
                    a(f"v_exp_f32 v{c+ei}, v{c+ei}"); ei += 1
                elif tok == "P":
                    if t > 0: a(pv(t - 1, 1))
                elif tok == "C": a(pv(t, 0))
                elif tok == "W":
                    if t + 1 < NT and ("kv", steps[t + 1][0]) in vm.q:
                        assert vm.q.count(("kv", steps[t + 1][0])) == 4 or all(v[0] != ("kv", steps[t + 1][0]) for k, v in sd.items() if k > (t, 0))
                        a(f"s_waitcnt vmcnt({vm.wait(('kv', steps[t + 1][0]))})")
                elif tok[0] == "Q":
                    if t + 1 < NT: a(qk(t + 1)[int(tok[1])])
                else: side(t, int(tok))
        X = O[3]
        a(f"""s_xor_b32 s35, s{sWAVE}, 4
        s_mulk_i32 s35, 12288
        {pv(NT - 1, 1)}""")
        stamp(6)
        a(f"""v_add_u32 v5, s35, v{GA}
        v_mov_b32 v6, {L_BAD}
        s_mov_b32 s36, {hex(f2u(float(self.opt.get('thr', 0.5))))}
        s_waitcnt lgkmcnt(0)""")
        def tree(i):
            p = lambda d, x, y: f"v_pk_add_f32 v[{d+2*i}:{d+2*i+1}], v[{x+2*i}:{x+2*i+1}], v[{y+2*i}:{y+2*i+1}]"
            return [p(PT[0], PT[0], PT[1]), p(PT[2], PT[2], PT[3]), p(PT[4], PT[4], PT[5]), p(PT[0], PT[0], PT[2]), p(PT[0], PT[0], PT[4]), p(X, X, PT[0])]
        t3, t2 = tree(3), tree(2)
        a("\n".join(t3[:5] + t2[:3]))
        a(f"ds_write_b128 v{CW}, v[{X+8}:{X+11}]\nds_write_b128 v{CW}, v[{X+12}:{X+15}] offset:1024")
        a(f"""{t3[5]}
        v_cmp_nge_f32 s[44:45], s36, v{X+7}
        v_cmp_nle_f32 vcc, {hex(f2u(2.0**-70))}, v{X+7}""")
        a("\n".join(t2[3:]))
        a(f"""s_or_b64 vcc, s[44:45], vcc
        s_cbranch_scc1 Lbad
        Lbadx:
        s_waitcnt vmcnt({vm.wait('f2c')}) lgkmcnt(0)
        s_barrier
        ds_read_b128 v[20:23], v5 offset:1024
        ds_read_b128 v[16:19], v5
        ds_read_b32 v26, v6""")
        a("\n".join(x for pr in zip(tree(0), tree(1)) for x in pr))
        a(f"""
        s_waitcnt lgkmcnt(2)
        v_add_f32 v23, v23, v{X+7}
        v_rcp_f32 v24, v23
        v_pk_add_f32 v[20:21], v[20:21], v[{X+4}:{X+5}]
        v_add_f32 v22, v22, v{X+6}
        s_waitcnt lgkmcnt(0)
        v_readfirstlane_b32 s35, v26
        v_pk_add_f32 v[16:17], v[16:17], v[{X}:{X+1}]
        v_pk_add_f32 v[18:19], v[18:19], v[{X+2}:{X+3}]
        v_mul_f32 v22, v22, v24
        v_pk_mul_f32 v[16:17], v[16:17], v[24:25] op_sel_hi:[1,0]
        v_pk_mul_f32 v[18:19], v[18:19], v[24:25] op_sel_hi:[1,0]
        v_pk_mul_f32 v[20:21], v[20:21], v[24:25] op_sel_hi:[1,0]
        v_cvt_pk_bf16_f32 v31, v22, -v{ZR}
        v_cvt_pk_bf16_f32 v28, v16, v17
        v_cvt_pk_bf16_f32 v29, v18, v19
        v_cvt_pk_bf16_f32 v30, v20, v21
        s_cmp_gt_u32 s35, s{sRETRY}
        s_cbranch_scc1 Lfallback
        buffer_store_dwordx4 v[28:31], v{GA}, {WSR}, s{sOO} offen sc1""")
        self.ool.append(f"Lbad:\nds_write_b32 v6, v{IDX}\ns_branch Lbadx")
        stamp(7)
        self.flush_stamps(0, 8, False)

    def fallback(self):
        a = self.a; Q = self.Q[3]
        a(f"""Lfallback:
        s_mov_b32 s{sRETRY}, -1
        s_barrier
        s_lshl_b32 s35, s{sH}, 15
        s_add_u32 s35, s35, {WS_KV}
        s_mov_b32 s36, 64
        v_mov_b32 v3, 0xff800000
        s_mov_b32 exec_lo, 0
        v_mov_b32 v{Q+6}, 0
        s_mov_b32 exec_lo, -1
        Lfb1:
        buffer_load_dwordx4 v[80:83], v{GA}, {WSR}, s35 offen sc1
        buffer_load_dwordx4 v[84:87], v{GA}, {WSR}, s35 offen offset:1024 sc1
        s_waitcnt vmcnt(0)
        {MF} v[16:31], v[80:83], v[{Q}:{Q+3}], 0
        {MF} v[16:31], v[84:87], v[{Q+4}:{Q+7}], v[16:31]
        s_sub_u32 s36, s36, 1
        s_and_b32 s37, s36, 7
        s_cselect_b32 s37, 0, {(1 << 19) - 32768}
        s_add_u32 s35, s35, s37
        s_add_u32 s35, s35, 4096""")
        for p in range(8): a(f"v_max3_f32 v3, v{16+2*p}, v{17+2*p}, v3")
        a(f"""s_cmp_lg_u32 s36, 0
        s_cbranch_scc1 Lfb1
        v_mov_b32 v5, v3
        v_permlane32_swap_b32 v5, v3
        v_max_f32 v3, v3, v5
        v_sub_f32 v3, 0, v3
        v_and_b32 v5, 0xffff0000, v3
        v_sub_f32 v3, v3, v5
        v_and_b32 v6, 0xffff0000, v3
        v_sub_f32 v3, v3, v6
        v_lshrrev_b32 v5, 16, v5
        s_mov_b32 exec_lo, 0
        v_or_b32 v{Q+6}, v5, v6
        v_lshrrev_b32 v{Q+7}, 16, v3
        s_mov_b32 exec_lo, -1
        s_lshl_b32 s35, s{sRT}, 11
        v_add_u32 v3, s35, v{GA}
        ds_write_b128 v3, v[{Q}:{Q+3}] offset:{L_QX}
        ds_write_b128 v3, v[{Q+4}:{Q+7}] offset:{L_QX + 1024}""")
        self.q_addr()
        a("s_branch Lattn1")

    def build(self):
        import tail
        a = self.a; self.ool = []
        self.head(); self.loader(); self.compute(); self.attention()
        tail.emit(self)
        for x in self.ool: a(x)
        a("Lcoldcode:")
        self.fallback()
        a("Lexit:\ns_endpgm")
        rm = self.opt.get("rm", "").split(",")
        i0, i1, i2 = a.L.index("Lload:"), a.L.index("Lcomp:"), a.L.index("LcompQ:")
        kiss = []
        for i, l in enumerate(a.L):
            c = i1 < i < i2; ld = i0 < i < i1
            if ("dot" in rm and c and "v_dot2c" in l) or ("dots" in rm and c and "v_dot2c" in l and ", s" in l) or ("lx" in rm and ld and "ds_read_b128 v[1" in l) or ("lx" in rm and ld and "ds_read_b128 v[2" in l) \
               or ("lm" in rm and ld and "16x16x32" in l) or ("cm" in rm and c and "v_mfma" in l): continue
            kiss.append(l)
        a.L = kiss
        hazard.TRANS2 = bool(self.opt.get('t2'))
        import layout
        hdr = open(f"cdna_kernels/{NAME}.s.ref").read().split("; Override launch")[0]
        hdr += "; @launch grid=(256,1,1) block=(512,1,1) lds=163840\n"
        hdr += '.amdgcn_target "amdgcn-amd-amdhsa--gfx950"\n.text\n'
        if not self.opt.get("nopage"): hdr += ".p2align 12\n.fill 832, 4, 0xbf800000\n"
        lines = layout.finish(a.L, self.opt)
        return hdr + "\n".join(lines) + '\n.section .rodata,"a"\n' + kdesc(NAME + "_kernel", 256)

if __name__ == "__main__":
    opt = {}
    out = f"cdna_kernels/{NAME}.s"
    for x in sys.argv[1:]:
        if x.startswith("out="): out = x[4:]
        elif "=" in x: k, v = x.split("="); opt[k] = v
        else: opt[x] = True
    import gen
    open(out, "w").write(gen.G(opt).build())
```

```python
import math
from asmlib import *
from gen import *

S16 = "v_smfmac_f32_16x16x64_bf16"
def emit(g):
    A = [g.a]
    a = lambda s: A[0](s)
    stamp = g.stamp; opt = g.opt
    OUTS = opt.get("outs", "sc1").replace("plain", "")
    def red8(regs):
        for m in ("quad_perm:[1,0,3,2]", "quad_perm:[2,3,0,1]", "row_half_mirror"):
            for r in regs: a(f"v_add_f32_dpp v{r}, v{r}, v{r} {m} row_mask:0xf bank_mask:0xf")
    DM = "row_mask:0xf bank_mask:0xf"
    def merge16(m1, m2, t, fill=()):
        fill = list(fill)
        for k in (1, 2, 4, 8):
            a(f"""v_min_u32_dpp v{t}, v{m1}, v{m1} row_ror:{k} {DM}
            v_max_u32_dpp v{m1}, v{m1}, v{m1} row_ror:{k} {DM}
            v_max_u32_dpp v{m2}, v{m2}, v{m2} row_ror:{k} {DM}""")
            a(f"v_max_u32 v{m2}, v{m2}, v{t}")
            if fill: a(fill.pop(0))
        for x in fill: a(x)
    def top2(m1, m2, t, k1, k2):
        merge16(m1, m2, t)
        a(f"""v_readlane_b32 s{k1}, v{m1}, 0
        v_readlane_b32 s35, v{m1}, 16
        v_readlane_b32 s{k2}, v{m2}, 0
        v_readlane_b32 s36, v{m2}, 16
        s_min_u32 s37, s{k1}, s35
        s_max_u32 s{k1}, s{k1}, s35
        s_max_u32 s{k2}, s{k2}, s36
        s_max_u32 s{k2}, s{k2}, s37""")
    a(f"s_cmp_ge_u32 s{sJ}, 28\ns_cbranch_scc1 Lffn")
    a("; ==== out-projection (two waves per 16 rows, eight heads each), residual, LN2, router")
    WOF, OF, ACC = 128, 32, 16
    XP, WRP, WRA, XU, WSUM = PF, PF + 4, PF + 8, 64, 72
    GS = opt.get("gstamps")
    def clr(k):
        a(f"v_cmp_ne_u32 vcc, s{sTAG}, v{F2V}\ns_cbranch_vccnz Lclr{k}\nLclr_ok{k}:")
        g.ool.append(f"""Lclr{k}:
        buffer_load_dword v{F2V}, v{F2A}, {WSR}, s{sF2C} offen sc1
        s_sub_u32 s{sSPIN}, s{sSPIN}, 1
        s_bitcmp1_b32 s{sSPIN}, 31
        s_cbranch_scc1 Lclr_ok{k}
        s_waitcnt vmcnt(0)
        v_cmp_ne_u32 vcc, s{sTAG}, v{F2V}
        s_cbranch_vccnz Lclr{k}
        s_branch Lclr_ok{k}""")
    stamp(8)
    def oload(hl): a(f"s_add_u32 s35, s{sOA if hl < 4 else sOB}, {hl*131072}\nbuffer_load_dwordx4 v[{OF+4*hl}:{OF+4*hl+3}], v{OA}, {WSR}, s35 offen sc1")
    NO0 = int(opt.get("no0", 4)); NO1 = int(opt.get("no1", 8))
    OD = int(opt.get("od", 4))
    def trs(hl):
        if hl == 4 and opt.get("qm", "no") != "no":
            for k in range(8): a(f"v_subrev_u32 v{TA+k}, s{sTS}, v{TA+k}")
        for ct in range(4):
            w = WOF + (hl*4 + ct)*4
            a(f"ds_read_b64_tr_b16 v[{w}:{w+1}], v{TA+ct} offset:{hl*3584}")
            a(f"ds_read_b64_tr_b16 v[{w+2}:{w+3}], v{TA+4+ct} offset:{hl*3584 + 512}")
    def mf4(hl, first):
        return [f"{M16} v[{ACC+4*ct}:{ACC+4*ct+3}], v[{WOF+(hl*4+ct)*4}:{WOF+(hl*4+ct)*4+3}], v[{OF+4*hl}:{OF+4*hl+3}], {'0' if first else f'v[{ACC+4*ct}:{ACC+4*ct+3}]'}" for ct in range(4)]
    vm = Vm()
    def allq(regs, tmp):
        for sw in ("v_permlane32_swap_b32", "v_permlane16_swap_b32"):
            for i, r in enumerate(regs): a(f"v_mov_b32 v{tmp+i}, v{r}")
            for i, r in enumerate(regs): a(f"{sw} v{tmp+i}, v{r}")
            for i, r in enumerate(regs): a(f"v_add_f32 v{r}, v{tmp+i}, v{r}")
    a(f"s_lshl_b32 s42, s{sCG}, 7\ns_add_u32 s43, s42, 7168\ns_cmp_eq_u32 s{sGRP}, 1\ns_cbranch_scc1 Lg1")
    def gemm(grp, sched):
        vm = Vm(); lg = Vm()
        nt = nl = nm = 0
        def room(n):
            if len(lg.q) + n > 15:
                k = 15 - n; a(f"s_waitcnt lgkmcnt({k})"); lg.q = lg.q[len(lg.q) - k:]
        for ch in sched:
            if ch == "p":
                if grp == 0:
                    a(f"""buffer_load_dwordx4 v[{PF}:{PF+3}], v{XA}, s[{sX}:{sX+3}], s42 offen
                    buffer_load_dwordx4 v[{PF+4}:{PF+7}], v{XA}, s[{sX}:{sX+3}], s43 offen""")
                    vm.add("p", 2)
                else:
                    a(f"v_lshrrev_b32 v1, 1, v{CA}")
                    srd(a, sW, pWR, 896)
                    for ct in range(4): a(f"buffer_load_dwordx2 v[{PF+2*ct}:{PF+2*ct+1}], v1, s[{sW}:{sW+3}], s42 offen offset:{32*ct}")
                    a(f"buffer_load_dwordx4 v[{PF+8}:{PF+11}], v{GA}, s[{sW}:{sW+3}], 0 offen")
                    vm.add("p", 5)
            elif ch == "t":
                room(8); trs(nt); lg.add(nt, 8)
                if nt == 0:
                    clr(grp)
                    a("s_barrier")
                nt += 1
            elif ch == "i":
                room(6)
                a(f"""s_waitcnt vmcnt({vm.wait("p")})
                ds_write_b128 v{TR}, v[{PF}:{PF+3}]
                ds_write_b128 v{TR}, v[{PF+4}:{PF+7}] offset:{8*144}""")
                for ct in range(4): a(f"ds_read_b64 v[{64+2*ct}:{65+2*ct}], v{TD} offset:{32*ct}")
                lg.add("x", 6)
            elif ch == "l":
                if GS and nl in (0, 4): stamp(10 + nl // 4)
                assert nt > 0
                oload(nl); vm.add(nl); nl += 1
            else:
                assert nt > nm
                if nm == 0 and grp == 0:
                    if "x" in lg.q: a(f"s_waitcnt lgkmcnt({lg.wait('x')})")
                    for p in range(8): a(f"v_lshlrev_b32 v{ACC+2*p}, 16, v{64+p}\nv_and_b32 v{ACC+2*p+1}, 0xffff0000, v{64+p}")
                a(f"s_waitcnt vmcnt({vm.wait(nm)})" + (f" lgkmcnt({lg.wait(nm)})" if nm in lg.q else ""))
                if GS and nm in (0, 4): stamp(12 + nm // 4)
                a("\n".join(mf4(nm, nm == 0 and grp == 1)))
                if nm == 1: a(f"v_and_b32 v3, v{OF+3}, v{OF+7}")
                elif nm > 1: a(f"v_and_b32 v3, v3, v{OF+4*nm+3}")
                if grp == 1:
                    if nm < 3: a(f"v_mov_b32 v{76+nm}, 0")
                    if nm == 3: a(f"v_mov_b32 v79, s{sTAG}")
                    if nm == 4: a(f"s_lshl_b32 s45, s42, 1\ns_add_u32 s45, s45, s{sSTA}")
                    if nm == 5: a(f"v_mov_b32 v{WSUM}, 0")
                nm += 1
        assert nt == nl == nm == 8 and "p" not in vm.q
    gemm(0, opt.get("o0", "ptttttlllltttillllmmmmmmmm"))
    a("s_branch Lg2\nLg1:")
    gemm(1, opt.get("o1", "pttttttllllttllllmmmmmmmm"))
    a("Lg2:")
    stamp(15)
    a(f"""v_cmp_le_i32 vcc, 0, v3
    s_cbranch_vccnz Lre
    Lrex:""")
    r = f"; ---- O pieces that had not arrived read as zero: fetch only those again and add them in\nLre:\nv_bfrev_b32 v5, 2\n"
    M = lambda hl: f"s[{64+2*hl}:{65+2*hl}]"
    for hl in range(8): r += f"v_cmp_le_i32 {M(hl)}, 0, v{OF+4*hl+3}\n"
    r += "Lre1:\n"
    for u in range(4):
        r += f"s_or_b64 s[36:37], {M(2*u)}, {M(2*u+1)}\ns_cbranch_scc0 Lre2_{u}\n"
        for hl in (2*u, 2*u + 1):
            r += f"""v_cndmask_b32 v{3 + (hl & 1)}, v5, v{OA}, {M(hl)}
            s_add_u32 s35, s{sOA if hl < 4 else sOB}, {hl*131072}
            buffer_load_dwordx4 v[{OF+4*hl}:{OF+4*hl+3}], v{3 + (hl & 1)}, {WSR}, s35 offen sc1
            """
        r += f"Lre2_{u}:\n"
    r += f"s_mov_b64 s[46:47], 0\ns_sub_u32 s{sSPIN}, s{sSPIN}, 1\ns_waitcnt vmcnt(0)\n"
    NL = "\n"
    for u in range(4):
        r += f"""s_or_b64 s[36:37], {M(2*u)}, {M(2*u+1)}
        s_cbranch_scc0 Lre3_{u}
        v_cmp_le_i32 vcc, 0, v{OF+8*u+3}
        v_cmp_le_i32 s[36:37], 0, v{OF+8*u+7}
        {NL.join(mf4(2*u, False) + mf4(2*u + 1, False))}
        s_and_b64 {M(2*u)}, {M(2*u)}, vcc
        s_and_b64 {M(2*u+1)}, {M(2*u+1)}, s[36:37]
        s_or_b64 s[46:47], s[46:47], {M(2*u)}
        s_or_b64 s[46:47], s[46:47], {M(2*u+1)}
        Lre3_{u}:
        """
    r += f"""s_cmp_eq_u64 s[46:47], 0
    s_cbranch_scc1 Lrex
    s_bitcmp1_b32 s{sSPIN}, 31
    s_cbranch_scc0 Lre1
    s_branch Lrex"""
    g.ool.insert(0, r)
    stamp(9)
    a(f"s_cmp_eq_u32 s{sGRP}, 1\ns_cbranch_scc1 Lsec")
    for ct in range(4): a(f"ds_write_b128 v{EW}, v[{ACC+4*ct}:{ACC+4*ct+3}] offset:{1024*ct}")
    a("s_waitcnt lgkmcnt(0)\ns_barrier")
    if opt.get("wb") == "a":
        a(f"s_or_b32 s35, s{sJ}, s{sRT}\ns_cbranch_scc1 Lnowb\nbuffer_wbl2 sc1\nLnowb:")
    g.flush_stamps(8, 8)
    a("s_endpgm\nLsec:\ns_barrier")
    for ct in range(4): a(f"ds_read_b128 v[{32+4*ct}:{35+4*ct}], v{EW} offset:{1024*ct}")
    HG, HN, HU, D, OP = 128, 144, 160, 176, 192
    hp = [HG + 4*(p >> 1) + (p & 1) for p in range(8)]; hn = [HN + 4*(p >> 1) + (p & 1) for p in range(8)]
    for ct in range(4):
        a(f"s_waitcnt lgkmcnt({3 - ct})")
        for p in (2*ct, 2*ct + 1): a(f"v_pk_add_f32 v[{32+2*p}:{33+2*p}], v[{32+2*p}:{33+2*p}], v[{ACC+2*p}:{ACC+2*p+1}]")
        for p in (2*ct, 2*ct + 1): a(f"v_cvt_pk_bf16_f32 v{hp[p]}, v{32+2*p}, v{33+2*p}")
        for p in (2*ct, 2*ct + 1):
            a(f"""v_dot2c_f32_bf16 v76, s{sONES}, v{hp[p]}
            v_dot2c_f32_bf16 v77, v{hp[p]}, v{hp[p]}
            v_dot2c_f32_bf16 v78, v{PF+p}, v{hp[p]}""")
    allq((76, 77, 78), 64)
    a("s_mov_b64 exec, 0xffff")
    g.dual([f"buffer_store_dwordx4 v[76:79], v{GA}, {WSR}, s45 offen @"])
    a("s_mov_b64 exec, -1")
    if not GS: stamp(10)
    sl = f"buffer_load_dwordx4 v[16:19], v{GA}, {WSR}, s{sSTA} offen sc1\nbuffer_load_dwordx4 v[20:23], v{STL}, {WSR}, s{sSTA} offen offset:1024 sc1"
    a(sl)
    for p in range(4): a(f"v_dot2c_f32_bf16 v{WSUM}, s{sONES}, v{PF+8+p}")
    for i, k in enumerate((1, 2, 4, 8)):
        a(f"v_add_f32_dpp v{WSUM}, v{WSUM}, v{WSUM} row_ror:{k} {DM}")
        for p in (2*i, 2*i + 1): a(f"v_lshlrev_b32 v{HU+2*p}, 16, v{hp[p]}\nv_and_b32 v{HU+2*p+1}, 0xffff0000, v{hp[p]}")
    allq((WSUM,), 64)
    for ct in range(4): a(f"v_mov_b32 v{HG+4*ct+2}, s{sTAG}\nv_mov_b32 v{HN+4*ct+2}, s{sTAG}")
    srd(a, sOUT, pOUT, 1835008)
    a(f"""v_mov_b32 v26, s{sTAG}
    v_add_u32 v5, 4096, v{CA}
    s_lshl_b32 s41, s{sRB}, 7
    s_add_u32 s41, s41, {WS_SCORE}
    s_branch Lst1
    Lst:
    {sl}""")
    g.spin_guard("Lstx")
    a(f"""Lst1:
    s_waitcnt vmcnt(0)
    v_cmp_ne_u32 s[46:47], s{sTAG}, v23
    v_cmp_ne_u32 vcc, s{sTAG}, v19
    v_add_f32 v16, v16, v20
    v_add_f32 v17, v17, v21
    v_add_f32 v18, v18, v22
    s_and_b32 s47, s47, 0xffff
    s_or_b64 vcc, vcc, s[46:47]
    s_cbranch_scc1 Lst
    Lstx:""")
    if not GS: stamp(11)
    allq((16, 17, 18), 64)
    a("; ---- LN2 statistics complete: score, block top two, candidate rows, out = h + LN2(h)")
    NMB, RSTD, RR, KEY = 20, 22, HG + 3, 73
    g.ln_stats(16, 17, NMB, RSTD, 19)
    a(f"""v_fma_f32 v{RR}, v{NMB}, v{WSUM}, v18
    v_mul_f32 v{RR}, v{RR}, v{RSTD}
    v_ashrrev_i32 v3, 31, v{RR}
    v_bitop3_b32 v3, v3, v{RR}, s{sSGN} bitop3:0x36
    v_and_or_b32 v{KEY}, v3, s{sKM}, v{ROW}
    ds_write_b32 v{KW}, v{KEY}""")
    for p in range(8): a(f"v_pk_add_f32 v[{D+2*p}:{D+2*p+1}], v[{HU+2*p}:{HU+2*p+1}], v[{NMB}:{NMB+1}] op_sel_hi:[1,0]")
    for p in range(8): a(f"v_cvt_pk_bf16_f32 v{32+p}, v{D+2*p}, v{D+2*p+1}")
    a(f"s_waitcnt lgkmcnt(0)\ns_barrier\nds_read_b128 v[68:71], v{KR}")
    for p in range(8): a(f"v_lshlrev_b32 v{D+2*p}, 16, v{32+p}\nv_and_b32 v{D+2*p+1}, 0xffff0000, v{32+p}")
    for p in range(8): a(f"v_pk_mul_f32 v[{D+2*p}:{D+2*p+1}], v[{D+2*p}:{D+2*p+1}], v[{RSTD}:{RSTD+1}] op_sel_hi:[1,0]")
    a(f"""s_or_b32 s35, s{sCG}, s{sRT}
    s_waitcnt lgkmcnt(0)
    v_max3_u32 v27, v68, v69, v70
    v_med3_u32 v25, v68, v69, v70
    v_max_u32 v24, v27, v71
    v_med3_u32 v25, v27, v25, v71
    v_cvt_pk_bf16_f32 v{hn[0]}, v{D}, v{D+1}""")
    merge16(24, 25, 27, [f"v_cvt_pk_bf16_f32 v{hn[p]}, v{D+2*p}, v{D+2*p+1}" for p in range(1, 4)])
    a(f"""s_cbranch_scc1 Lnosc
    s_mov_b64 exec, 1
    buffer_store_dwordx3 v[24:26], v{ZR}, {WSR}, s41 offen sc1
    s_mov_b64 exec, -1
    Lnosc:
    v_cmp_le_u32 s[48:49], v25, v{KEY}
    v_cmp_eq_u32 vcc, v25, v{KEY}""")
    for p in range(4, 8): a(f"v_cvt_pk_bf16_f32 v{hn[p]}, v{D+2*p}, v{D+2*p+1}")
    a(f"""s_cmp_eq_u64 s[48:49], 0
    s_cbranch_scc1 Lnocand
    v_cndmask_b32 v3, v{CA}, v5, vcc
    s_mov_b64 exec, s[48:49]""")
    for ct in range(4): a(f"buffer_store_dwordx3 v[{HN+4*ct}:{HN+4*ct+2}], v3, {WSR}, s{sCND} offen offset:{64*ct} sc1")
    for ct in range(1, 4): a(f"v_mov_b32 v{HG+4*ct+3}, v{RR}")
    for ct in range(4): a(f"buffer_store_dwordx4 v[{HG+4*ct}:{HG+4*ct+3}], v3, {WSR}, s{sCND} offen offset:{2048 + 64*ct} sc1")
    a("s_mov_b64 exec, -1\nLnocand:")
    if not GS: stamp(12)
    for p in range(8): a(f"v_lshlrev_b32 v{D+2*p}, 16, v{hn[p]}\nv_and_b32 v{D+2*p+1}, 0xffff0000, v{hn[p]}")
    for p in range(8): a(f"v_pk_add_f32 v[{D+2*p}:{D+2*p+1}], v[{HU+2*p}:{HU+2*p+1}], v[{D+2*p}:{D+2*p+1}]")
    for p in range(8): a(f"v_cvt_pk_bf16_f32 v{32+p}, v{D+2*p}, v{D+2*p+1}")
    for ct in range(4): a(f"ds_write_b64 v{TD}, v[{32+2*ct}:{33+2*ct}] offset:{32*ct}")
    a(f"""v_lshrrev_b32 v3, 3, v2
    s_lshl_b32 s35, s{sRT}, 6
    s_add_u32 s35, s35, {L_KEY}
    v_lshl_add_u32 v3, v3, 2, s35
    ds_read_b128 v[{OP}:{OP+3}], v{TR}
    ds_read_b128 v[{OP+4}:{OP+7}], v{TR} offset:{8*144}
    ds_read2_b32 v[74:75], v3 offset1:8""")
    if opt.get("ow", "ack") == "ack": a("s_waitcnt vmcnt(0)\ns_barrier")
    a(f"""s_waitcnt lgkmcnt(0)
    v_cmp_gt_u32 s[44:45], v25, v74
    v_cmp_gt_u32 s[46:47], v25, v75
    s_mov_b64 exec, s[44:45]
    buffer_store_dwordx4 v[{OP}:{OP+3}], v{XA}, s[{sOUT}:{sOUT+3}], s42 offen {OUTS}
    s_mov_b64 exec, s[46:47]
    buffer_store_dwordx4 v[{OP+4}:{OP+7}], v{XA}, s[{sOUT}:{sOUT+3}], s43 offen {OUTS}
    s_mov_b64 exec, -1
    s_cmp_eq_u64 s[48:49], 0
    s_cbranch_scc1 Lnocs
    s_movk_i32 s38, {WS_SEL}
    s_mov_b64 exec, 1
    Lsel:
    buffer_load_dwordx3 v[28:30], v{ZR}, {WSR}, s38 offen sc1""")
    g.spin_guard("Lselx")
    a(f"""s_waitcnt vmcnt(0)
    v_cmp_ne_u32 vcc, s{sTAG}, v30
    s_cbranch_vccnz Lsel
    Lselx:
    s_waitcnt vmcnt(0)
    v_readfirstlane_b32 s35, v29
    s_mov_b64 exec, -1""")
    if not GS: stamp(13)
    for k in range(2):
        a(f"""v_cmp_gt_u32 vcc, s35, v{74+k}
        s_andn2_b64 vcc, vcc, s[{44+2*k}:{45+2*k}]
        s_cbranch_scc0 Lnocs{k}
        s_mov_b64 exec, vcc
        buffer_store_dwordx4 v[{OP+4*k}:{OP+4*k+3}], v{XA}, s[{sOUT}:{sOUT+3}], s{42+k} offen {OUTS}
        s_mov_b64 exec, -1
        Lnocs{k}:""")
    a("Lnocs:")
    if opt.get("wb") == "b":
        a(f"s_or_b32 s35, s{sJ}, s{sRT}\ns_cbranch_scc1 Lnowb\nbuffer_wbl2 sc1\nLnowb:")
    stamp(14)
    g.flush_stamps(8, 8)
    a("s_endpgm")
    a("; ==== SwiGLU on the two routed rows, 64 hidden columns per workgroup")
    a(f"""Lffn:
    s_cmp_ge_u32 s{sF}, 28
    s_cbranch_scc1 Lidle""")
    srd(a, sX, pWU, 1605632); srd(a, sW, pWD, 1605632); srd(a, sW2, pWG, 1605632)
    a(f"""s_lshl_b32 s40, s{sF}, 7
    s_mul_i32 s35, s{sWAVE}, {8*3584}
    s_add_u32 s40, s40, s35
    s_lshl_b32 s41, s{sWAVE}, 10
    s_and_b32 s36, s{sWAVE}, 1
    s_lshl_b32 s36, s36, 5
    v_and_b32 v3, 16, v2
    v_and_b32 v4, 0x70, v{GA}
    v_xor_b32 v3, v3, v4
    v_xor_b32 v3, s36, v3
    v_lshrrev_b32 v4, 3, v2
    v_mul_u32_u24 v4, 3584, v4
    v_add_u32 v5, v3, v4
    v_xor_b32 v6, 64, v5
    s_barrier""")
    for n in range(7):
        a(f"""s_add_u32 m0, s41, {L_W2 + n*8192}
        s_add_u32 s35, s40, {n*64*3584}
        buffer_load_dwordx4 v5, s[{sW2}:{sW2+3}], s35 offen lds
        s_add_u32 m0, s41, {L_WU + n*8192}
        buffer_load_dwordx4 v6, s[{sX}:{sX+3}], s35 offen lds""")
    a(f"""v_lshrrev_b32 v3, 3, v2
    v_and_b32 v4, 7, v2
    v_mul_u32_u24 v3, 896, v3
    v_lshl_add_u32 v3, v4, 4, v3
    s_mul_i32 s40, s{sF}, {64*896}
    s_min_u32 s35, s{sWAVE}, 6
    s_lshl_b32 s35, s35, 7
    s_add_u32 s40, s40, s35""")
    for n in range(8):
        a(f"s_add_u32 s35, s40, {n*8*896}\nbuffer_load_dwordx4 v[{64+4*n}:{67+4*n}], v3, s[{sW}:{sW+3}], s35 offen")
    F1, F2 = 128, 192
    srd(a, sOUT, pOUT, 1835008)
    a(f"""v_lshrrev_b32 v3, 4, v2
    v_bfe_u32 v4, v2, 2, 2
    v_lshl_add_u32 v5, v3, 3, v4
    v_lshlrev_b32 v5, 7, v5
    v_lshrrev_b32 v4, 1, v4
    v_and_b32 v1, 1, v3
    v_lshl_add_u32 v4, v1, 1, v4
    v_and_b32 v6, 3, v2
    s_lshl_b32 s41, s{sWAVE}, 12
    v_lshl_add_u32 v9, v6, 3, v5
    v_lshl_add_u32 v9, v4, 5, v9
    v_add_u32 v9, s41, v9
    v_lshlrev_b32 v10, 5, v1
    v_xor_b32 v10, v10, v{GA}
    v_add_u32 v10, s41, v10
    v_xor_b32 v14, 64, v10
    v_bfe_u32 v15, v2, 1, 1
    v_lshl_add_u32 v4, v15, 2, v4
    v_xor_b32 v4, s{sWAVE}, v4
    v_and_b32 v6, 1, v2
    v_lshl_add_u32 v8, v6, 3, v5
    v_lshl_add_u32 v8, v4, 4, v8
    v_mul_u32_u24 v15, {L_W2 - L_WU}, v15
    v_sub_u32 v8, v8, v15
    v_add_u32 v8, {L_W2}, v8
    v_bfe_u32 v15, v2, 2, 1
    v_lshl_add_u32 v15, v15, 1, v6
    v_mul_u32_u24 v11, 448, v15
    v_lshl_add_u32 v11, v3, 4, v11
    v_add_u32 v11, {L_XS}, v11
    v_mul_u32_u24 v44, 0xaaaa, v6
    v_add_u32 v44, 0x4444, v44
    v_bfe_u32 v15, v2, 1, 1
    v_lshl_add_u32 v13, v1, 1, v15
    v_lshlrev_b32 v13, 6, v13
    v_lshl_add_u32 v13, v6, 1, v13
    v_and_b32 v15, 4, v2
    s_lshl_b32 s35, s{sWAVE}, 3
    s_add_u32 s35, s35, {L_A}
    v_add3_u32 v13, v13, v15, s35
    v_and_b32 v15, 3, v2
    v_lshlrev_b32 v15, 6, v15
    v_lshl_add_u32 v15, v3, 4, v15
    v_add_u32 v15, {L_A}, v15
    v_mov_b32 v52, {L_A + 256}
    v_mov_b32 v53, v52
    v_mov_b32 v54, v52
    v_mov_b32 v55, v52
    ds_write_b128 v52, v[{ZR}:{ZR+3}]
    s_mov_b32 exec_lo, 0x000f000f
    s_mov_b32 exec_hi, 0x000f000f
    v_mov_b32 v52, v15
    s_lshl_b64 exec, exec, 4
    v_mov_b32 v53, v15
    s_lshl_b64 exec, exec, 4
    v_mov_b32 v54, v15
    s_lshl_b64 exec, exec, 4
    v_mov_b32 v55, v15
    s_mov_b64 exec, -1
    v_mov_b32 v32, 0
    v_mov_b32 v33, 0
    v_mov_b32 v34, 0
    v_mov_b32 v35, 0
    v_mov_b32 v36, 0
    v_mov_b32 v37, 0
    v_mov_b32 v38, 0
    v_mov_b32 v39, 0
    v_mov_b32 v49, s{sTAG}
    v_mov_b32 v51, s{sTAG}
    v_xor_b32 v16, 32, v9
    v_xor_b32 v17, 64, v9
    v_xor_b32 v18, 96, v9
    s_mul_i32 s35, s{sWAVE}, 56
    s_add_u32 s35, s35, s{sF}
    s_lshl_b32 s35, s35, 8
    s_add_u32 s42, s35, {WS_PART}
    s_add_u32 s43, s42, {14*28*256}
    v_lshrrev_b32 v15, 5, v2
    v_mul_u32_u24 v15, {28*256 - 256}, v15
    v_lshl_add_u32 v15, v2, 3, v15
    @TOUR3
    s_waitcnt vmcnt(8)
    s_barrier""")
    stamp(8)
    for ks in range(14):
        for s_ in range(2): a(f"ds_read_b64_tr_b16 v[{F1+4*ks+2*s_}:{F1+4*ks+2*s_+1}], v8 offset:{ks*4096 + s_*512}")
        if ks % 4 == 3: a("s_waitcnt lgkmcnt(4)")
    a(f"""s_cmp_eq_u32 s{sWAVE}, 7
    s_cbranch_scc1 Lf1""")
    for ks in range(2):
        a(f"s_waitcnt vmcnt({4 - 4*ks}) lgkmcnt(0)")
        for n in range(4): a(f"ds_write_b128 v{(10, 14)[n&1]}, v[{64+16*ks+4*n}:{67+16*ks+4*n}] offset:{1024*n}")
        for ct in range(4):
            for s_ in range(2):
                w = F2 + ct*8 + ks*4 + 2*s_
                a(f"ds_read_b64_tr_b16 v[{w}:{w+1}], v{(9, 16, 17, 18)[ct]} offset:{s_*512}")
    a(f"""s_branch Lf2
    Lf1:
    v_and_b32 v3, 31, v2
    v_lshlrev_b32 v3, 7, v3
    v_min_u32 v5, 55, v2
    v_lshlrev_b32 v4, 2, v5
    v_add_u32 v4, {L_XS}, v4
    v_add_u32 v12, 896, v4
    v_lshlrev_b32 v5, 4, v5
    s_cmp_ge_u32 s{sF}, 14
    s_cselect_b32 s36, 14, 0
    s_cselect_b32 s37, 896, 0
    s_sub_u32 s36, s{sF}, s36
    s_lshl_b32 s43, s36, 6
    s_lshr_b32 s35, s43, 1
    s_add_u32 s37, s37, s35
    s_add_u32 s37, s37, {L_XS}
    s_mul_i32 s41, s{sF}, {28*256}
    s_add_u32 s41, s41, {WS_PART}
    s_add_u32 s42, s41, 4096
    v_and_b32 v9, 15, v2
    v_lshlrev_b32 v10, 2, v9
    v_lshrrev_b32 v9, 1, v9
    v_and_b32 v6, 1, v2
    v_mul_u32_u24 v14, 448, v6
    v_lshl_add_u32 v14, v9, 2, v14
    v_add_u32 v14, s37, v14
    s_lshl_b32 s36, s36, 7
    v_lshl_add_u32 v9, v9, 4, s36
    v_cmp_eq_u32 s[44:45], 1, v6
""")
    stamp(9)
    def scores(l):
        a(f"""{l}:
        buffer_load_dwordx3 v[24:26], v3, {WSR}, s38 offen sc1""")
        g.spin_guard(l + "x")
        a(f"""s_waitcnt vmcnt(0)
        v_cmp_ne_u32 vcc, s{sTAG}, v26
        s_cbranch_vccnz {l}
        {l}x:
        s_waitcnt vmcnt(0)""")
        top2(24, 25, 26, sK1, sK2)
    a(f"""s_mov_b32 s{sK1}, 0
    s_mov_b32 s{sK2}, 0
    s_movk_i32 s47, {WS_SCORE}
    s_movk_i32 s70, {32 - int(opt.get("th", 24))}
    s_mov_b32 s48, -1
    s_mov_b32 s49, 0
    Lfs:
    s_mov_b64 exec, s[48:49]
    buffer_load_dwordx3 v[60:62], v3, {WSR}, s47 offen sc1""")
    g.spin_guard("Lfs2")
    a(f"""Lfs0:
    s_waitcnt vmcnt(0)
    v_cmp_ne_u32 s[48:49], s{sTAG}, v62
    s_bcnt1_i32_b32 s35, s48
    s_cmp_gt_i32 s35, s70
    s_cbranch_scc1 Lfs
    s_mov_b32 exec_lo, -1
    s_sub_u32 s70, s35, 1
    v_cndmask_b32 v56, v60, 0, s[48:49]
    v_cndmask_b32 v57, v61, 0, s[48:49]
    v_cmp_lt_u32 vcc, s{sK2}, v56
    v_cmp_ne_u32 s[68:69], s{sK1}, v56
    s_and_b64 vcc, vcc, s[68:69]
    s_cbranch_scc1 Lfnew
    s_cmp_lg_u32 s48, 0
    s_cbranch_scc1 Lfs
    Lfs2:
    s_mov_b64 exec, -1
    Lf2:
    s_waitcnt lgkmcnt(0)
    s_barrier""")
    o = g.a; g.a = a2 = Asm(); A[0] = a2
    a2("Lfnew:\ns_mov_b64 exec, -1")
    top2(56, 57, 58, sK1, sK2)
    stamp(10)
    a2(f"""s_bfe_u32 s38, s{sK1}, 0x50006
    s_bfe_u32 s39, s{sK2}, 0x50006
    s_cmp_eq_u32 s38, s39
    s_cselect_b32 s35, 4096, 0
    s_lshl_b32 s38, s38, 13
    s_add_u32 s38, s38, {WS_CAND}
    s_lshl_b32 s39, s39, 13
    s_add_u32 s39, s39, s35
    s_add_u32 s39, s39, {WS_CAND}
    s_cmp_ge_u32 s{sF}, 14
    s_cselect_b32 s46, s39, s38
    s_cselect_b32 s40, s{sK2}, s{sK1}
    Lfc:
    buffer_load_dwordx3 v[16:18], v5, {WSR}, s38 offen sc1
    buffer_load_dwordx3 v[20:22], v5, {WSR}, s38 offen offset:896 sc1
    buffer_load_dwordx3 v[24:26], v5, {WSR}, s39 offen sc1
    buffer_load_dwordx3 v[28:30], v5, {WSR}, s39 offen offset:896 sc1
    buffer_load_dwordx4 v[40:43], v9, {WSR}, s46 offen offset:2048 sc1
    s_max_u32 exec_lo, s48, 1
    s_mov_b32 exec_hi, 0
    buffer_load_dwordx3 v[60:62], v3, {WSR}, s47 offen sc1
    s_mov_b64 exec, -1""")
    g.spin_guard("Lf2")
    a2(f"""s_waitcnt vmcnt(2)
    v_xor_b32 v18, s{sTAG}, v18
    v_xor_b32 v22, s{sTAG}, v22
    v_xor_b32 v26, s{sTAG}, v26
    v_xor_b32 v30, s{sTAG}, v30
    v_or3_b32 v18, v18, v22, v26
    v_or_b32 v18, v18, v30
    v_cmp_ne_u32 vcc, 0, v18
    s_cbranch_vccnz Lfc
    ds_write2_b32 v4, v16, v17 offset1:112
    ds_write2_b32 v4, v20, v21 offset0:56 offset1:168
    ds_write2_b32 v12, v24, v25 offset1:112
    ds_write2_b32 v12, v28, v29 offset0:56 offset1:168
    s_cmp_eq_u32 s48, 0
    s_cbranch_scc1 Lf2
    s_mov_b64 exec, s[48:49]
    s_branch Lfs0""")
    g.a = o; A[0] = o; newcode = "\n".join(a2.L)
    stamp(11)
    for s_ in range(7): a(f"ds_read_b128 v[{64+4*s_}:{67+4*s_}], v11 offset:{64*s_}")
    for s_ in range(7):
        a(f"s_waitcnt lgkmcnt({6-s_})")
        a(f"{S16} v[32:35], v[{64+4*s_}:{67+4*s_}], v[{F1+8*s_}:{F1+8*s_+7}], v44")
    a(f"""s_cmp_eq_u32 s{sWAVE}, 7
    v_add_f32 v20, v32, v33""")
    g.rbf(20, 20)
    a(f"""v_mul_f32 v21, {hex(f2u(-math.log2(math.e)))}, v20
    v_exp_f32 v21, v21
    v_mov_b32_dpp v22, v20 row_ror:8 row_mask:0xf bank_mask:0xf
    v_add_f32 v21, 1.0, v21
    v_rcp_f32 v21, v21
    s_mov_b32 exec_lo, 0x00ff00ff
    v_mul_f32 v20, v20, v21""")
    g.rbf(20, 20)
    a(f"""s_mov_b32 exec_hi, 0
    v_mul_f32 v20, v20, v22
    v_cvt_pk_bf16_f32 v20, v20, v20
    ds_write_b16 v13, v20
    s_mov_b64 exec, -1
    s_waitcnt lgkmcnt(0)
    s_barrier""")
    stamp(12)
    a("s_cbranch_scc1 Lfin")
    for ct in range(4): a(f"ds_read_b128 v[{64+4*ct}:{67+4*ct}], v{52+ct}")
    for ct in range(4):
        a(f"s_waitcnt lgkmcnt({3-ct})\n{S16} v[36:39], v[{64+4*ct}:{67+4*ct}], v[{F2+8*ct}:{F2+8*ct+7}], v44")
    for t in range(2):
        a(f"""v_add_f32 v{48+2*t}, v{36+2*t}, v{37+2*t}
        buffer_store_dwordx2 v[{48+2*t}:{49+2*t}], v15, {WSR}, s{42+t} offen sc1""")
    if opt.get("pd") == "2": a("s_barrier")
    a("Lfend:")
    stamp(13)
    g.flush_stamps(8, 8)
    a("s_endpgm")
    a(newcode)
    a("; ---- wave 7: sum the 28 partials of 32 output columns of one routed row and write them")
    PD = int(opt.get("pd", 1))
    if PD == 2: a("Lfin:\ns_barrier")
    a(f"""Lfh:
    buffer_load_dwordx4 v[40:43], v9, {WSR}, s46 offen offset:2048 sc1""")
    g.spin_guard("Lfhx")
    a(f"""{"Lfin:" if PD < 2 else ""}
    ds_read_b32 v20, v14
    s_waitcnt vmcnt(0)
    v_cmp_ne_u32 vcc, s{sTAG}, v42
    s_cbranch_vccnz Lfh
    Lfhx:
    s_and_b32 s40, s40, 0x7ff
    s_mul_i32 s40, s40, 896
    s_add_u32 s40, s40, s43
    s_waitcnt vmcnt(0) lgkmcnt(0)
    {f"buffer_load_dword v118, v10, s[{sOUT}:{sOUT+3}], s40 offen sc1" if opt.get("ft") else ""}
    v_cndmask_b32 v16, v40, v41, s[44:45]""")
    g.rbf(19, 43)
    a(f"""v_mul_f32 v19, {hex(f2u(-math.log2(math.e)))}, v19
    v_exp_f32 v19, v19
    v_lshlrev_b32 v22, 16, v20
    v_add_f32 v19, 1.0, v19
    v_rcp_f32 v19, v19
    v_and_b32 v23, 0xffff0000, v20
    v_cvt_pk_bf16_f32 v18, v19, v19
    v_and_b32 v17, 0xffff0000, v16
    v_lshlrev_b32 v16, 16, v16
    v_lshlrev_b32 v18, 16, v18""")
    if PD == 1: a("s_barrier")
    stamp(15)
    a("Lfp:")
    for n in range(7): a(f"buffer_load_dwordx4 v[{64+4*n}:{67+4*n}], v{GA}, {WSR}, s{41 + n // 4} offen offset:{1024*(n % 4)} sc1")
    g.spin_guard("Lfpx")
    for n in range(7):
        a(f"s_waitcnt vmcnt({6-n})")
        b = 64 + 4*n
        if n == 0: a(f"v_and_b32 v24, v{b+1}, v{b+3}\nv_or_b32 v25, v{b+1}, v{b+3}")
        else:
            a(f"""v_bitop3_b32 v24, v24, v{b+1}, v{b+3} bitop3:0x80
            v_or3_b32 v25, v25, v{b+1}, v{b+3}
            v_add_f32 v64, v64, v{b}
            v_add_f32 v66, v66, v{b+2}""")
    a(f"""v_cmp_ne_u32 vcc, s{sTAG}, v24
    v_cmp_ne_u32 s[46:47], s{sTAG}, v25
    v_mov_b32 v65, v64
    v_mov_b32 v67, v66
    s_or_b64 vcc, vcc, s[46:47]
    s_cbranch_scc1 Lfp
    Lfpx:
    s_waitcnt vmcnt(0)
    v_permlane32_swap_b32 v65, v64
    v_permlane32_swap_b32 v67, v66
    v_add_f32 v64, v64, v65
    v_add_f32 v66, v66, v67
    v_mov_b32 v65, v64
    v_mov_b32 v67, v66
    v_permlane16_swap_b32 v65, v64
    v_permlane16_swap_b32 v67, v66
    v_add_f32 v64, v64, v65
    v_add_f32 v66, v66, v67
    v_cvt_pk_bf16_f32 v65, v64, v66
    v_lshlrev_b32 v64, 16, v65
    v_and_b32 v65, 0xffff0000, v65
    v_mul_f32 v64, v64, v18
    v_mul_f32 v65, v65, v18
    v_cvt_pk_bf16_f32 v65, v64, v65
    v_lshlrev_b32 v64, 16, v65
    v_and_b32 v65, 0xffff0000, v65
    v_add_f32 v64, v64, v22
    v_add_f32 v65, v65, v23
    v_cvt_pk_bf16_f32 v65, v64, v65
    v_lshlrev_b32 v64, 16, v65
    v_and_b32 v65, 0xffff0000, v65
    v_add_f32 v64, v64, v16
    v_add_f32 v65, v65, v17
    v_cvt_pk_bf16_f32 v64, v64, v65
    s_mov_b64 exec, 0xffff
    buffer_store_dword v64, v10, s[{sOUT}:{sOUT+3}], s40 offen {opt.get('fs', 'plain').replace('plain', '')}
    s_mov_b64 exec, -1""")
    stamp(14)
    g.flush_stamps(8, 8)
    a("s_endpgm")
    a("; ---- a spare workgroup announces the selection and advances the hand-off epoch")
    a(f"""Lidle:
    s_lshl_b32 s35, s{sF}, 3
    s_add_u32 s35, s35, s{sWAVE}
    s_cmp_eq_u32 s35, {28*8}
    s_cbranch_scc0 Lfend
    v_and_b32 v3, 31, v2
    v_lshlrev_b32 v3, 7, v3
    s_movk_i32 s38, {WS_SCORE}""")
    scores("Lan")
    a(f"""v_mov_b32 v32, s{sK1}
    v_mov_b32 v33, s{sK2}
    v_mov_b32 v34, s{sTAG}
    s_mov_b64 exec, 1
    buffer_store_dwordx3 v[32:34], v{ZR}, {WSR}, 0 offen offset:{WS_SEL} sc1
    buffer_store_dword v34, v{ZR}, {WSR}, 0 offen
    s_mov_b64 exec, -1
    s_branch Lfend""")
```

```python
import sys, math, struct
sys.path.insert(0, "gen")
from asmlib import *
import hazard

NAME = "sequential_preLN__mha_block__moe_arch_mod__prompt"
MF = "v_mfma_f32_32x32x16_bf16"
M16 = "v_mfma_f32_16x16x32_bf16"
SM = "v_smfmac_f32_32x32x32_bf16"
WS_SEL = 0x800; WS_SCORE = 0x1000; WS_XCC = 0x2000; WS_FLAG = 0x3000
WS_PART = 0x8000; WS_CAND = 0x40000; WS_STAT = 0x80000; WS_FLAG2 = 0xC0000
WS_KV = 0x100000; WS_O = 0x600000; WS_DBG = 0xC00000; WS_SIZE = 0x1000000
L_W = 65536
L_W2 = 98304
L_QX = 0
L_MISC = 155648
L_SCR = L_MISC
L_BAD = L_MISC + 1024
L_KEY = L_MISC + 1280
L_SEL = L_MISC + 1536
L_LOC = L_MISC + 1600
L_CNT = L_BAD + 4
L_ST = L_MISC + 2048
L_CS = L_MISC + 4608
L_XS = L_MISC + 2048
L_A = L_MISC + 4096
L_EX = 32768
L_WU = 32768
sOO, sF2, sF2C, sTCH, sLOC = 3, 4, 5, 6, 7
sX, sW, sWS, sW2, sOUT = 8, 12, 16, 20, 24
sWAVE, sRT, sGRP, sQB, sH, sTAG, sROT = 28, 29, 30, 31, 32, 33, 34
sKVS, sKVL, sXCC, sFLG, sFLS, sEARLY = 39, 40, 50, 38, 61, 62
sJ, sXCD, sRB, sCG, sF, sRETRY, sONES, sSPIN = 51, 52, 53, 54, 55, 56, 57, 58
sK1, sK2, sW2X, sW2M, sG = 59, 60, 61, 62, 63
pX, pW, pWO, pWR, pWG, pWU, pWD, pOUT, pWS = 64, 66, 68, 72, 74, 76, 78, 80, 84
sW2L, sW2G, sW2Ls, sW2Gs = 70, 71, 82, 83
GA = 7
W2A, CW, TCH, F2A, F2V, TC2, ZR = 112, 113, 114, 115, 116, 117, 120
TA, EW, TR, TD, STL, KW, ROW, CA, KR = 96, 104, 105, 106, 107, 108, 109, 110, 111
ER = TR
sOA, sOB, sTS, sSTA, sCND, sSGN, sKM = 6, 34, 48, 49, 50, 82, 83
OA, XA, PF = 124, 127, 80
SPIN = 50000
EPS = 0x3727C5AC
WSR = f"s[{sWS}:{sWS+3}]"
def f2u(x): return struct.unpack("<I", struct.pack("<f", x))[0]

DOC = r'''
; ---------------------------------------------------------------------------------------------------------------
; One persistent launch, 256 workgroups of 8 waves (one per CU); generated by a script, hand-scheduled.
;  1. LN1 + QKV: workgroup (j&15 = row block, j>>4 = K|V) multiplies 128 raw x rows by the K or V columns of both heads
;     (waves 4-7) and by the Q columns of its own head (waves 0-3, which also stream x and W into LDS). LayerNorm is
;     applied after the product: rstd * (x W - mean * colsum(W)). K/V fragments go to d_ws, Q stays in the workgroup.
;  2. Attention for (head, 128 queries): every wave takes 256 keys for all 128 queries, S^T = K Q^T on the matrix pipe,
;     rows in V give the row sums. The scores carry a fixed shift instead of the row max; the row sums are checked and
;  3. 224 workgroups: out-projection of 64 rows x 64 columns, residual, LN2 (row statistics exchanged between the seven
;  4. 28 workgroups: global top two, SwiGLU on 64 hidden columns each, partial sums exchanged, the two rows written.
; marker in lines cleared earlier in the launch. Plain stores are used for a hand-off only after every member of the
; group has reported the same XCC id; otherwise stores are written through. All polls are bounded.
; ---------------------------------------------------------------------------------------------------------------
'''
class Vm:
    def __init__(self): self.q = []
    def add(self, tag, n=1): self.q += [tag] * n
    def wait(self, tag):
        idx = max(i for i, t in enumerate(self.q) if t == tag)
        n = len(self.q) - 1 - idx
        self.q = self.q[idx + 1:]
        return n

class G:
    def __init__(self, opt):
        self.opt = opt; self.a = Asm(); self.stamps = opt.get("stamps", False); self.n = 0
    def lab(self, p):
        self.n += 1
        return f"L{p}_{self.n}"
    def stamp(self, k, att=False):
        mode = "a" if self.opt.get("astamps") else "c" if self.opt.get("cstamps") else "s" if self.opt.get("sstamps") else "e" if self.opt.get("estamps") else False
        if att is True: att = "a"
        if 0 < k < 8 and att != mode: return
        if self.stamps: self.a(f"{'s_memtime' if self.opt.get('cyc') else 's_memrealtime'} s[{86+2*(k%8)}:{87+2*(k%8)}]")
    def flush_stamps(self, base, n, final=True):
        a = self.a
        if not self.stamps: return
        a("s_waitcnt lgkmcnt(0)")
        for k in range(base, base + n): a(f"v_writelane_b32 v125, s{86+2*(k%8)}, {k}")
        if not final: return
        if self.opt.get("probe"):
            k, wv, wg = [int(x) for x in self.opt["probe"].split(",")]
            l1, l2 = self.lab("pr"), self.lab("prx")
            a(f"""s_cmp_eq_u32 s2, {wg}
            s_cbranch_scc0 {l2}
            s_cmp_eq_u32 s{sWAVE}, {wv}
            s_cbranch_scc0 {l2}
            s_nop 4
            v_readlane_b32 s35, v125, 0
            v_readlane_b32 s36, v125, {k}
            s_sub_u32 s36, s36, s35
            s_min_u32 s36, s36, 6000
            s_lshl_b32 s36, s36, 2
            s_add_u32 s36, s36, {self.opt.get("pspan", 4000)}
            {l1}:
            s_memrealtime s[86:87]
            s_waitcnt lgkmcnt(0)
            s_sub_u32 s37, s86, s35
            s_cmp_lt_u32 s37, s36
            s_cbranch_scc1 {l1}
            {l2}:""")
            return
        a(f"s_lshl_b32 s35, s2, 3\ns_add_u32 s35, s35, s{sWAVE}\ns_lshl_b32 s35, s35, 7\ns_add_u32 s35, s35, {WS_DBG + 0x300000}")
        a(f"v_lshlrev_b32 v126, 2, v2\ns_mov_b32 exec_hi, 0\nbuffer_store_dword v125, v126, {WSR}, s35 offen {self.opt.get('ds', '')}")
    def spin_guard(self, out):
        self.a(f"s_sub_u32 s{sSPIN}, s{sSPIN}, 1\ns_bitcmp1_b32 s{sSPIN}, 31\ns_cbranch_scc1 {out}")
    def rbf(self, dst, src):
        self.a(f"v_cvt_pk_bf16_f32 v{dst}, v{src}, v{src}\nv_lshlrev_b32 v{dst}, 16, v{dst}")
    def ln_stats(self, s1, s2, nmb, rstd, t):
        a = self.a
        a(f"""v_mul_f32 v{s1}, {hex(f2u(1/448))}, v{s1}
        v_mul_f32 v{s2}, {hex(f2u(1/448))}, v{s2}
        v_fma_f32 v{s2}, -v{s1}, v{s1}, v{s2}
        v_max_f32 v{s2}, 0, v{s2}
        v_cvt_pk_bf16_f32 v{t}, v{s2}, -v{s1}
        v_lshlrev_b32 v{s2}, 16, v{t}
        v_add_f32 v{s2}, {hex(EPS)}, v{s2}""")
        self.rbf(s2, s2)
        a(f"v_sqrt_f32 v{s2}, v{s2}\nv_and_b32 v{nmb}, 0xffff0000, v{t}")
        self.rbf(s2, s2)
        a(f"v_rcp_f32 v{rstd}, v{s2}")
    def allred32(self, pairs):
        a = self.a
        for r, t in pairs: a(f"v_mov_b32 v{t}, v{r}")
        for r, t in pairs: a(f"v_permlane32_swap_b32 v{t}, v{r}")
        for r, t in pairs: a(f"v_add_f32 v{r}, v{t}, v{r}")
    def dual(self, lines, cond=sLOC):
        a = self.a
        if self.opt.get("force") == "global":
            for l in lines: a(l.replace("@", "sc1").replace("#", "128"))
            return
        l1, l2 = self.lab("glob"), self.lab("join")
        a(f"s_cmp_eq_u32 s{cond}, 0\ns_cbranch_scc1 {l1}")
        for l in lines: a(l.replace("@", self.opt.get("lst", "").replace("_", " ")).replace("#", "0"))
        a(f"{l2}:")
        self.ool.append(f"{l1}:\n" + "\n".join(l.replace("@", "sc1").replace("#", "128") for l in lines) + f"\ns_branch {l2}")
    def xcc_load(self, d, t):
        self.a(f"""v_and_b32 v{t}, 31, v2
        v_lshlrev_b32 v{t}, 3, v{t}
        s_lshl_b32 s35, s{sXCD}, 8
        s_add_u32 s35, s35, {WS_XCC}
        buffer_load_dwordx2 v[{d}:{d+1}], v{t}, {WSR}, s35 offen sc1""")
    def xcc_eval(self, d):
        self.a(f"""v_cmp_ne_u32 vcc, s{sTAG}, v{d}
        v_cmp_ne_u32 s[36:37], s{sXCC}, v{d+1}
        s_or_b64 vcc, vcc, s[36:37]
        s_cselect_b32 s{sLOC}, 0, 1""")
    def tr_addr(self, d):
        self.a(f"""v_lshrrev_b32 v4, 5, v2
        v_bfe_u32 v5, v2, 2, 2
        v_lshl_add_u32 v6, v4, 3, v5
        v_bfe_u32 v{d}, v2, 4, 1
        v_and_b32 v25, 3, v2
        v_lshl_add_u32 v{d}, v{d}, 2, v25
        v_add_u32 v25, 2, v{d}
        v_lshrrev_b32 v25, 3, v25
        v_xor_b32 v{d}, v{d}, v25
        v_lshlrev_b32 v25, 3, v{d}
        v_lshl_add_u32 v{d}, v6, 7, v25
        v_lshrrev_b32 v5, 1, v5
        v_lshl_add_u32 v{d}, v5, 6, v{d}""")
    def x_addr(self, XR):
        self.a(f"""v_and_b32 v3, 31, v2
        v_lshrrev_b32 v4, 5, v2
        v_bfe_u32 v5, v2, 1, 3
        v_xor_b32 v5, v5, v4
        v_lshlrev_b32 v5, 4, v5
        v_lshl_add_u32 v5, v3, 7, v5
        v_add_u32 v{XR}, s43, v5
        v_xor_b32 v{XR+1}, 32, v{XR}
        v_xor_b32 v{XR+2}, 64, v{XR}
        v_xor_b32 v{XR+3}, 96, v{XR}
        v_lshlrev_b32 v119, 4, v4
        v_lshl_add_u32 v119, v3, 5, v119
        v_add_u32 v119, {L_CS}, v119""")
    def scale_pack(self, c, mul, mul_vec, out, pk=True):
        a = self.a
        if not pk:
            for p in range(8):
                for e in (2*p, 2*p + 1): a(f"v_mul_f32 v{c+e}, v{c+e}, v{mul + e if mul_vec else mul}")
                a(f"v_cvt_pk_bf16_f32 v{out+p}, v{c+2*p}, v{c+2*p+1}")
            return
        for p in range(8):
            if mul_vec: a(f"v_pk_mul_f32 v[{c+2*p}:{c+2*p+1}], v[{c+2*p}:{c+2*p+1}], v[{mul+2*p}:{mul+2*p+1}]")
            else: a(f"v_pk_mul_f32 v[{c+2*p}:{c+2*p+1}], v[{c+2*p}:{c+2*p+1}], v[{mul}:{mul+1}] op_sel_hi:[1,0]")
        for p in range(8): a(f"v_cvt_pk_bf16_f32 v{out+p}, v{c+2*p}, v{c+2*p+1}")
    def roles(self, grp, t=3):
        a = self.a
        KH = {"own": f"s_lshr_b32 s36, s{sXCD}, 2\ns_xor_b32 s36, s36, {1 - grp}",
              "cg": f"s_and_b32 s36, s{sCG}, 1\ns_xor_b32 s36, s36, {grp}",
              "no": f"s_mov_b32 s36, {grp}"}[self.opt.get("kh", "own")]
        a(f"""s_mul_i32 s35, s{sJ}, 37
        s_lshr_b32 s35, s35, 8
        s_mul_i32 s36, s35, 7
        s_sub_u32 s{sCG}, s{sJ}, s36
        s_lshl_b32 s36, s{sXCD}, 2
        s_add_u32 s{sF}, s36, s{sCG}
        s_min_u32 s35, s35, 3
        s_add_u32 s{sRB}, s36, s35
        s_lshl_b32 s35, s{sH}, 3
        s_add_u32 s35, s35, s{sRT}
        s_lshl_b32 s36, s35, 12
        s_add_u32 s{sKVS}, s36, {WS_KV + grp*4*4096}
        s_lshl_b32 s35, s{sH}, 6
        s_add_u32 s35, s35, s{sRT}
        s_lshl_b32 s36, s{sQB}, 2
        s_add_u32 s35, s35, s36
        s_lshl_b32 s36, s35, 11
        s_add_u32 s{sOO}, s36, {WS_O + grp*1024}
        s_lshl_b32 s36, s35, 8
        s_add_u32 s{sF2}, s36, {WS_FLAG2 + grp*128}
        s_lshl_b32 s36, s{sRB}, 1
        s_lshr_b32 s35, s{sRT}, 1
        s_add_u32 s35, s35, s36
        s_lshl_b32 s35, s35, 8
        {KH}
        s_lshl_b32 s36, s36, 17
        s_add_u32 s35, s35, s36
        s_add_u32 s{sF2C}, s35, {WS_FLAG2}
        v_bfe_u32 v1, v2, 1, 3
        v_and_b32 v{t}, 1, v2
        v_lshlrev_b32 v1, 14, v1
        v_lshl_add_u32 v{F2A}, v{t}, 7, v1
        s_mul_i32 s35, s{sWAVE}, 12288
        v_add_u32 v{CW}, s35, v{GA}
        v_mov_b32 v{ZR}, 0
        v_mov_b32 v{ZR+1}, 0
        v_mov_b32 v{ZR+2}, 0
        v_mov_b32 v{ZR+3}, 0
        s_lshl_b32 s35, s{sXCD}, 2
        s_add_u32 s35, s35, s{sRT}
        s_lshl_b32 s35, s35, 8
        s_add_u32 s{sFLG}, s35, {WS_FLAG}
        s_mul_i32 s35, s{sQB}, 43
        s_lshr_b32 s35, s35, 8
        s_mul_i32 s35, s35, 6
        s_sub_u32 s{sKVL}, s{sQB}, s35
        s_lshl_b32 s35, s{sRB}, 2
        s_add_u32 s35, s35, s{sRT}
        s_lshl_b32 s36, s35, 4
        v_lshrrev_b32 v1, 3, v2
        v_mul_u32_u24 v{W2A}, 896, v1
        s_mulk_i32 s36, 896
        v_and_b32 v{t}, 0x70, v{GA}
        v_add3_u32 v{XA}, v{W2A}, v{t}, s36
        s_and_b32 s36, s{sRT}, 1
        s_lshl_b32 s37, s36, 6
        v_xor_b32 v{t}, s37, v{t}
        v_and_b32 v1, 16, v2
        v_lshlrev_b32 v1, 1, v1
        v_xor_b32 v{t}, v1, v{t}
        v_add_u32 v{W2A}, v{W2A}, v{t}
        s_lshl_b32 s36, s36, 8
        v_and_b32 v1, 0xf0, v{GA}
        v_and_b32 v{t}, 0x300, v{GA}
        v_lshl_add_u32 v1, v{t}, 1, v1
        v_add_u32 v{OA}, s36, v1
        s_lshl_b32 s{sW2G}, s{sCG}, 7
        s_mul_i32 s36, s{sWAVE}, {7*896}
        s_mul_i32 s{sW2L}, s{sWAVE}, 896""")
        srd(a, sW2, pWO, 401408)
        a(f"""s_lshl_b32 s37, s{sJ}, 3
        s_add_u32 s37, s37, s{sWAVE}
        s_mulk_i32 s37, {13*128}
        v_min_u32 v1, 12, v2
        v_lshl_add_u32 v{TC2}, v1, 7, s37""")
        if grp == 0:
            a(f"""s_lshl_b32 s35, s35, 11
            s_add_u32 s35, s35, s{sW2G}
            s_add_u32 s35, s35, s{sW2G}
            s_add_u32 s35, s35, {WS_STAT}
            s_lshl_b32 s37, s2, 2
            s_add_u32 s37, s37, s{sRT}
            s_lshl_b32 s37, s37, 9
            v_and_b32 v1, 3, v2
            v_lshl_add_u32 v{TCH}, v1, 7, s37
            v_and_b32 v1, 1, v2
            v_lshl_add_u32 v1, v1, 7, s35
            s_mov_b32 exec_lo, 0
            v_mov_b32 v{TCH}, v1
            s_mov_b32 exec_lo, -1
            s_add_u32 s{sW2G}, s{sW2G}, s36""")
            srd(a, sOUT, pWS, WS_SIZE)
            return
        a(f"""s_add_u32 s{sW2G}, s{sW2G}, s36
        s_lshr_b32 s35, s{sJ}, 3
        s_lshl_b32 s36, s{sXCD}, 2
        s_add_u32 s35, s35, s36
        s_min_u32 s35, s35, 27
        s_cmp_eq_u32 s{sRT}, 1
        s_cselect_b64 s[{sOUT}:{sOUT+1}], s[{pWG}:{pWG+1}], s[{pWU}:{pWU+1}]
        s_add_u32 s36, s{sRT}, 1
        s_bitcmp0_b32 s36, 1
        s_cselect_b64 s[{sOUT}:{sOUT+1}], s[{pWD}:{pWD+1}], s[{sOUT}:{sOUT+1}]
        s_mov_b32 s{sOUT+2}, 1605632
        s_mov_b32 s{sOUT+3}, 0x00020000
        s_movk_i32 s36, 128
        s_cselect_b32 s37, s36, 3584
        s_cselect_b32 s36, 57344, s36
        s_mul_i32 s36, s35, s36
        s_and_b32 s35, s{sJ}, 7
        s_mul_i32 s35, s35, 56
        s_mul_i32 s35, s35, s37
        s_add_u32 s36, s36, s35
        v_min_u32 v1, 55, v2
        v_mul_u32_u24 v1, s37, v1
        v_add_u32 v{TCH}, s36, v1""")

    def head(self):
        a = self.a; opt = self.opt
        ra, rb_, rc = [int(x) for x in opt.get("rot", "2,0,3").split(",")]
        EMU = ""
        WRT = ""
        if opt.get("st"):
            step = int(opt["st"])
            WRT = f"""s_lshl_b32 s36, s{sXCD}, 19
            s_bfe_u32 s37, s{sJ}, 0x20003
            s_lshl_b32 s37, s37, 17
            s_add_u32 s36, s36, s37
            s_and_b32 s37, s{sJ}, 7
            s_lshl_b32 s37, s37, 2
            s_add_u32 s37, s37, s{sRT}
            s_lshl_b32 s37, s37, 10
            s_add_u32 s36, s36, s37
            s_add_u32 s36, s36, {WS_KV}
            s_lshl_b32 s37, s{sXCD}, 2
            s_add_u32 s37, s37, s{sRT}
            s_lshl_b32 s37, s37, 8
            s_lshl_b32 s38, s{sRT}, 6
            s_lshl_b32 s39, s{sXCD}, 8
            s_add_u32 s38, s38, s39
            s_and_b32 s39, s{sJ}, 3
            s_lshl_b32 s39, s39, 6
            s_add_u32 s37, s37, s39
            s_add_u32 s37, s37, {WS_FLAG}
            s_add_u32 s38, s38, {WS_XCC}
            s_waitcnt lgkmcnt(0)
            s_load_dword s{sTAG}, s[{pWS}:{pWS+1}], 0
            s_add_u32 s40, s{pWS}, s36
            s_addc_u32 s41, s{pWS+1}, 0
            s_load_dword s42, s[{pWS}:{pWS+1}], s37
            s_load_dword s42, s[{pWS}:{pWS+1}], s38
            """ + "\n".join(f"s_load_dword s42, s[40:41], {k}" for k in range(0, 1024 if step != 1024 else 0, step))
        if opt.get("emu"):
            nq = int(opt["emu"]); lq = nq.bit_length() - 1; gx = 16 // nq; lg = gx.bit_length() - 1
            EMU = f"""s_and_b32 s36, s{sXCD}, {gx - 1}
            s_lshl_b32 s36, s36, {lq}
            s_and_b32 s{sQB}, s{sJ}, {nq - 1}
            s_add_u32 s{sQB}, s{sQB}, s36
            s_lshr_b32 s36, s{sXCD}, {lg}
            s_lshr_b32 s35, s{sJ}, {lq}
            s_mul_i32 s{sH}, s36, {32 // nq}
            s_add_u32 s{sH}, s{sH}, s35
            s_lshr_b32 s{sG}, s{sH}, 1
            s_and_b32 s36, s{sH}, 1
            s_lshl_b32 s36, s36, 3
            s_add_u32 s{sG}, s{sG}, s36"""
        a(khead(NAME + "_kernel"))
        a("s_cmp_ge_u32 s2, 256\ns_cbranch_scc1 Lexit")
        self.stamp(0)
        a(f"""s_load_dwordx16 s[64:79], s[0:1], 0
        s_load_dwordx2 s[80:81], s[0:1], 64
        s_load_dwordx2 s[84:85], s[0:1], 80
        v_lshrrev_b32 v1, 6, v0
        v_and_b32 v2, 63, v0
        v_readfirstlane_b32 s{sWAVE}, v1
        s_and_b32 s{sXCD}, s2, 7
        s_lshr_b32 s{sJ}, s2, 3
        s_and_b32 s{sQB}, s{sJ}, 15
        s_lshr_b32 s35, s{sJ}, 4
        s_lshl_b32 s36, s{sXCD}, 1
        s_add_u32 s{sH}, s36, s35
        s_lshl_b32 s36, s35, 3
        s_add_u32 s{sG}, s36, s{sXCD}
        {EMU}
        s_and_b32 s{sRT}, s{sWAVE}, 3
        s_lshr_b32 s{sGRP}, s{sWAVE}, 2
        s_cmp_eq_u32 s{sGRP}, 0
        s_cbranch_scc1 Lload
        {WRT}
        ; waves that have no data yet hop over the code (EXEC = 0, branches only) to bring it into the instruction cache
        @TOUR
        s_branch Lcomp
        Lload:
        s_mul_i32 s36, s{sXCD}, {ra}
        s_mul_i32 s35, s35, {rb_}
        s_add_u32 s36, s36, s35
        s_mul_i32 s35, s{sQB}, {rc}
        s_add_u32 s36, s36, s35
        s_mul_i32 s37, s36, 37
        s_lshr_b32 s37, s37, 8
        s_mul_i32 s37, s37, 7
        s_sub_u32 s{sROT}, s36, s37""")
    def consts(self):
        self.a(f"""s_mov_b32 s{sSPIN}, {self.opt.get("spin", SPIN)}
        s_mov_b32 s{sRETRY}, {-1 if self.opt.get('linst') else 0}
        s_mov_b32 s{sONES}, 0x3f803f80
        v_lshlrev_b32 v{GA}, 4, v2""")
        if self.stamps: self.a("v_mov_b32 v125, 0")
    def epoch_to_tag(self):
        self.a(f"s_mul_i32 s{sTAG}, s{sTAG}, 0x9e3779b1\ns_add_u32 s{sTAG}, s{sTAG}, 0x7f4a7c15")

    def loader(self):
        a = self.a; stamp = self.stamp
        self.a("; ==== waves 0-3: stream x / W into LDS, column sums, Q projection")
        XA, WA, QA = 8, 12, 14
        a(f"""v_lshrrev_b32 v3, 3, v2
        v_and_b32 v4, 7, v2
        v_lshrrev_b32 v5, 4, v2
        v_xor_b32 v6, v4, v5
        v_mul_u32_u24 v15, 896, v3
        v_lshl_add_u32 v{XA}, v6, 4, v15
        v_xor_b32 v6, 4, v6
        v_lshl_add_u32 v{XA+1}, v6, 4, v15
        v_add_u32 v{XA+2}, {2*6144}, v{XA}
        v_add_u32 v{XA+3}, {3*6144}, v{XA+1}
        v_add_u32 v{XA+1}, {6144}, v{XA+1}
        v_and_b32 v4, 3, v2
        v_lshlrev_b32 v4, 4, v4
        v_min_u32 v4, 40, v4
        v_lshrrev_b32 v6, 2, v2
        v_mul_u32_u24 v15, 2688, v6
        v_add_u32 v{QA}, v15, v4
        v_xor_b32 v6, v6, v5
        v_and_b32 v6, 1, v6
        v_mul_u32_u24 v6, 56, v6
        v_mul_u32_u24 v15, 2688, v3
        v_add3_u32 v{WA}, v15, v6, v4
        v_add_u32 v{WA+1}, {8*2688-1024}, v{WA}
        s_mul_i32 s48, s{sQB}, 114688
        s_mul_i32 s35, s{sRT}, 28672
        s_add_u32 s48, s48, s35
        s_mul_i32 s41, s{sRT}, {16*2688}
        s_mul_i32 s42, s{sH}, 56
        s_add_u32 s42, s42, s41
        s_mul_i32 s35, s{sG}, 112
        s_add_u32 s41, s41, s35
        s_add_u32 s41, s41, 896
        s_lshl_b32 s43, s{sRT}, 12
        s_lshl_b32 s44, s{sRT}, 11
        s_lshl_b32 s45, s{sRT}, 10
        s_mov_b32 s46, s{sROT}
        s_mov_b32 s{sX+2}, 1835008
        s_mov_b32 s{sX+3}, 0x00020000
        s_mov_b32 s{sW+2}, 1204224
        s_mov_b32 s{sW+3}, 0x00020000""")
        def touch_addr():
            FX = ""
            if "f" in self.opt.get("lt", ""):
                FX = f"""s_and_b32 s35, s{sJ}, 3
                s_lshl_b32 s35, s35, 6
                s_add_u32 s36, s35, s47
                s_add_u32 s35, s35, s49
                s_load_dword s61, s[{pWS}:{pWS+1}], s35
                s_load_dword s61, s[{pWS}:{pWS+1}], s36"""
            if "r" in self.opt.get("lt", ""):
                FX += f"""
                s_and_b32 s35, s{sJ}, 3
                s_lshl_b32 s35, s35, 2
                s_add_u32 s35, s35, s{sRT}
                s_min_u32 s35, s35, 13
                s_lshl_b32 s35, s35, 6
                s_load_dword s61, s[{pWR}:{pWR+1}], s35"""
            a(f"""s_lshl_b32 s35, s{sXCD}, 16
            s_lshr_b32 s36, s{sJ}, 4
            s_lshl_b32 s36, s36, 19
            s_add_u32 s35, s35, s36
            s_lshl_b32 s36, s{sQB}, 12
            s_add_u32 s35, s35, s36
            s_add_u32 s35, s35, s45
            s_add_u32 s35, s35, {WS_KV}
            v_and_b32 v28, 7, v2
            v_lshl_add_u32 v29, v28, 7, s35
            {f"s_load_dword s61, s[{pWS}:{pWS+1}], s35" if "k" in self.opt.get("lt", "") else ""}
            s_lshl_b32 s35, s{sXCD}, 2
            s_add_u32 s35, s35, s{sRT}
            s_lshl_b32 s35, s35, 8
            s_add_u32 s49, s35, {WS_FLAG}
            s_lshl_b32 s36, s{sXCD}, 8
            s_add_u32 s47, s36, {WS_XCC}
            {FX}
            v_and_b32 v28, 1, v2
            s_mov_b32 exec_lo, 0
            v_lshl_add_u32 v29, v28, 7, s49
            s_mov_b32 exec_hi, 0xffff
            v_lshl_add_u32 v29, v28, 7, s47
            s_mov_b64 exec, -1""")
        PRE = self.opt.get("pre", "late"); self.opt.setdefault("lt", "f"); self.opt.setdefault("tl", "4")
        if PRE == "first": touch_addr()
        a(f"s_mov_b32 s{sWS+2}, {WS_SIZE}\ns_mov_b32 s{sWS+3}, 0x00020000")
        stamp(1, "s")
        a(f"s_waitcnt lgkmcnt(0)\ns_mov_b64 s[{sX}:{sX+1}], s[{pX}:{pX+1}]\ns_mov_b64 s[{sW}:{sW+1}], s[{pW}:{pW+1}]\ns_mov_b64 s[{sWS}:{sWS+1}], s[{pWS}:{pWS+1}]")
        stamp(2, "s")
        vm = Vm()
        def touch():
            if not self.opt.get("nokvt") and int(self.opt.get("st", 9999)) > 1024: a(f"buffer_load_dword v118, v29, {WSR}, 0 offen sc1"); vm.add("pre")
        def adv(r): a(f"s_add_u32 s{r}, s{r}, 1\ns_cmp_eq_u32 s{r}, 7\ns_cselect_b32 s{r}, 0, s{r}")
        def issue_chunk(i):
            a(f"""s_mul_i32 s35, s46, {64*2688}
            s_add_u32 s35, s35, s41
            s_add_u32 m0, s44, {L_W + (i % 4) * 8192}
            s_lshl_b32 s36, s46, 7
            buffer_load_dwordx4 v{WA}, s[{sW}:{sW+3}], s35 offen lds
            buffer_load_dwordx4 v{WA+1}, s[{sW}:{sW+3}], s35 offen offset:1024 lds
            s_add_u32 m0, s43, {(i % 4) * 16384}
            s_add_u32 s36, s36, s48""")
            for n in range(4): a(f"buffer_load_dwordx4 v{XA+n}, s[{sX}:{sX+3}], s36 offen offset:{n*1024} lds")
            if i < 6: adv(46)
            vm.add(("c", i), 6)
        def issue_q(i):
            a(f"""s_mul_i32 s35, s{sROT}, {64*2688}
            s_add_u32 m0, s45, {L_W2 + i * 4096}
            s_add_u32 s35, s35, s42
            buffer_load_dwordx4 v{QA}, s[{sW}:{sW+3}], s35 offen lds""")
            if i < 6: adv(sROT)
            vm.add(("q", i))
        LA = 2
        XF, QW, QC = 128, 80, 64
        def qchunks(i0, i1, hook=lambda n: None):
            steps = [(i, j) for i in range(i0, i1) for j in range(4)]
            def rd(n):
                i, j = steps[n]; w = (80, 84, 88, 92, 240, 244, 248, 252)[n % 8]
                for s in range(2): a(f"ds_read_b64_tr_b16 v[{w+2*s}:{w+2*s+1}], v26 offset:{i*4096 + j*1024 + s*256}")
            AH = 6
            for n in range(min(AH, len(steps))): rd(n)
            for n, (i, j) in enumerate(steps):
                left = min(AH - 1, len(steps) - 1 - n)
                a(f"s_waitcnt lgkmcnt({2*left})")
                w = (80, 84, 88, 92, 240, 244, 248, 252)[n % 8]; x = XF + 16*i + 4*j
                a(f"{MF} v[{QC}:{QC+15}], v[{w}:{w+3}], v[{x}:{x+3}], {'0' if i + j == 0 else f'v[{QC}:{QC+15}]'}")
                if n + AH < len(steps): rd(n + AH)
                hook(n)
        def arrive(k): a(f"s_mov_b64 exec, 1\nds_add_u32 v21, v20 offset:{4*k}\ns_mov_b64 exec, -1")
        def await_(k, n):
            l = self.lab("cnt")
            a(f"{l}:\nds_read_b32 v19, v21 offset:{4*k}\ns_waitcnt lgkmcnt(0)\nv_cmp_gt_u32 vcc, {n}, v19\ns_cbranch_vccnz {l}")
        a(f"s_load_dword s{sTAG}, s[{pWS}:{pWS+1}], 0")
        ORD = self.opt.get("ord", "0|1q")
        def run(seq):
            for ch in seq:
                if ch == "t": touch()
                elif ch == "q": issue_q(0)
                elif ch == "m":
                    a(f"""s_add_u32 s35, s{sXCD}, 1
                    s_and_b32 s36, s35, 6
                    s_cbranch_scc1 Lnomw
                    s_and_b32 s35, s35, 8
                    s_lshl_b32 s35, s35, 2
                    s_add_u32 s35, s35, s{sJ}
                    s_lshl_b32 s35, s35, 14
                    s_add_u32 s35, s35, s43
                    s_add_u32 s35, s35, {WS_KV}
                    v_and_b32 v15, 31, v2
                    v_lshlrev_b32 v15, 7, v15
                    buffer_load_dword v118, v15, {WSR}, s35 offen sc1
                    Lnomw:""")
                else: issue_chunk(int(ch))
        run(ORD.split("|")[0])
        stamp(3, "s")
        self.consts()
        if PRE != "first": touch_addr()
        a(f"""s_getreg_b32 s{sXCC}, hwreg(HW_REG_XCC_ID, 0, 4)
        v_mov_b32 v20, 0
        v_lshlrev_b32 v23, 2, v2
        v_add_u32 v21, {L_BAD}, v23
        ds_write_b32 v21, v20
        v_mov_b32 v21, {L_CNT}
        v_mov_b32 v20, 1""")
        self.x_addr(60)
        self.tr_addr(24)
        a(f"""s_add_u32 s36, s44, {L_W}
        v_add_u32 v24, s36, v24
        v_xor_b32 v31, 64, v24
        v_and_b32 v22, 15, v2
        v_lshl_add_u32 v22, v4, 4, v22
        s_lshl_b32 s35, s{sRT}, 3
        s_add_u32 s35, s35, {L_CS}
        v_lshl_add_u32 v22, v22, 5, s35
        v_lshl_add_u32 v26, v6, 6, v25
        v_add_u32 v26, {L_W2}, v26
        v_add_u32 v30, s45, v26
        v_and_b32 v27, 31, v2
        v_lshlrev_b32 v27, 3, v27
        s_lshl_b32 s35, s{sRT}, 2
        s_add_u32 s35, s35, {L_LOC}
        v_mov_b32 v18, s35
        v_mov_b32 v52, 0
        s_mov_b32 exec_lo, 0xff0000ff
        s_mov_b32 exec_hi, 0xff0000ff
        v_mov_b32 v52, s{sONES}
        s_mov_b64 exec, -1
        v_mov_b32 v53, v52
        v_mov_b32 v54, v52
        v_mov_b32 v55, v52""")
        self.roles(0)
        self.tail_addr(0, "v")
        stamp(4, "s")
        run(ORD.split("|")[1])
        for i in range(7):
            if i == 0: stamp(5, "s")
            a(f"s_waitcnt vmcnt({vm.wait(('c', i))}) lgkmcnt(0)")
            if i == 0: stamp(6, "s")
            a("s_barrier")
            if i == 0: stamp(1); stamp(7, "s")
            stamp(i + 1, "c")
            if i == 6: stamp(1, "e")
            for k in range(4): a(f"ds_read_b64_tr_b16 v[{32+2*k}:{33+2*k}], v{(24, 31)[k>>1]} offset:{(i%4)*8192 + (k&1)*512}")
            if i == 0:
                self.epoch_to_tag()
                a(f"""s_lshl_b32 s35, s{sJ}, 3
                s_add_u32 s35, s35, s47
                v_mov_b32 v16, s{sTAG}
                v_mov_b32 v17, s{sXCC}
                s_mov_b64 exec, 1
                buffer_store_dwordx2 v[16:17], v{ZR}, {WSR}, s35 offen
                s_mov_b64 exec, -1""")
                vm.add("xs")
            xr = [f"ds_read_b128 v[{XF+16*i+4*j}:{XF+16*i+4*j+3}], v{60+j} offset:{(i%4)*16384}" for j in range(4)]
            if i < 6: a("\n".join(xr))
            if 2 <= i < 6:
                for s_ in range(2): a(f"ds_read_b64_tr_b16 v[{QW+2*s_}:{QW+2*s_+1}], v26 offset:{(i-2)*1024 + s_*256}")
            XP_ = self.opt.get("xp", "early")
            if i == 3 and XP_ != "late": a(f"buffer_load_dwordx2 v[46:47], v27, {WSR}, s47 offen sc1"); vm.add("xcc")
            if i + LA <= 6: issue_chunk(i + LA)
            if str(i) == self.opt.get("ml"): run("m")
            if str(i) == self.opt.get("tl"): touch()
            if i == 4 and XP_ == "late": a(f"buffer_load_dwordx2 v[46:47], v27, {WSR}, s47 offen sc1"); vm.add("xcc")
            QE = self.opt.get("qe", "7")
            if i == 5:
                for k in range(1, 7 if QE == "5" else 4): issue_q(k)
                if self.opt.get("tl") == "q": touch()
            if i == 6 and QE == "6":
                for k in range(4, 7): issue_q(k)
            if i == (6 if XP_ == "late" else 5):
                if "xcc" in vm.q: a(f"s_waitcnt vmcnt({vm.wait('xcc')})")
                self.xcc_eval(46)
                a(f"v_mov_b32 v19, s{sLOC}\nds_write_b32 v18, v19")
            a("s_waitcnt lgkmcnt(0)")
            for k in range(2): a(f"{M16} v[{48+8*k}:{51+8*k}], v[52:55], v[{32+4*k}:{35+4*k}], {'0' if i == 0 else f'v[{48+8*k}:{51+8*k}]'}")
            if i == 6: a("\n".join(xr))
            if 2 <= i < 6: a(f"{MF} v[{QC}:{QC+15}], v[{QW}:{QW+3}], v[{XF+4*(i-2)}:{XF+4*(i-2)+3}], {'0' if i == 2 else f'v[{QC}:{QC+15}]'}")
        def cs_pub(regs):
            for r, _ in regs: a(f"v_and_b32 v{r+1}, 0xffff0000, v{r}")
            for r, _ in regs: a(f"v_sub_f32 v{r+1}, v{r}, v{r+1}")
            for r, _ in regs: a(f"v_and_b32 v{r+2}, 0xffff0000, v{r+1}\nv_perm_b32 v{r}, v{r+1}, v{r}, s37")
            for r, _ in regs: a(f"v_sub_f32 v{r+1}, v{r+1}, v{r+2}")
            for r, k in regs: a(f"v_lshrrev_b32 v{r+1}, 16, v{r+1}\nds_write_b64 v22, v[{r}:{r+1}] offset:{1024*k}")
        a("s_mov_b32 s37, 0x07060302")
        cs_pub([(48, 0), (56, 1)])
        stamp(2, "e")
        M0 = self.opt.get("m0")
        a(f"s_waitcnt vmcnt({vm.wait(('q', 3)) if M0 else 63}) lgkmcnt(0)\ns_barrier")
        stamp(3, "e")
        stamp(2)
        if QE == "7":
            for k in range(4, 7): issue_q(k)
        def cs_q(i0, i1):
            for i in range(i0, i1):
                for s_ in range(2): a(f"ds_read_b64_tr_b16 v[{32+4*(i-i0)+2*s_}:{33+4*(i-i0)+2*s_}], v30 offset:{i*4096 + s_*256}")
            a("s_waitcnt lgkmcnt(0)")
            for k in range(i1 - i0): a(f"{M16} v[48:51], v[52:55], v[{32+4*k}:{35+4*k}], {'0' if i0 + k == 0 else 'v[48:51]'}")
        QS = int(self.opt.get("qs", 4))
        if not M0:
            a(f"s_waitcnt vmcnt({vm.wait(('q', QS - 1))})")
            stamp(4, "e")
            arrive(0)
        a(f"""v_add_u32 v3, s44, v{GA}
        s_lshl_b32 s35, s{sRT}, 9
        s_add_u32 s35, s35, {L_ST}
        v_lshl_add_u32 v5, v2, 3, s35""")
        self.tail_addr(0, "s")
        a("s_mov_b32 s37, 0x07060302")
        if not M0: await_(0, 4)
        stamp(5, "e")
        qchunks(1, QS)
        a("s_waitcnt vmcnt(0)")
        arrive(1)
        cs_q(0, 4)
        if QS > 4: cs_q(4, QS)
        await_(1, 4)
        stamp(3); stamp(6, "e")
        cs_q(QS, 7)
        nn = 4 * (7 - QS)
        def h(n):
            if n == max(nn - 6, 1): cs_pub([(48, 2)])
            if n == max(nn - 4, 2): arrive(2)
        qchunks(QS, 7, h)
        await_(2, 8)
        stamp(7, "e")
        a(f"""ds_read_b64 v[40:41], v5
        ds_read_b128 v[36:39], v119 offset:2048
        s_waitcnt lgkmcnt(1)
        v_mul_f32 v44, {hex(f2u(math.log2(math.e) / math.sqrt(28)))}, v41
        v_mov_b32 v41, v40
        v_mov_b32 v42, v40
        v_mov_b32 v43, v40
        s_waitcnt lgkmcnt(0)
        {MF} v[{QC}:{QC+15}], v[36:39], v[40:43], v[{QC}:{QC+15}]""")
        self.q_addr()
        self.scale_pack(QC, 44, False, 8)
        a(f"""s_mov_b32 exec_lo, 0
        v_mov_b32 v14, {self.opt.get('sh', '0xc220')}
        v_mov_b32 v15, 0
        s_mov_b32 exec_lo, -1
        ds_write_b128 v3, v[8:11]
        ds_write_b128 v3, v[12:15] offset:1024""")
        stamp(4)
        a("Lattn1:")
        ZP = self.opt.get("zp", "post")
        if ZP == "pre": self.zero_o()
        a("s_waitcnt lgkmcnt(0)\ns_barrier\ns_setprio 3")
        if ZP == "mid": self.zero_o()
        a("\n".join(self.kv_load(0)))
        if ZP == "post": self.zero_o()
        a("s_branch Lattn")

    def compute(self):
        a = self.a; stamp = self.stamp
        XF, ACC, WF, PK = 192, 32, 64, 64
        XR, WR, QR, SC, SCR, ST = 8, 12, 14, 15, 26, 27
        S1, S2, T1, T2, NMB, RSTD, XC = 16, 17, 18, 19, 20, 22, 118
        self.a("; ==== waves 4-7: K or V projection, LN1 statistics")
        a("Lcomp:")
        a(f"s_lshl_b32 s43, s{sRT}, 12\ns_setprio {self.opt.get('cpri', 1)}")
        self.x_addr(XR)
        self.tr_addr(24)
        a(f"""v_add_u32 v{WR}, {L_W}, v24
        v_xor_b32 v{WR+1}, 64, v{WR}
        s_lshl_b32 s35, s{sRT}, 8
        s_add_u32 s35, s35, {L_SCR}
        v_lshl_add_u32 v{SC}, v2, 2, s35
        v_lshl_add_u32 v{SCR}, v4, 4, s35
        s_lshl_b32 s35, s{sRT}, 9
        s_add_u32 s35, s35, {L_ST}
        v_lshl_add_u32 v{QR}, v2, 3, s35""")
        stamp(1, "s")
        if not self.opt.get("st"): a(f"s_waitcnt lgkmcnt(0)\ns_load_dword s{sTAG}, s[{pWS}:{pWS+1}], 0")
        self.consts()
        def capture(f):
            old = self.a; self.a = Asm(); f(self.a); L = self.a.L; self.a = old
            return L
        def late(b):
            srd(b, sX, pX, 1835008); srd(b, sWS, pWS, WS_SIZE)
            self.epoch_to_tag()
            self.roles(1, 4)
            b(f"""s_and_b32 s35, s{sQB}, 7
            s_lshl_b32 s35, s35, 3
            s_add_u32 s35, s35, s{sXCD}
            s_lshl_b32 s35, s35, 2
            s_lshr_b32 s36, s{sQB}, 3
            s_add_u32 s35, s35, s36
            s_lshl_b32 s35, s35, 2
            s_add_u32 s35, s35, s{sRT}
            s_lshl_b32 s35, s35, 12
            s_lshr_b32 s36, s{sG}, 3
            s_lshl_b32 s36, s36, 11
            s_add_u32 s35, s35, s36
            s_add_u32 s46, s35, {WS_KV}
            s_add_u32 s47, s46, {8*4096}
            s_lshl_b32 s35, s{sXCD}, 2
            s_add_u32 s35, s35, s{sRT}
            s_lshl_b32 s35, s35, 8
            s_lshl_b32 s36, s{sJ}, 2
            s_add_u32 s35, s35, s36
            s_add_u32 s{sFLS}, s35, {WS_FLAG}
            s_lshl_b32 s35, s{sRT}, 2
            s_add_u32 s35, s35, {L_LOC}
            v_mov_b32 v{XC}, s35""")
            self.tail_addr(1, "s")
            self.tail_addr(1, "v")
        def atoms(L):
            out = []; hold = False
            for l in L:
                if hold: out[-1] += "\n" + l
                else: out.append(l)
                if "exec" in l: hold = "-1" not in l
            return out
        a(f"""s_cmp_ge_u32 s{sG}, 8
        s_cbranch_scc1 LcompV""")
        DA, NB, CA, CSF = (16, 17, 18, 19, 28, 29, 30, 31), 28, 119, 224
        def kloop(isV):
            order = [(j, m) for m in range(2) for j in range(4)]
            def wreg(i, j, m): return (WF, 224)[i % 2] + 8*j + 4*m
            def rlist(i):
                L = [(("x", i, j), f"ds_read_b128 v[{XF+16*(i%2)+4*j}:{XF+16*(i%2)+4*j+3}], v{XR+j} offset:{(i%4)*16384}") for j in range(4)]
                for k, (j, m) in enumerate(order):
                    for s in range(2):
                        w = wreg(i, j, m) + 2*s
                        L.append((("w", i, k), f"ds_read_b64_tr_b16 v[{w}:{w+1}], v{WR+m} offset:{(i%4)*8192 + j*2048 + s*512}"))
                return L
            def mm(c, w, x, src):
                if isV: a(f"{MF} v[{c}:{c+15}], v[{x}:{x+3}], v[{w}:{w+3}], {src}")
                else: a(f"{MF} v[{c}:{c+15}], v[{w}:{w+3}], v[{x}:{x+3}], {src}")
            BP = int(self.opt.get("bp", 4)); BPL = int(self.opt.get("bpl", 8)); CSP = int(self.opt.get("csp", 4))
            lg = Vm(); R = []
            def issue(n):
                c = 0
                while c < n and R and len(lg.q) < 15:
                    t, l = R.pop(0); a(l); lg.add(t); c += 1
                return c
            def need(t):
                assert all(u != t for u, _ in R)
                if t in lg.q: a(f"s_waitcnt lgkmcnt({lg.wait(t)})")
            def bar():
                assert not R
                a("s_waitcnt lgkmcnt(0)\ns_barrier"); lg.q = []
            LT = atoms(capture(late))
            NE = 40; NF = int(self.opt.get('nf', 7))
            for l in LT[-NE:]: a(l)
            LT = LT[:-NE]
            for e in DA: a(f"v_mov_b32 v{e}, 0")
            if self.opt.get("zc") != "late":
                for o_ in self.O: a(f"{MF} v[{o_}:{o_+15}], v[16:19], v[16:19], 0")
            stamp(5, "s"); bar(); stamp(7, "s")
            R += rlist(0)
            for i in range(7):
                issue(int(self.opt.get("li", 8)) if len(R) == 20 else 14)
                for j in range(4):
                    need(("x", i, j))
                    for e in range(4):
                        x = XF + 16*(i%2) + 4*j + e
                        a(f"v_dot2c_f32_bf16 v{DA[e]}, s{sONES}, v{x}\nv_dot2c_f32_bf16 v{DA[4+e]}, v{x}, v{x}")
                        issue(1)
                    if j == 3 and R: need(("w", i, 2)); issue(6)
                if i == 6: stamp(2, "e"); LT = capture(lambda b: stats(isV))
                bp = BP if i < 5 else BPL
                for k, (j, m) in enumerate(order):
                    if k == bp and i < 6: bar(); R += rlist(i + 1)
                    need(("w", i, k))
                    c = ACC + 16*m
                    mm(c, wreg(i, j, m), XF + 16*(i%2) + 4*j, "0" if (i == 0 and j == 0) else f"v[{c}:{c+15}]")
                    if i == 6 and k == CSP:
                        stamp(3, "e"); bar(); stamp(4, "e")
                        a(f"ds_read_b128 v[{CSF}:{CSF+3}], v{CA}\nds_read_b128 v[{CSF+4}:{CSF+7}], v{CA} offset:1024\nds_read_b32 v{XC}, v{XC}")
                    if issue(4) < 3:
                        for _ in range(6 if i == 6 else NF):
                            if LT: a(LT.pop(0))
                if bp >= 8 and i < 6: bar(); R += rlist(i + 1)
                if i == 5: stamp(1, "e"); assert not LT
            for l in LT: a(l)
            a(f"s_waitcnt lgkmcnt({5 if isV else 0})")
            for m in range(2): mm(ACC + 16*m, CSF + 4*m, NB, f"v[{ACC+16*m}:{ACC+16*m+15}]")
            a(f"""v_readfirstlane_b32 s{sLOC}, v{XC}
            s_and_b32 s35, s{sQB}, 6
            s_cselect_b32 s43, 0, {0 if self.opt.get("wt") else f"s{sLOC}"}
            ds_write2_b32 v{QR}, v{NB}, v{RSTD} offset1:1""")
        def stats(isV):
            b = self.a
            b(f"""v_add_f32 v{DA[0]}, v{DA[0]}, v{DA[1]}
            v_add_f32 v{DA[2]}, v{DA[2]}, v{DA[3]}
            v_add_f32 v{DA[4]}, v{DA[4]}, v{DA[5]}
            v_add_f32 v{DA[6]}, v{DA[6]}, v{DA[7]}
            v_add_f32 v{S1}, v{DA[0]}, v{DA[2]}
            v_add_f32 v{S2}, v{DA[4]}, v{DA[6]}""")
            self.allred32([(S1, 24), (S2, 25)])
            self.ln_stats(S1, S2, NMB, RSTD, 24)
            b(f"v_alignbit_b32 v{NB}, v{NMB}, v{NMB}, 16\nv_or_b32 v{NB}, v{NB}, v{NMB}")
            for e in range(1, 4): b(f"v_mov_b32 v{NB+e}, v{NB}")
            if isV:
                b(f"ds_write_b32 v{SC}, v{RSTD}")
                for q in range(4): b(f"ds_read_b128 v[{240+4*q}:{243+4*q}], v{SCR} offset:{q*32}")
        scale_pack = self.scale_pack
        def stores(m):
            stamp(5 + m, "e")
            if self.opt.get("linst"): a(f"v_mov_b32 v{ST}, v{GA}")
            self.dual([f"buffer_store_dwordx4 v[{PK+8*m}:{PK+8*m+3}], v{ST}, {WSR}, s{46+m} offen @",
                       f"buffer_store_dwordx4 v[{PK+8*m+4}:{PK+8*m+7}], v{ST}, {WSR}, s{46+m} offen offset:1024 @"], 43)
        a(f"""v_bfe_u32 v3, v2, 2, 1
        v_bfe_u32 v4, v2, 3, 1
        v_and_b32 v5, 0x33, v2
        v_lshl_add_u32 v5, v3, 3, v5
        v_lshl_add_u32 v5, v4, 2, v5
        v_lshlrev_b32 v{ST}, 4, v5
""")
        kloop(False)
        stamp(1)
        for m in range(2):
            scale_pack(ACC + 16*m, RSTD, False, PK + 8*m, False)
            a(f"""s_mov_b32 exec_lo, 0
            v_mov_b32 v{PK+8*m+6}, s{sONES}
            v_mov_b32 v{PK+8*m+7}, 0x3f80
            s_mov_b32 exec_lo, -1""")
            stores(m)
        a("s_branch LcompQ")
        self.a("; ---- V variant (tokens along the accumulator registers)")
        a("LcompV:")
        a(f"""v_and_b32 v3, 31, v2
        v_mul_u32_u24 v4, 37, v3
        v_lshrrev_b32 v4, 8, v4
        v_mul_u32_u24 v5, 7, v4
        v_sub_u32 v5, v3, v5
        v_cmp_le_u32 vcc, 28, v3
        v_cndmask_b32 v4, v4, v5, vcc
        v_cndmask_b32 v5, v5, 7, vcc
        v_lshrrev_b32 v6, 1, v4
        v_and_b32 v4, 1, v4
        v_lshlrev_b32 v6, 4, v6
        v_lshl_add_u32 v6, v4, 2, v6
        v_lshrrev_b32 v4, 2, v5
        v_and_b32 v5, 3, v5
        v_lshl_add_u32 v6, v4, 3, v6
        v_add_u32 v6, v6, v5
        v_and_b32 v4, 32, v2
        v_add_u32 v6, v6, v4
        s_and_b32 s35, s{sQB}, 8
        s_lshl_b32 s35, s35, 1
        v_xor_b32 v6, s35, v6
        v_lshlrev_b32 v{ST}, 4, v6
""")
        kloop(True)
        stamp(1)
        a("s_mov_b32 exec_lo, 0xf0000000\ns_mov_b32 exec_hi, 0xf0000000")
        for p in range(16): a(f"v_mov_b32 v{PK+p}, s{sONES}")
        a("s_waitcnt lgkmcnt(0)")
        for m in range(2):
            a("s_mov_b32 exec_lo, 0x0fffffff\ns_mov_b32 exec_hi, 0x0fffffff")
            scale_pack(ACC + 16*m, 240, True, PK + 8*m, False)
            a("s_mov_b64 exec, -1")
            stores(m)
        self.a("; ---- flag the stores, wait for the first key blocks")
        a("LcompQ:")
        stamp(2); stamp(7, "e")
        a(f"""s_setprio {self.opt.get("cp2", 0)}
        v_mov_b32 v4, s{sTAG}
        v_mov_b32 v5, {L_CNT}
        v_mov_b32 v6, 1
        s_mov_b64 exec, 1
        ds_add_u32 v5, v6 offset:8
        s_mov_b64 exec, -1
        v_lshlrev_b32 v23, 2, v2""")
        self.q_addr()
        if self.opt.get("zc") == "late": self.zero_o()
        a("s_waitcnt vmcnt(0)\ns_mov_b64 exec, 1")
        self.dual([f"buffer_store_dword v4, v{ZR}, {WSR}, s{sFLS} offen offset:# @"])
        a("s_mov_b64 exec, -1")
        stamp(3)
        a(f"""Lpoll1:
        buffer_load_dword v26, v23, {WSR}, s{sFLG} offen sc1""")
        self.spin_guard("Lpoll1x")
        a(f"""s_waitcnt vmcnt(0)
        v_cmp_ne_u32 vcc, s{sTAG}, v26
        s_and_b32 s35, vcc_lo, vcc_hi
        s_and_b32 s35, s35, 0x03030303
        s_cbranch_scc1 Lpoll1
        Lpoll1x:""")
        stamp(4)
        K0 = self.kv_load(0); NB0 = int(self.opt.get("nb0", 4))
        if NB0: a("\n".join(K0[:NB0]))
        a("s_barrier")
        if NB0 < 4: a("\n".join(K0[NB0:]))

    Q = (48, 56, 64, 72); O = (128, 144, 160, 176); KV = (192, 208, 224, 240, 80)
    def kv_load(self, kt):
        b = self.KV[kt % 5]
        if kt < 2: p = f"s_add_u32 s41, s{sKVS}, {kt << 19}\n"
        else: p = f"""s_add_u32 s41, s{sKVL}, {kt}
            s_cmp_ge_u32 s41, 8
            s_cselect_b32 s35, 6, 0
            s_sub_u32 s41, s41, s35
            s_lshl_b32 s41, s41, 19
            s_add_u32 s41, s41, s{sKVS}
            """
        return [(p if j == 0 else "") + f"buffer_load_dwordx4 v[{b+4*j}:{b+4*j+3}], v{GA}, {WSR}, s41 offen offset:{j*1024} sc1" for j in range(4)]
    def tail_addr(self, grp, part):
        a = self.a
        if part == "s":
            QM = self.opt.get("qm", "no")
            QD = {"no": "s_mov_b32 s36, 0", "cg": f"s_and_b32 s36, s{sCG}, 1",
                  "own": f"s_and_b32 s36, s{sCG}, 1" if grp == 0 else f"s_bfe_u32 s36, s{sXCD}, 0x10001\ns_xor_b32 s36, s36, 1"}[QM]
            a(f"""s_sub_u32 s35, s{sF2C}, {WS_FLAG2}
            s_lshl_b32 s35, s35, 3
            s_add_u32 s35, s35, {WS_O}
            {QD}
            s_lshl_b32 s37, s36, 19
            s_sub_u32 s{sOB}, s35, s37
            s_add_u32 s{sOA}, s35, s37
            s_mul_i32 s35, s36, {4*3584}
            s_lshl_b32 s{sTS}, s35, 1
            s_bfe_u32 s36, s{sF2C}, 0x10011
            s_mulk_i32 s36, {8*3584}
            s_add_u32 s35, s35, s36""")
            for k in range(8): a(f"v_add_u32 v{TA+k}, s35, v{TA+k}")
            a(f"""s_lshl_b32 s36, s{sRB}, 6
            v_add_u32 v{ROW}, s36, v{ROW}
            s_lshl_b32 s35, s{sRT}, 4
            s_add_u32 s35, s35, s36
            s_lshl_b32 s35, s35, 7
            s_add_u32 s{sSTA}, s35, {WS_STAT}
            s_lshl_b32 s35, s{sCG}, 8
            s_lshl_b32 s36, s36, 7
            s_add_u32 s35, s35, s36
            s_add_u32 s{sCND}, s35, {WS_CAND}
            s_brev_b32 s{sSGN}, 1
            s_movk_i32 s{sKM}, 0xf800""")
            return
        a(f"""v_lshrrev_b32 v{KR}, 4, v2
        v_bfe_u32 v{KW}, v2, 2, 2
        v_and_b32 v1, 3, v2
        v_mul_u32_u24 v{ER}, 896, v{KR}
        v_lshl_add_u32 v{ER}, v1, 3, v{ER}
        v_and_b32 v1, 1, v{KR}
        v_lshl_add_u32 v{ER}, v1, 6, v{ER}
        v_lshrrev_b32 v1, 1, v{KW}
        v_lshl_add_u32 v{ER}, v1, 5, v{ER}
        v_add_u32 v{ER}, {L_W2}, v{ER}
        v_lshl_add_u32 v{TA}, v{KW}, 7, v{ER}
        v_min_u32 v{KW}, 2, v{KW}
        v_lshl_add_u32 v{TA+4}, v{KW}, 7, v{ER}""")
        for ct in range(1, 4): a(f"v_xor_b32 v{TA+ct}, {32*ct}, v{TA}\nv_xor_b32 v{TA+4+ct}, {32*ct}, v{TA+4}")
        a(f"""s_lshl_b32 s36, s{sRT}, 12
        s_add_u32 s35, s36, {L_EX}
        v_add_u32 v{EW}, s35, v{GA}
        s_add_u32 s35, s36, {L_EX + 16384}
        v_and_b32 v{ROW}, 15, v2
        v_mul_u32_u24 v{TD}, 144, v{ROW}
        v_lshl_add_u32 v{TD}, v{KR}, 3, v{TD}
        v_add_u32 v{TD}, s35, v{TD}
        v_lshrrev_b32 v1, 3, v2
        v_lshl_add_u32 v1, v1, 4, v{GA}
        v_add_u32 v{TR}, s35, v1
        v_lshlrev_b32 v{CA}, 4, v{KR}
        v_add_u32 v1, 1, v{KR}
        v_lshrrev_b32 v1, 2, v1
        v_lshl_add_u32 v{STL}, v1, 30, v{GA}
        v_lshlrev_b32 v1, 4, v{ROW}
        v_add_u32 v{KR}, {L_KEY}, v1
        s_lshl_b32 s35, s{sRT}, 4
        v_add_u32 v{ROW}, s35, v{ROW}
        v_lshlrev_b32 v{KW}, 2, v{ROW}
        v_add_u32 v{KW}, {L_KEY}, v{KW}""")
    def zero_o(self):
        for o in self.O: self.a(f"{MF} v[{o}:{o+15}], v[{ZR}:{ZR+3}], v[{ZR}:{ZR+3}], {self.opt.get('oi', 0)}")
    def q_addr(self):
        for p in range(4):
            self.a(f"s_add_u32 s35, s{sRT}, {p + 1}\ns_and_b32 s{44+p}, s35, 3\ns_lshl_b32 s35, s{44+p}, 11\nv_add_u32 v{16+p}, s35, v{GA}")
    def attention(self):
        a = self.a; stamp = self.stamp
        Q, O, KV = self.Q, self.O, self.KV
        S = (16, 32); IDX = 4
        PT = [O[0] + 8*i for i in range(6)]
        o = lambda k, d: int(self.opt.get(k, d))
        self.a("; ==== attention: 32 steps of 32 keys x 32 queries per wave")
        a("Lattn:")
        stamp(5); stamp(1, True)
        for p in range(4):
            for f in range(2): a(f"ds_read_b128 v[{Q[p]+4*f}:{Q[p]+4*f+3}], v{16+p} offset:{L_QX + 1024*f}")
        vm = Vm(); vm.add(("kv", 0), 4)
        RR = o("rr", 4); LW = self.opt.get("lw", "b")
        steps = [(t // 4, t % 4) for t in range(32 - 4*RR)] + [(8 - RR + t % RR, t // RR) for t in range(4*RR)]
        def qk(t):
            kt, p = steps[t]; n = S[t & 1]; k = KV[kt % 5]
            u, w = (4, 0) if not self.opt.get("noqo") else (0, 4)
            return [f"{MF} v[{n}:{n+15}], v[{k+u}:{k+u+3}], v[{Q[p]+u}:{Q[p]+u+3}], 0", f"{MF} v[{n}:{n+15}], v[{k+w}:{k+w+3}], v[{Q[p]+w}:{Q[p]+w+3}], v[{n}:{n+15}]"]
        def pv(t, f):
            kt, p = steps[t]; c = S[t & 1] + 8*f; v = KV[kt % 5] + 8 + 4*f
            return f"{SM} v[{O[p]}:{O[p]+15}], v[{v}:{v+3}], v[{c}:{c+7}], v{IDX}"
        a(f"v_mov_b32 v{IDX}, 0xdddddddd\ns_mul_i32 s36, s{sGRP}, {4*12288 + 2048}\ns_mul_i32 s37, s{sGRP}, {-8*12288}\ns_add_u32 s37, s37, {4*12288}")
        a(f"s_waitcnt vmcnt(2) lgkmcnt(6)")
        a("\n".join(qk(0)))
        for p in range(3):
            a(f"s_mul_i32 s35, s{44+p}, 12288\ns_add_u32 s35, s35, s36\nv_add_u32 v{8+2*p}, s35, v{GA}\nv_add_u32 v{9+2*p}, s37, v{8+2*p}")
        a("s_waitcnt lgkmcnt(0)")
        sd = {}
        def put(t, pos, tag, x):
            assert (t, pos) not in sd, (t, pos)
            sd[(t, pos)] = (tag, x)
        K3 = o("k3", 6)
        for j, x in enumerate(self.kv_load(1)): put(0, 1 + j, ("kv", 1), x)
        K2 = o("k2", 3)
        put(K2 - 1, 0, "fl", f"v_lshrrev_b32 v14, 2, v{GA}\nbuffer_load_dword v15, v14, {WSR}, s{sFLG} offen sc1")
        put(K2, 0, "flc", None)
        self.ool.append(f"""Lfl:
        buffer_load_dword v15, v14, {WSR}, s{sFLG} offen sc1
        s_sub_u32 s{sSPIN}, s{sSPIN}, 1
        s_bitcmp1_b32 s{sSPIN}, 31
        s_cbranch_scc1 Lflx
        s_waitcnt vmcnt(0)
        v_cmp_ne_u32 vcc, s{sTAG}, v15
        s_and_b32 s35, vcc_lo, vcc_hi
        s_cbranch_scc1 Lfl
        s_branch Lflx""")
        for j, x in enumerate(self.kv_load(2)): put(K2, 1 + j, ("kv", 2), x)
        if self.opt.get("xc2"): put(K2 + 1, 1, "xc", f"""v_bfe_u32 v14, v{GA}, 1, 8
        s_lshl_b32 s35, s{sXCD}, 8
        s_add_u32 s35, s35, {WS_XCC}
        buffer_load_dwordx2 v[14:15], v14, {WSR}, s35 offen sc1""")
        if self.opt.get("xc2"): put(12, 0, "xce", None)
        KR = o("kr", 4)
        pat = {2: ((0, 1), (1, 1)), 3: ((0, 1), (0, 4), (1, 3)), 4: ((0, 1), (0, 3), (1, 1), (1, 3))}[KR]
        n = 0
        for kt in range(3, 8):
            for j, x in enumerate(self.kv_load(kt)):
                u = K3 + 2*(n // KR) + pat[n % KR][0]
                assert kt < 5 or u > 4*(kt - 4)
                put(u, pat[n % KR][1], ("kv", kt), x); n += 1
        put(o("tw0", 16), o("twp", 1), "t", f"buffer_load_dword v118, v{TC2}, s[{sW2}:{sW2+3}], 0 offen")
        put(o("s0", 5), 2, "clr", f"buffer_store_dwordx4 v[{ZR}:{ZR+3}], v{GA}, {WSR}, s{sOO} offen sc1")
        put(o("sf2", 14), 0, "f2", None)
        S1 = o("s1", 26)
        for n in range(8):
            put(*{1: (S1 + n, 3), 2: (S1 + n // 2, 1 + 2*(n % 2)), 3: (S1 + n // 3, (5, 1, 3)[n % 3])}[o("wr", 2)], "w2", f"""s_add_u32 m0, s{sW2L}, {L_W2 + n*8*896}
            s_add_u32 s35, s{sW2G}, {n*8*7*896}
            s_mov_b32 exec_hi, 0x00ffffff
            buffer_load_dwordx4 v{W2A}, s[{sW2}:{sW2+3}], s35 offen lds
            s_mov_b32 exec_hi, -1""")
        S2 = o("s2", 30)
        if o("wrt", 0):
            put(o("wrt", 0), 4, "t", f"""s_mov_b64 s[{sW}:{sW+1}], s[{pWR}:{pWR+1}]
            s_movk_i32 s{sW+2}, 896
            s_mov_b32 s{sW+3}, 0x00020000
            buffer_load_dword v118, v{GA}, s[{sW}:{sW+3}], 0 offen""")
        put(S2, o("s2p", 5), "f2c", f"buffer_load_dword v{F2V}, v{F2A}, {WSR}, s{sF2C} offen sc1")
        put(o("t0", 16), o("tp", 3), "t", f"buffer_load_dword v118, v{TCH}, s[{sOUT}:{sOUT+3}], 0 offen")
        ns = self.opt.get("noside", "")
        for k in list(sd):
            if sd[k][0] in ns.split(","): del sd[k]
        lds = {}
        for p in range(3):
            w = [f"ds_write_b128 v{8+2*p+(i>>1)}, v[{O[p]+4*i}:{O[p]+4*i+3}] offset:{4096*p + 1024*(i&1)}" for i in range(4)]
            if self.opt.get("w64"):
                w = [f"ds_write_b64 v{8+2*p+(i>>1)}, v[{O[p]+4*i}:{O[p]+4*i+1}] offset:{4096*p + 1024*(i&1)}\nds_write_b64 v{8+2*p+(i>>1)}, v[{O[p]+4*i+2}:{O[p]+4*i+3}] offset:{4096*p + 1024*(i&1) + 8}" for i in range(4)]
            t0 = 32 - RR*(3 - p)
            if LW == "a": pl = [(t0 + 1, i) for i in range(4)] if p < 2 else [(t0, 3), (t0, 3), (t0, 4), (t0, 4)]
            elif RR == 3: pl = [(t0, 4), (t0 + 1, 1), (t0 + 1, 4), (t0 + 2, 2)] if p < 2 else [(t0, 2), (t0, 4), (t0 + 1, 0), (t0 + 1, 2)]
            else: pl = [(t0 + i, 2) for i in range(4)] if p < 2 else [(t0, 2), (t0 + 1, 0), (t0 + 1, 4), (t0 + 2, 2)]
            for i in range(4): lds.setdefault(pl[i], []).append(w[i])
        rd = [f"ds_read_b128 v[{PT[i>>1]+4*(i&1)}:{PT[i>>1]+4*(i&1)+3}], v{CW} offset:{1024*i}" for i in range(12)]
        BA = (30, 1) if LW == "a" else (30, 4)
        rp = ((30, 1), (30, 2), (30, 2), (30, 3), (30, 4), (30, 4), (31, 0), (31, 0), (31, 1), (31, 1), (31, 2), (31, 2)) if LW == "a" else \
             ((30, 4), (30, 4), (30, 4), (31, 5), (31, 5), (31, 5), (31, 0), (31, 0), (31, 0), (31, 1), (31, 1), (31, 1))
        for i, k in enumerate(rp): lds.setdefault(k, []).append(rd[i])
        QBAR = o("qbar", 16)
        def side(t, pos):
            if (t, pos) == (QBAR, 0): a("s_barrier")
            if (t, pos) == BA and "bara" not in ns: a("s_waitcnt lgkmcnt(0)\ns_barrier")
            for x in lds.get((t, pos), []):
                if not (("ldw" in ns and "write" in x) or ("ldr" in ns and "read" in x)): a(x)
            if (t, pos) not in sd: return
            tag, x = sd[(t, pos)]
            if tag == "flc":
                a(f"s_waitcnt vmcnt({vm.wait('fl')})\nv_cmp_ne_u32 vcc, s{sTAG}, v15\ns_and_b32 s35, vcc_lo, vcc_hi\ns_cbranch_scc1 Lfl\nLflx:")
                return
            if tag == "xce":
                assert "xc" not in vm.q
                a(f"""s_getreg_b32 s35, hwreg(HW_REG_XCC_ID, 0, 4)
                v_cmp_ne_u32 vcc, s{sTAG}, v14
                v_cmp_ne_u32 s[36:37], s35, v15
                s_or_b64 vcc, vcc, s[36:37]
                s_cselect_b32 s{sLOC}, 0, 1""")
                return
            if tag == "f2":
                w = f"s_waitcnt vmcnt({vm.wait('clr')})\n" if "clr" in vm.q else ""
                x = f"v_mov_b32 v{F2V}, s{sTAG}\n{w}s_mov_b64 exec, 1\nbuffer_store_dword v{F2V}, v{ZR}, {WSR}, s{sF2} offen sc1\ns_mov_b64 exec, -1"
            a(x); vm.add(tag)
        seq = {"a": "e e P 5 e e e W Q0 e e e Q1 0 e e 1 e e C 2 e e 3 e 4 e",
               "c": "e e P 5 e e W Q0 e e e Q1 0 e e 1 e e e C 2 e e 3 e 4 e",
               "e": "e e e e P 5 e e e W Q0 e e e Q1 0 e 1 e e C 2 e 3 e 4 e",
               "f": "e e e P 5 e e e W Q0 e e e Q1 0 e e 1 e C 2 e e 3 e 4 e",
               "g": "e e e e P 5 e e e W Q0 0 e e e Q1 1 e e e C 2 e 3 e 4 e",
               "h": "e e P 5 e e e e W Q0 0 e e e e Q1 1 e e e e C 2 3 e 4 e"}[self.opt.get("seq", "c")]
        NT = 32
        PRI = {}
        for x in self.opt.get("pri", "0.0.3,8.8.2,13.0.1,15.4.0,16.7.3,24.0.2,28.0.1,30.0.0,30.15.1,31.9.0").split(","):
            u, v, w = [int(y) for y in x.split(".")]; PRI[(u, v)] = w
        for t in range(NT):
            c = S[t & 1]; ei = 0
            AS = [int(x) for x in self.opt.get("as", "4,8,16,24,28,31").split(",")]
            if t in AS: stamp(AS.index(t) + 2, True)
            for tok in seq.split():
                if tok == "e":
                    p = PRI.get((t, ei))
                    if p is not None: a(f"s_setprio {p}")
                    a(f"v_exp_f32 v{c+ei}, v{c+ei}"); ei += 1
                elif tok == "P":
                    if t > 0: a(pv(t - 1, 1))
                elif tok == "C": a(pv(t, 0))
                elif tok == "W":
                    if t + 1 < NT and ("kv", steps[t + 1][0]) in vm.q:
                        assert vm.q.count(("kv", steps[t + 1][0])) == 4 or all(v[0] != ("kv", steps[t + 1][0]) for k, v in sd.items() if k > (t, 0))
                        a(f"s_waitcnt vmcnt({vm.wait(('kv', steps[t + 1][0]))})")
                elif tok[0] == "Q":
                    if t + 1 < NT: a(qk(t + 1)[int(tok[1])])
                else: side(t, int(tok))
        self.a("; ---- sum the eight partial results, check the range of the row sums, normalise, publish O")
        X = O[3]
        a(f"""s_xor_b32 s35, s{sWAVE}, 4
        s_mulk_i32 s35, 12288
        {pv(NT - 1, 1)}""")
        stamp(6)
        a(f"""v_add_u32 v5, s35, v{GA}
        v_mov_b32 v6, {L_BAD}
        s_mov_b32 s36, {hex(f2u(float(self.opt.get('thr', 0.5))))}
        s_waitcnt lgkmcnt(0)""")
        def tree(i):
            p = lambda d, x, y: f"v_pk_add_f32 v[{d+2*i}:{d+2*i+1}], v[{x+2*i}:{x+2*i+1}], v[{y+2*i}:{y+2*i+1}]"
            return [p(PT[0], PT[0], PT[1]), p(PT[2], PT[2], PT[3]), p(PT[4], PT[4], PT[5]), p(PT[0], PT[0], PT[2]), p(PT[0], PT[0], PT[4]), p(X, X, PT[0])]
        t3, t2 = tree(3), tree(2)
        a("\n".join(t3[:5] + t2[:3]))
        a(f"ds_write_b128 v{CW}, v[{X+8}:{X+11}]\nds_write_b128 v{CW}, v[{X+12}:{X+15}] offset:1024")
        a(f"""{t3[5]}
        v_cmp_nge_f32 s[44:45], s36, v{X+7}
        v_cmp_nle_f32 vcc, {hex(f2u(2.0**-70))}, v{X+7}""")
        a("\n".join(t2[3:]))
        a(f"""s_or_b64 vcc, s[44:45], vcc
        s_cbranch_scc1 Lbad
        Lbadx:
        s_waitcnt vmcnt({vm.wait('f2c')}) lgkmcnt(0)
        s_barrier
        ds_read_b128 v[20:23], v5 offset:1024
        ds_read_b128 v[16:19], v5
        ds_read_b32 v26, v6""")
        a("\n".join(x for pr in zip(tree(0), tree(1)) for x in pr))
        a(f"""
        s_waitcnt lgkmcnt(2)
        v_add_f32 v23, v23, v{X+7}
        v_rcp_f32 v24, v23
        v_pk_add_f32 v[20:21], v[20:21], v[{X+4}:{X+5}]
        v_add_f32 v22, v22, v{X+6}
        s_waitcnt lgkmcnt(0)
        v_readfirstlane_b32 s35, v26
        v_pk_add_f32 v[16:17], v[16:17], v[{X}:{X+1}]
        v_pk_add_f32 v[18:19], v[18:19], v[{X+2}:{X+3}]
        v_mul_f32 v22, v22, v24
        v_pk_mul_f32 v[16:17], v[16:17], v[24:25] op_sel_hi:[1,0]
        v_pk_mul_f32 v[18:19], v[18:19], v[24:25] op_sel_hi:[1,0]
        v_pk_mul_f32 v[20:21], v[20:21], v[24:25] op_sel_hi:[1,0]
        v_cvt_pk_bf16_f32 v31, v22, -v{ZR}
        v_cvt_pk_bf16_f32 v28, v16, v17
        v_cvt_pk_bf16_f32 v29, v18, v19
        v_cvt_pk_bf16_f32 v30, v20, v21
        s_cmp_gt_u32 s35, s{sRETRY}
        s_cbranch_scc1 Lfallback
        buffer_store_dwordx4 v[28:31], v{GA}, {WSR}, s{sOO} offen sc1""")
        self.ool.append(f"Lbad:\nds_write_b32 v6, v{IDX}\ns_branch Lbadx")
        stamp(7)
        self.flush_stamps(0, 8, False)

    def fallback(self):
        a = self.a; Q = self.Q[3]
        a(f"""Lfallback:
        s_mov_b32 s{sRETRY}, -1
        s_barrier
        s_lshl_b32 s35, s{sH}, 15
        s_add_u32 s35, s35, {WS_KV}
        s_mov_b32 s36, 64
        v_mov_b32 v3, 0xff800000
        s_mov_b32 exec_lo, 0
        v_mov_b32 v{Q+6}, 0
        s_mov_b32 exec_lo, -1
        Lfb1:
        buffer_load_dwordx4 v[80:83], v{GA}, {WSR}, s35 offen sc1
        buffer_load_dwordx4 v[84:87], v{GA}, {WSR}, s35 offen offset:1024 sc1
        s_waitcnt vmcnt(0)
        {MF} v[16:31], v[80:83], v[{Q}:{Q+3}], 0
        {MF} v[16:31], v[84:87], v[{Q+4}:{Q+7}], v[16:31]
        s_sub_u32 s36, s36, 1
        s_and_b32 s37, s36, 7
        s_cselect_b32 s37, 0, {(1 << 19) - 32768}
        s_add_u32 s35, s35, s37
        s_add_u32 s35, s35, 4096""")
        for p in range(8): a(f"v_max3_f32 v3, v{16+2*p}, v{17+2*p}, v3")
        a(f"""s_cmp_lg_u32 s36, 0
        s_cbranch_scc1 Lfb1
        v_mov_b32 v5, v3
        v_permlane32_swap_b32 v5, v3
        v_max_f32 v3, v3, v5
        v_sub_f32 v3, 0, v3
        v_and_b32 v5, 0xffff0000, v3
        v_sub_f32 v3, v3, v5
        v_and_b32 v6, 0xffff0000, v3
        v_sub_f32 v3, v3, v6
        v_lshrrev_b32 v5, 16, v5
        s_mov_b32 exec_lo, 0
        v_or_b32 v{Q+6}, v5, v6
        v_lshrrev_b32 v{Q+7}, 16, v3
        s_mov_b32 exec_lo, -1
        s_lshl_b32 s35, s{sRT}, 11
        v_add_u32 v3, s35, v{GA}
        ds_write_b128 v3, v[{Q}:{Q+3}] offset:{L_QX}
        ds_write_b128 v3, v[{Q+4}:{Q+7}] offset:{L_QX + 1024}""")
        self.q_addr()
        a("s_branch Lattn1")

    def build(self):
        import tail
        a = self.a; self.ool = []
        self.head(); self.loader(); self.compute(); self.attention()
        tail.emit(self)
        for x in self.ool: a(x)
        a("Lcoldcode:")
        self.fallback()
        a("Lexit:\ns_endpgm")
        rm = self.opt.get("rm", "").split(",")
        i0, i1, i2 = a.L.index("Lload:"), a.L.index("Lcomp:"), a.L.index("LcompQ:")
        kiss = []
        for i, l in enumerate(a.L):
            c = i1 < i < i2; ld = i0 < i < i1
            if ("dot" in rm and c and "v_dot2c" in l) or ("dots" in rm and c and "v_dot2c" in l and ", s" in l) or ("lx" in rm and ld and "ds_read_b128 v[1" in l) or ("lx" in rm and ld and "ds_read_b128 v[2" in l) \
               or ("lm" in rm and ld and "16x16x32" in l) or ("cm" in rm and c and "v_mfma" in l): continue
            kiss.append(l)
        a.L = kiss
        hazard.TRANS2 = bool(self.opt.get('t2'))
        import layout
        hdr = open(f"cdna_kernels/{NAME}.s.ref").read().split("; Override launch")[0]
        hdr += "; @launch grid=(256,1,1) block=(512,1,1) lds=163840\n"
        hdr += '.amdgcn_target "amdgcn-amd-amdhsa--gfx950"\n.text\n'
        hdr += DOC.lstrip("\n")
        if not self.opt.get("nopage"): hdr += "; never executed: places the entry point at the start of a 4 KiB page\n.p2align 12\n.fill 832, 4, 0xbf810000\n"
        lines = layout.finish(a.L, self.opt)
        return hdr + "\n".join(lines) + '\n.section .rodata,"a"\n' + kdesc(NAME + "_kernel", 256)

if __name__ == "__main__":
    opt = {}
    out = f"cdna_kernels/{NAME}.s"
    for x in sys.argv[1:]:
        if x.startswith("out="): out = x[4:]
        elif "=" in x: k, v = x.split("="); opt[k] = v
        else: opt[x] = True
    import gen
    open(out, "w").write(gen.G(opt).build())
```

```python
import sys, math, struct
sys.path.insert(0, "gen")
from asmlib import *
import hazard

NAME = "sequential_preLN__mha_block__moe_arch_mod__prompt"
MF = "v_mfma_f32_32x32x16_bf16"
M16 = "v_mfma_f32_16x16x32_bf16"
SM = "v_smfmac_f32_32x32x32_bf16"
WS_SEL = 0x800; WS_SCORE = 0x1000; WS_XCC = 0x2000; WS_FLAG = 0x3000
WS_PART = 0x8000; WS_CAND = 0x40000; WS_STAT = 0x80000; WS_FLAG2 = 0xC0000
WS_KV = 0x100000; WS_O = 0x600000; WS_DBG = 0xC00000; WS_SIZE = 0x1000000
L_W = 65536
L_W2 = 98304
L_QX = 0
L_MISC = 155648
L_SCR = L_MISC
L_BAD = L_MISC + 1024
L_KEY = L_MISC + 1280
L_SEL = L_MISC + 1536
L_LOC = L_MISC + 1600
L_CNT = L_BAD + 4
L_ST = L_MISC + 2048
L_CS = L_MISC + 4608
L_XS = L_MISC + 2048
L_A = L_MISC + 4096
L_EX = 32768
L_WU = 32768
sOO, sF2, sF2C, sTCH, sLOC = 3, 4, 5, 6, 7
sX, sW, sWS, sW2, sOUT = 8, 12, 16, 20, 24
sWAVE, sRT, sGRP, sQB, sH, sTAG, sROT = 28, 29, 30, 31, 32, 33, 34
sKVS, sKVL, sXCC, sFLG, sFLS, sMISS = 39, 40, 50, 38, 61, 62
sPK = 59
sJ, sXCD, sRB, sCG, sF, sRETRY, sONES, sSPIN = 51, 52, 53, 54, 55, 56, 57, 58
sK1, sK2, sW2X, sW2M, sG = 59, 60, 61, 62, 63
pX, pW, pWO, pWR, pWG, pWU, pWD, pOUT, pWS = 64, 66, 68, 72, 74, 76, 78, 80, 84
sW2L, sW2G, sW2Ls, sW2Gs = 70, 71, 82, 83
GA = 7
W2A, CW, TCH, F2A, F2V, TC2, ZR = 112, 113, 114, 115, 116, 117, 120
TA, EW, TR, TD, STL, KW, ROW, CA, KR = 96, 104, 105, 106, 107, 108, 109, 110, 111
ER = TR
sOA, sOB, sTS, sSTA, sCND, sSGN, sKM = 6, 34, 48, 49, 50, 82, 83
OA, XA, PF = 124, 127, 80
SPIN = 50000
EPS = 0x3727C5AC
WSR = f"s[{sWS}:{sWS+3}]"
def f2u(x): return struct.unpack("<I", struct.pack("<f", x))[0]

DOC = r'''
; ---------------------------------------------------------------------------------------------------------------
; One persistent launch, 256 workgroups of 8 waves (one per CU); generated by a script, hand-scheduled.
;  1. LN1 + QKV: workgroup (j&15 = row block, j>>4 = K|V) multiplies 128 raw x rows by the K or V columns of both heads
;     (waves 4-7) and by the Q columns of its own head (waves 0-3, which also stream x and W into LDS). LayerNorm is
;     applied after the product: rstd * (x W - mean * colsum(W)). K/V fragments go to d_ws, Q stays in the workgroup.
;  2. Attention for (head, 128 queries): every wave takes 256 keys for all 128 queries, S^T = K Q^T on the matrix pipe,
;     rows in V give the row sums. The scores carry a fixed shift instead of the row max; the row sums are checked and
;  3. 224 workgroups: out-projection of 64 rows x 64 columns, residual, LN2 (row statistics exchanged between the seven
;  4. 28 workgroups: global top two, SwiGLU on 64 hidden columns each, partial sums exchanged, the two rows written.
; marker in lines cleared earlier in the launch. Plain stores are used for a hand-off only after every member of the
; group has reported the same XCC id; otherwise stores are written through. All polls are bounded.
; ---------------------------------------------------------------------------------------------------------------
'''
class Vm:
    def __init__(self): self.q = []
    def add(self, tag, n=1): self.q += [tag] * n
    def wait(self, tag):
        idx = max(i for i, t in enumerate(self.q) if t == tag)
        n = len(self.q) - 1 - idx
        self.q = self.q[idx + 1:]
        return n

class G:
    def __init__(self, opt):
        self.opt = opt; self.a = Asm(); self.stamps = opt.get("stamps", False); self.n = 0
    def lab(self, p):
        self.n += 1
        return f"L{p}_{self.n}"
    def stamp(self, k, att=False):
        mode = "a" if self.opt.get("astamps") else "c" if self.opt.get("cstamps") else "s" if self.opt.get("sstamps") else "e" if self.opt.get("estamps") else False
        if att is True: att = "a"
        if 0 < k < 8 and att != mode: return
        if self.stamps: self.a(f"{'s_memtime' if self.opt.get('cyc') else 's_memrealtime'} s[{86+2*(k%8)}:{87+2*(k%8)}]")
    def flush_stamps(self, base, n, final=True):
        a = self.a
        if not self.stamps: return
        a("s_waitcnt lgkmcnt(0)")
        for k in range(base, base + n): a(f"v_writelane_b32 v125, s{86+2*(k%8)}, {k}")
        if not final: return
        if self.opt.get("probe"):
            k, wv, wg = [int(x) for x in self.opt["probe"].split(",")]
            l1, l2 = self.lab("pr"), self.lab("prx")
            a(f"""s_cmp_eq_u32 s2, {wg}
            s_cbranch_scc0 {l2}
            s_cmp_eq_u32 s{sWAVE}, {wv}
            s_cbranch_scc0 {l2}
            s_nop 4
            v_readlane_b32 s35, v125, 0
            v_readlane_b32 s36, v125, {k}
            s_sub_u32 s36, s36, s35
            s_min_u32 s36, s36, 6000
            s_lshl_b32 s36, s36, 2
            s_add_u32 s36, s36, {self.opt.get("pspan", 4000)}
            {l1}:
            s_memrealtime s[86:87]
            s_waitcnt lgkmcnt(0)
            s_sub_u32 s37, s86, s35
            s_cmp_lt_u32 s37, s36
            s_cbranch_scc1 {l1}
            {l2}:""")
            return
        a(f"s_lshl_b32 s35, s2, 3\ns_add_u32 s35, s35, s{sWAVE}\ns_lshl_b32 s35, s35, 7\ns_add_u32 s35, s35, {WS_DBG + 0x300000}")
        a(f"v_lshlrev_b32 v126, 2, v2\ns_mov_b32 exec_hi, 0\nbuffer_store_dword v125, v126, {WSR}, s35 offen {self.opt.get('ds', '')}")
    def spin_guard(self, out):
        self.a(f"s_sub_u32 s{sSPIN}, s{sSPIN}, 1\ns_bitcmp1_b32 s{sSPIN}, 31\ns_cbranch_scc1 {out}")
    def rbf(self, dst, src):
        self.a(f"v_cvt_pk_bf16_f32 v{dst}, v{src}, v{src}\nv_lshlrev_b32 v{dst}, 16, v{dst}")
    def ln_stats(self, s1, s2, nmb, rstd, t):
        a = self.a
        a(f"""v_mul_f32 v{s1}, {hex(f2u(1/448))}, v{s1}
        v_mul_f32 v{s2}, {hex(f2u(1/448))}, v{s2}
        v_fma_f32 v{s2}, -v{s1}, v{s1}, v{s2}
        v_max_f32 v{s2}, 0, v{s2}
        v_cvt_pk_bf16_f32 v{t}, v{s2}, -v{s1}
        v_lshlrev_b32 v{s2}, 16, v{t}
        v_add_f32 v{s2}, {hex(EPS)}, v{s2}""")
        self.rbf(s2, s2)
        a(f"v_sqrt_f32 v{s2}, v{s2}\nv_and_b32 v{nmb}, 0xffff0000, v{t}")
        self.rbf(s2, s2)
        a(f"v_rcp_f32 v{rstd}, v{s2}")
    def allred32(self, pairs):
        a = self.a
        for r, t in pairs: a(f"v_mov_b32 v{t}, v{r}")
        for r, t in pairs: a(f"v_permlane32_swap_b32 v{t}, v{r}")
        for r, t in pairs: a(f"v_add_f32 v{r}, v{t}, v{r}")
    def dual(self, lines, cond=sLOC, inline=False):
        a = self.a
        if self.opt.get("force") == "global":
            for l in lines: a(l.replace("@", "sc1").replace("#", "128"))
            return
        l1, l2 = self.lab("glob"), self.lab("join")
        a(f"s_cmp_eq_u32 s{cond}, 0\ns_cbranch_scc1 {l1}")
        for l in lines: a(l.replace("@", self.opt.get("lst", "").replace("_", " ")).replace("#", "0"))
        if inline:
            a(f"s_branch {l2}\n{l1}:")
            for l in lines: a(l.replace("@", "sc1").replace("#", "128"))
            a(f"{l2}:")
            return
        a(f"{l2}:")
        self.ool.append(f"{l1}:\n" + "\n".join(l.replace("@", "sc1").replace("#", "128") for l in lines) + f"\ns_branch {l2}")
    def xcc_load(self, d, t):
        self.a(f"""v_and_b32 v{t}, 31, v2
        v_lshlrev_b32 v{t}, 3, v{t}
        s_lshl_b32 s35, s{sXCD}, 8
        s_add_u32 s35, s35, {WS_XCC}
        buffer_load_dwordx2 v[{d}:{d+1}], v{t}, {WSR}, s35 offen sc1""")
    def xcc_eval(self, d):
        self.a(f"""v_cmp_ne_u32 vcc, s{sTAG}, v{d}
        v_cmp_ne_u32 s[36:37], s{sXCC}, v{d+1}
        s_or_b64 vcc, vcc, s[36:37]
        s_cselect_b32 s{sLOC}, 0, 1""")
    def tr_addr(self, d):
        self.a(f"""v_lshrrev_b32 v4, 5, v2
        v_bfe_u32 v5, v2, 2, 2
        v_lshl_add_u32 v6, v4, 3, v5
        v_bfe_u32 v{d}, v2, 4, 1
        v_and_b32 v25, 3, v2
        v_lshl_add_u32 v{d}, v{d}, 2, v25
        v_add_u32 v25, 2, v{d}
        v_lshrrev_b32 v25, 3, v25
        v_xor_b32 v{d}, v{d}, v25
        v_lshlrev_b32 v25, 3, v{d}
        v_lshl_add_u32 v{d}, v6, 7, v25
        v_lshrrev_b32 v5, 1, v5
        v_lshl_add_u32 v{d}, v5, 6, v{d}""")
    def x_addr(self, XR):
        self.a(f"""v_and_b32 v3, 31, v2
        v_lshrrev_b32 v4, 5, v2
        v_bfe_u32 v5, v2, 1, 3
        v_xor_b32 v5, v5, v4
        v_lshlrev_b32 v5, 4, v5
        v_lshl_add_u32 v5, v3, 7, v5
        v_add_u32 v{XR}, s43, v5
        v_xor_b32 v{XR+1}, 32, v{XR}
        v_xor_b32 v{XR+2}, 64, v{XR}
        v_xor_b32 v{XR+3}, 96, v{XR}
        v_lshlrev_b32 v119, 4, v4
        v_lshl_add_u32 v119, v3, 5, v119
        v_add_u32 v119, {L_CS}, v119""")
    def scale_pack(self, c, mul, mul_vec, out, pk=True):
        a = self.a
        if not pk:
            for p in range(8):
                for e in (2*p, 2*p + 1): a(f"v_mul_f32 v{c+e}, v{c+e}, v{mul + e if mul_vec else mul}")
                a(f"v_cvt_pk_bf16_f32 v{out+p}, v{c+2*p}, v{c+2*p+1}")
            return
        for p in range(8):
            if mul_vec: a(f"v_pk_mul_f32 v[{c+2*p}:{c+2*p+1}], v[{c+2*p}:{c+2*p+1}], v[{mul+2*p}:{mul+2*p+1}]")
            else: a(f"v_pk_mul_f32 v[{c+2*p}:{c+2*p+1}], v[{c+2*p}:{c+2*p+1}], v[{mul}:{mul+1}] op_sel_hi:[1,0]")
        for p in range(8): a(f"v_cvt_pk_bf16_f32 v{out+p}, v{c+2*p}, v{c+2*p+1}")
    def roles(self, grp, t=3):
        a = self.a
        KH = {"own": f"s_lshr_b32 s36, s{sXCD}, 2\ns_xor_b32 s36, s36, {1 - grp}",
              "cg": f"s_and_b32 s36, s{sCG}, 1\ns_xor_b32 s36, s36, {grp}",
              "no": f"s_mov_b32 s36, {grp}"}[self.opt.get("kh", "own")]
        a(f"""s_mul_i32 s35, s{sJ}, 37
        s_lshr_b32 s35, s35, 8
        s_mul_i32 s36, s35, 7
        s_sub_u32 s{sCG}, s{sJ}, s36
        s_lshl_b32 s36, s{sXCD}, 2
        s_add_u32 s{sF}, s36, s{sCG}
        s_min_u32 s35, s35, 3
        s_add_u32 s{sRB}, s36, s35
        s_lshl_b32 s35, s{sH}, 3
        s_add_u32 s35, s35, s{sRT}
        s_lshl_b32 s36, s35, 12
        s_add_u32 s{sKVS}, s36, {WS_KV + grp*4*4096}
        s_lshl_b32 s35, s{sH}, 6
        s_add_u32 s35, s35, s{sRT}
        s_lshl_b32 s36, s{sQB}, 2
        s_add_u32 s35, s35, s36
        s_lshl_b32 s36, s35, 11
        s_add_u32 s{sOO}, s36, {WS_O + grp*1024}
        s_lshl_b32 s36, s35, 8
        s_add_u32 s{sF2}, s36, {WS_FLAG2 + grp*128}
        s_lshl_b32 s36, s{sRB}, 1
        s_lshr_b32 s35, s{sRT}, 1
        s_add_u32 s35, s35, s36
        s_lshl_b32 s35, s35, 8
        {KH}
        s_lshl_b32 s36, s36, 17
        s_add_u32 s35, s35, s36
        s_add_u32 s{sF2C}, s35, {WS_FLAG2}
        v_bfe_u32 v1, v2, 1, 3
        v_and_b32 v{t}, 1, v2
        v_lshlrev_b32 v1, 14, v1
        v_lshl_add_u32 v{F2A}, v{t}, 7, v1
        s_mul_i32 s35, s{sWAVE}, 12288
        v_add_u32 v{CW}, s35, v{GA}
        v_mov_b32 v{ZR}, 0
        v_mov_b32 v{ZR+1}, 0
        v_mov_b32 v{ZR+2}, 0
        v_mov_b32 v{ZR+3}, 0
        s_lshl_b32 s35, s{sXCD}, 2
        s_add_u32 s35, s35, s{sRT}
        s_lshl_b32 s35, s35, 8
        s_add_u32 s{sFLG}, s35, {WS_FLAG}
        s_mul_i32 s35, s{sQB}, 43
        s_lshr_b32 s35, s35, 8
        s_mul_i32 s35, s35, 6
        s_sub_u32 s{sKVL}, s{sQB}, s35
        s_lshl_b32 s35, s{sRB}, 2
        s_add_u32 s35, s35, s{sRT}
        s_lshl_b32 s36, s35, 4
        v_lshrrev_b32 v1, 3, v2
        v_mul_u32_u24 v{W2A}, 896, v1
        s_mulk_i32 s36, 896
        v_and_b32 v{t}, 0x70, v{GA}
        v_add3_u32 v{XA}, v{W2A}, v{t}, s36
        s_and_b32 s36, s{sRT}, 1
        s_lshl_b32 s37, s36, 6
        v_xor_b32 v{t}, s37, v{t}
        v_and_b32 v1, 16, v2
        v_lshlrev_b32 v1, 1, v1
        v_xor_b32 v{t}, v1, v{t}
        v_add_u32 v{W2A}, v{W2A}, v{t}
        s_lshl_b32 s36, s36, 8
        v_and_b32 v1, 0xf0, v{GA}
        v_and_b32 v{t}, 0x300, v{GA}
        v_lshl_add_u32 v1, v{t}, 1, v1
        v_add_u32 v{OA}, s36, v1
        s_lshl_b32 s{sW2G}, s{sCG}, 7
        s_mul_i32 s36, s{sWAVE}, {7*896}
        s_mul_i32 s{sW2L}, s{sWAVE}, 896""")
        srd(a, sW2, pWO, 401408)
        a(f"""s_lshl_b32 s37, s{sJ}, 3
        s_add_u32 s37, s37, s{sWAVE}
        s_mulk_i32 s37, {13*128}
        v_min_u32 v1, 12, v2
        v_lshl_add_u32 v{TC2}, v1, 7, s37""")
        if grp == 0:
            a(f"""s_lshl_b32 s35, s35, 11
            s_add_u32 s35, s35, s{sW2G}
            s_add_u32 s35, s35, s{sW2G}
            s_add_u32 s35, s35, {WS_STAT}
            s_lshl_b32 s37, s2, 2
            s_add_u32 s37, s37, s{sRT}
            s_lshl_b32 s37, s37, 9
            v_and_b32 v1, 3, v2
            v_lshl_add_u32 v{TCH}, v1, 7, s37
            v_and_b32 v1, 1, v2
            v_lshl_add_u32 v1, v1, 7, s35
            s_mov_b32 exec_lo, 0
            v_mov_b32 v{TCH}, v1
            s_mov_b32 exec_lo, -1
            s_add_u32 s{sW2G}, s{sW2G}, s36""")
            srd(a, sOUT, pWS, WS_SIZE)
            return
        a(f"""s_add_u32 s{sW2G}, s{sW2G}, s36
        s_lshr_b32 s35, s{sJ}, 3
        s_lshl_b32 s36, s{sXCD}, 2
        s_add_u32 s35, s35, s36
        s_min_u32 s35, s35, 27
        s_cmp_eq_u32 s{sRT}, 1
        s_cselect_b64 s[{sOUT}:{sOUT+1}], s[{pWG}:{pWG+1}], s[{pWU}:{pWU+1}]
        s_add_u32 s36, s{sRT}, 1
        s_bitcmp0_b32 s36, 1
        s_cselect_b64 s[{sOUT}:{sOUT+1}], s[{pWD}:{pWD+1}], s[{sOUT}:{sOUT+1}]
        s_mov_b32 s{sOUT+2}, 1605632
        s_mov_b32 s{sOUT+3}, 0x00020000
        s_movk_i32 s36, 128
        s_cselect_b32 s37, s36, 3584
        s_cselect_b32 s36, 57344, s36
        s_mul_i32 s36, s35, s36
        s_and_b32 s35, s{sJ}, 7
        s_mul_i32 s35, s35, 56
        s_mul_i32 s35, s35, s37
        s_add_u32 s36, s36, s35
        v_min_u32 v1, 55, v2
        v_mul_u32_u24 v1, s37, v1
        v_add_u32 v{TCH}, s36, v1""")

    def head(self):
        a = self.a; opt = self.opt
        ra, rb_, rc = [int(x) for x in opt.get("rot", "2,0,3").split(",")]
        EMU = ""
        WRT = ""
        if opt.get("st"):
            step = int(opt["st"])
            WRT = f"""s_lshl_b32 s36, s{sXCD}, 19
            s_bfe_u32 s37, s{sJ}, 0x20003
            s_lshl_b32 s37, s37, 17
            s_add_u32 s36, s36, s37
            s_and_b32 s37, s{sJ}, 7
            s_lshl_b32 s37, s37, 2
            s_add_u32 s37, s37, s{sRT}
            s_lshl_b32 s37, s37, 10
            s_add_u32 s36, s36, s37
            s_add_u32 s36, s36, {WS_KV}
            s_lshl_b32 s37, s{sXCD}, 2
            s_add_u32 s37, s37, s{sRT}
            s_lshl_b32 s37, s37, 8
            s_lshl_b32 s38, s{sRT}, 6
            s_lshl_b32 s39, s{sXCD}, 8
            s_add_u32 s38, s38, s39
            s_and_b32 s39, s{sJ}, 3
            s_lshl_b32 s39, s39, 6
            s_add_u32 s37, s37, s39
            s_add_u32 s37, s37, {WS_FLAG}
            s_add_u32 s38, s38, {WS_XCC}
            s_waitcnt lgkmcnt(0)
            s_load_dword s{sTAG}, s[{pWS}:{pWS+1}], 0
            s_add_u32 s40, s{pWS}, s36
            s_addc_u32 s41, s{pWS+1}, 0
            s_load_dword s42, s[{pWS}:{pWS+1}], s37
            s_load_dword s42, s[{pWS}:{pWS+1}], s38
            """ + "\n".join(f"s_load_dword s42, s[40:41], {k}" for k in range(0, 1024 if step != 1024 else 0, step))
        if opt.get("emu"):
            nq = int(opt["emu"]); lq = nq.bit_length() - 1; gx = 16 // nq; lg = gx.bit_length() - 1
            EMU = f"""s_and_b32 s36, s{sXCD}, {gx - 1}
            s_lshl_b32 s36, s36, {lq}
            s_and_b32 s{sQB}, s{sJ}, {nq - 1}
            s_add_u32 s{sQB}, s{sQB}, s36
            s_lshr_b32 s36, s{sXCD}, {lg}
            s_lshr_b32 s35, s{sJ}, {lq}
            s_mul_i32 s{sH}, s36, {32 // nq}
            s_add_u32 s{sH}, s{sH}, s35
            s_lshr_b32 s{sG}, s{sH}, 1
            s_and_b32 s36, s{sH}, 1
            s_lshl_b32 s36, s36, 3
            s_add_u32 s{sG}, s{sG}, s36"""
        a(khead(NAME + "_kernel"))
        a("s_cmp_ge_u32 s2, 256\ns_cbranch_scc1 Lexit")
        self.stamp(0)
        a(f"""s_load_dwordx16 s[64:79], s[0:1], 0
        s_load_dwordx2 s[80:81], s[0:1], 64
        s_load_dwordx2 s[84:85], s[0:1], 80
        v_lshrrev_b32 v1, 6, v0
        v_and_b32 v2, 63, v0
        v_readfirstlane_b32 s{sWAVE}, v1
        s_and_b32 s{sXCD}, s2, 7
        s_lshr_b32 s{sJ}, s2, 3
        s_and_b32 s{sQB}, s{sJ}, 15
        s_lshr_b32 s35, s{sJ}, 4
        s_lshl_b32 s36, s{sXCD}, 1
        s_add_u32 s{sH}, s36, s35
        s_lshl_b32 s36, s35, 3
        s_add_u32 s{sG}, s36, s{sXCD}
        {EMU}
        s_and_b32 s{sRT}, s{sWAVE}, 3
        s_lshr_b32 s{sGRP}, s{sWAVE}, 2
        s_cmp_eq_u32 s{sGRP}, 0
        s_cbranch_scc1 Lload
        {WRT}
        ; waves that have no data yet hop over the code (EXEC = 0, branches only) to bring it into the instruction cache
        @TOUR
        s_branch Lcomp
        Lload:
        s_mul_i32 s36, s{sXCD}, {ra}
        s_mul_i32 s35, s35, {rb_}
        s_add_u32 s36, s36, s35
        s_mul_i32 s35, s{sQB}, {rc}
        s_add_u32 s36, s36, s35
        s_mul_i32 s37, s36, 37
        s_lshr_b32 s37, s37, 8
        s_mul_i32 s37, s37, 7
        s_sub_u32 s{sROT}, s36, s37""")
    def consts(self):
        self.a(f"""s_mov_b32 s{sSPIN}, {self.opt.get("spin", SPIN)}
        s_mov_b32 s{sRETRY}, {-1 if self.opt.get('linst') else 0}
        s_mov_b32 s{sONES}, 0x3f803f80
        v_lshlrev_b32 v{GA}, 4, v2""")
        if self.stamps: self.a("v_mov_b32 v125, 0")
    def epoch_to_tag(self):
        self.a(f"s_mul_i32 s{sTAG}, s{sTAG}, 0x9e3779b1\ns_add_u32 s{sTAG}, s{sTAG}, 0x7f4a7c15")

    def loader(self):
        a = self.a; stamp = self.stamp
        self.a("; ==== waves 0-3: stream x / W into LDS, column sums, Q projection")
        XA, WA, QA = 8, 12, 14
        a(f"""v_lshrrev_b32 v3, 3, v2
        v_and_b32 v4, 7, v2
        v_lshrrev_b32 v5, 4, v2
        v_xor_b32 v6, v4, v5
        v_mul_u32_u24 v15, 896, v3
        v_lshl_add_u32 v{XA}, v6, 4, v15
        v_xor_b32 v6, 4, v6
        v_lshl_add_u32 v{XA+1}, v6, 4, v15
        v_add_u32 v{XA+2}, {2*6144}, v{XA}
        v_add_u32 v{XA+3}, {3*6144}, v{XA+1}
        v_add_u32 v{XA+1}, {6144}, v{XA+1}
        v_and_b32 v4, 3, v2
        v_lshlrev_b32 v4, 4, v4
        v_min_u32 v4, 40, v4
        v_lshrrev_b32 v6, 2, v2
        v_mul_u32_u24 v15, 2688, v6
        v_add_u32 v{QA}, v15, v4
        v_xor_b32 v6, v6, v5
        v_and_b32 v6, 1, v6
        v_mul_u32_u24 v6, 56, v6
        v_mul_u32_u24 v15, 2688, v3
        v_add3_u32 v{WA}, v15, v6, v4
        v_add_u32 v{WA+1}, {8*2688-1024}, v{WA}
        s_mul_i32 s48, s{sQB}, 114688
        s_mul_i32 s35, s{sRT}, 28672
        s_add_u32 s48, s48, s35
        s_mul_i32 s41, s{sRT}, {16*2688}
        s_mul_i32 s42, s{sH}, 56
        s_add_u32 s42, s42, s41
        s_mul_i32 s35, s{sG}, 112
        s_add_u32 s41, s41, s35
        s_add_u32 s41, s41, 896
        s_lshl_b32 s43, s{sRT}, 12
        s_lshl_b32 s44, s{sRT}, 11
        s_lshl_b32 s45, s{sRT}, 10
        s_mov_b32 s46, s{sROT}
        s_mov_b32 s{sX+2}, 1835008
        s_mov_b32 s{sX+3}, 0x00020000
        s_mov_b32 s{sW+2}, 1204224
        s_mov_b32 s{sW+3}, 0x00020000""")
        def touch_addr():
            FX = ""
            if "f" in self.opt.get("lt", ""):
                FX = f"""s_and_b32 s35, s{sJ}, 3
                s_lshl_b32 s35, s35, 6
                s_add_u32 s36, s35, s47
                s_add_u32 s35, s35, s49
                s_load_dword s61, s[{pWS}:{pWS+1}], s35
                s_load_dword s61, s[{pWS}:{pWS+1}], s36"""
            if "r" in self.opt.get("lt", ""):
                FX += f"""
                s_and_b32 s35, s{sJ}, 3
                s_lshl_b32 s35, s35, 2
                s_add_u32 s35, s35, s{sRT}
                s_min_u32 s35, s35, 13
                s_lshl_b32 s35, s35, 6
                s_load_dword s61, s[{pWR}:{pWR+1}], s35"""
            a(f"""s_lshl_b32 s35, s{sXCD}, 16
            s_lshr_b32 s36, s{sJ}, 4
            s_lshl_b32 s36, s36, 19
            s_add_u32 s35, s35, s36
            s_lshl_b32 s36, s{sQB}, 12
            s_add_u32 s35, s35, s36
            s_add_u32 s35, s35, s45
            s_add_u32 s35, s35, {WS_KV}
            v_and_b32 v28, 7, v2
            v_lshl_add_u32 v29, v28, 7, s35
            {f"s_load_dword s61, s[{pWS}:{pWS+1}], s35" if "k" in self.opt.get("lt", "") else ""}
            s_lshl_b32 s35, s{sXCD}, 2
            s_add_u32 s35, s35, s{sRT}
            s_lshl_b32 s35, s35, 8
            s_add_u32 s49, s35, {WS_FLAG}
            s_lshl_b32 s36, s{sXCD}, 8
            s_add_u32 s47, s36, {WS_XCC}
            {FX}
            v_and_b32 v28, 1, v2
            s_mov_b32 exec_lo, 0
            v_lshl_add_u32 v29, v28, 7, s49
            s_mov_b32 exec_hi, 0xffff
            v_lshl_add_u32 v29, v28, 7, s47
            s_mov_b64 exec, -1""")
        PRE = self.opt.get("pre", "late"); self.opt.setdefault("lt", "f"); self.opt.setdefault("tl", "4")
        if PRE == "first": touch_addr()
        a(f"s_mov_b32 s{sWS+2}, {WS_SIZE}\ns_mov_b32 s{sWS+3}, 0x00020000")
        stamp(1, "s")
        a(f"s_waitcnt lgkmcnt(0)\ns_mov_b64 s[{sX}:{sX+1}], s[{pX}:{pX+1}]\ns_mov_b64 s[{sW}:{sW+1}], s[{pW}:{pW+1}]\ns_mov_b64 s[{sWS}:{sWS+1}], s[{pWS}:{pWS+1}]")
        stamp(2, "s")
        vm = Vm()
        def touch():
            if not self.opt.get("nokvt") and int(self.opt.get("st", 9999)) > 1024: a(f"buffer_load_dword v118, v29, {WSR}, 0 offen sc1"); vm.add("pre")
        def adv(r): a(f"s_add_u32 s{r}, s{r}, 1\ns_cmp_eq_u32 s{r}, 7\ns_cselect_b32 s{r}, 0, s{r}")
        def issue_chunk(i):
            a(f"""s_mul_i32 s35, s46, {64*2688}
            s_add_u32 s35, s35, s41
            s_add_u32 m0, s44, {L_W + (i % 4) * 8192}
            s_lshl_b32 s36, s46, 7
            buffer_load_dwordx4 v{WA}, s[{sW}:{sW+3}], s35 offen lds
            buffer_load_dwordx4 v{WA+1}, s[{sW}:{sW+3}], s35 offen offset:1024 lds
            s_add_u32 m0, s43, {(i % 4) * 16384}
            s_add_u32 s36, s36, s48""")
            for n in range(4): a(f"buffer_load_dwordx4 v{XA+n}, s[{sX}:{sX+3}], s36 offen offset:{n*1024} lds")
            if i < 6: adv(46)
            vm.add(("c", i), 6)
        def issue_q(i):
            a(f"""s_mul_i32 s35, s{sROT}, {64*2688}
            s_add_u32 m0, s45, {L_W2 + i * 4096}
            s_add_u32 s35, s35, s42
            buffer_load_dwordx4 v{QA}, s[{sW}:{sW+3}], s35 offen lds""")
            if i < 6: adv(sROT)
            vm.add(("q", i))
        LA = 2
        XF, QW, QC = 128, 80, 64
        nowait = [False]
        def qchunks(i0, i1, hook=lambda n: None):
            steps = [(i, j) for i in range(i0, i1) for j in range(4)]
            def rd(n):
                i, j = steps[n]; w = (80, 84, 88, 92, 240, 244, 248, 252)[n % 8]
                for s in range(2): a(f"ds_read_b64_tr_b16 v[{w+2*s}:{w+2*s+1}], v26 offset:{i*4096 + j*1024 + s*256}")
            AH = 6
            for n in range(min(AH, len(steps))): rd(n)
            for n, (i, j) in enumerate(steps):
                left = min(AH - 1, len(steps) - 1 - n)
                if not nowait[0]: a(f"s_waitcnt lgkmcnt({2*left})")
                w = (80, 84, 88, 92, 240, 244, 248, 252)[n % 8]; x = XF + 16*i + 4*j
                a(f"{MF} v[{QC}:{QC+15}], v[{w}:{w+3}], v[{x}:{x+3}], {'0' if i + j == 0 else f'v[{QC}:{QC+15}]'}")
                if n + AH < len(steps): rd(n + AH)
                hook(n)
        def arrive(k): a(f"s_mov_b64 exec, 1\nds_add_u32 v21, v20 offset:{4*k}\ns_mov_b64 exec, -1")
        def await_(k, n):
            l = self.lab("cnt")
            a(f"{l}:\nds_read_b32 v19, v21 offset:{4*k}\ns_waitcnt lgkmcnt(0)\nv_cmp_gt_u32 vcc, {n}, v19\ns_cbranch_vccnz {l}")
        a(f"s_load_dword s{sTAG}, s[{pWS}:{pWS+1}], 0")
        ORD = self.opt.get("ord", "0|1q")
        def run(seq):
            for ch in seq:
                if ch == "t": touch()
                elif ch == "q": issue_q(0)
                elif ch == "m":
                    a(f"""s_add_u32 s35, s{sXCD}, 1
                    s_and_b32 s36, s35, 6
                    s_cbranch_scc1 Lnomw
                    s_and_b32 s35, s35, 8
                    s_lshl_b32 s35, s35, 2
                    s_add_u32 s35, s35, s{sJ}
                    s_lshl_b32 s35, s35, 14
                    s_add_u32 s35, s35, s43
                    s_add_u32 s35, s35, {WS_KV}
                    v_and_b32 v15, 31, v2
                    v_lshlrev_b32 v15, 7, v15
                    buffer_load_dword v118, v15, {WSR}, s35 offen sc1
                    Lnomw:""")
                else: issue_chunk(int(ch))
        run(ORD.split("|")[0])
        stamp(3, "s")
        self.consts()
        if PRE != "first": touch_addr()
        a(f"""s_getreg_b32 s{sXCC}, hwreg(HW_REG_XCC_ID, 0, 4)
        v_mov_b32 v20, 0
        v_lshlrev_b32 v23, 2, v2
        v_add_u32 v21, {L_BAD}, v23
        ds_write_b32 v21, v20
        v_mov_b32 v21, {L_CNT}
        v_mov_b32 v20, 1""")
        self.x_addr(60)
        self.tr_addr(24)
        a(f"""s_add_u32 s36, s44, {L_W}
        v_add_u32 v24, s36, v24
        v_xor_b32 v31, 64, v24
        v_and_b32 v22, 15, v2
        v_lshl_add_u32 v22, v4, 4, v22
        s_lshl_b32 s35, s{sRT}, 3
        s_add_u32 s35, s35, {L_CS}
        v_lshl_add_u32 v22, v22, 5, s35
        v_lshl_add_u32 v26, v6, 6, v25
        v_add_u32 v26, {L_W2}, v26
        v_add_u32 v30, s45, v26
        v_and_b32 v27, 31, v2
        v_lshlrev_b32 v27, 3, v27
        s_lshl_b32 s35, s{sRT}, 2
        s_add_u32 s35, s35, {L_LOC}
        v_mov_b32 v18, s35
        v_mov_b32 v52, 0
        s_mov_b32 exec_lo, 0xff0000ff
        s_mov_b32 exec_hi, 0xff0000ff
        v_mov_b32 v52, s{sONES}
        s_mov_b64 exec, -1
        v_mov_b32 v53, v52
        v_mov_b32 v54, v52
        v_mov_b32 v55, v52""")
        self.roles(0)
        self.tail_addr(0, "v")
        stamp(4, "s")
        run(ORD.split("|")[1])
        for i in range(7):
            if i == 0: stamp(5, "s")
            a(f"s_waitcnt vmcnt({vm.wait(('c', i))}) lgkmcnt(0)")
            if i == 0: stamp(6, "s")
            a("s_barrier")
            if i == 0: stamp(1); stamp(7, "s")
            stamp(i + 1, "c")
            if i == 6: stamp(1, "e")
            for k in range(4): a(f"ds_read_b64_tr_b16 v[{32+2*k}:{33+2*k}], v{(24, 31)[k>>1]} offset:{(i%4)*8192 + (k&1)*512}")
            if i == 0:
                self.epoch_to_tag()
                a(f"""s_lshl_b32 s35, s{sJ}, 3
                s_add_u32 s35, s35, s47
                v_mov_b32 v16, s{sTAG}
                v_mov_b32 v17, s{sXCC}
                s_mov_b64 exec, 1
                buffer_store_dwordx2 v[16:17], v{ZR}, {WSR}, s35 offen
                s_mov_b64 exec, -1""")
                vm.add("xs")
            xr = [f"ds_read_b128 v[{XF+16*i+4*j}:{XF+16*i+4*j+3}], v{60+j} offset:{(i%4)*16384}" for j in range(4)]
            if i < 6: a("\n".join(xr))
            if 2 <= i < 6:
                for s_ in range(2): a(f"ds_read_b64_tr_b16 v[{QW+2*s_}:{QW+2*s_+1}], v26 offset:{(i-2)*1024 + s_*256}")
            XP_ = self.opt.get("xp", "early")
            if i == 3 and XP_ != "late": a(f"buffer_load_dwordx2 v[46:47], v27, {WSR}, s47 offen sc1"); vm.add("xcc")
            if i + LA <= 6: issue_chunk(i + LA)
            if str(i) == self.opt.get("ml"): run("m")
            if str(i) == self.opt.get("tl"): touch()
            if i == 4 and XP_ == "late": a(f"buffer_load_dwordx2 v[46:47], v27, {WSR}, s47 offen sc1"); vm.add("xcc")
            QE = self.opt.get("qe", "6b")
            if i == 5:
                for k in range(1, 7 if QE == "5" else 4): issue_q(k)
                if self.opt.get("tl") == "q": touch()
            if i == 6 and QE == "6":
                for k in range(4, 7): issue_q(k)
            if i == (6 if XP_ == "late" else 5):
                if "xcc" in vm.q: a(f"s_waitcnt vmcnt({vm.wait('xcc')})")
                self.xcc_eval(46)
                a(f"v_mov_b32 v19, s{sLOC}\nds_write_b32 v18, v19")
            a("s_waitcnt lgkmcnt(0)")
            for k in range(2): a(f"{M16} v[{48+8*k}:{51+8*k}], v[52:55], v[{32+4*k}:{35+4*k}], {'0' if i == 0 else f'v[{48+8*k}:{51+8*k}]'}")
            if i == 6: a("\n".join(xr))
            if 2 <= i < 6: a(f"{MF} v[{QC}:{QC+15}], v[{QW}:{QW+3}], v[{XF+4*(i-2)}:{XF+4*(i-2)+3}], {'0' if i == 2 else f'v[{QC}:{QC+15}]'}")
        def cs_pub(regs):
            for r, _ in regs: a(f"v_and_b32 v{r+1}, 0xffff0000, v{r}")
            for r, _ in regs: a(f"v_sub_f32 v{r+1}, v{r}, v{r+1}")
            for r, _ in regs: a(f"v_and_b32 v{r+2}, 0xffff0000, v{r+1}\nv_perm_b32 v{r}, v{r+1}, v{r}, s37")
            for r, _ in regs: a(f"v_sub_f32 v{r+1}, v{r+1}, v{r+2}")
            for r, k in regs: a(f"v_lshrrev_b32 v{r+1}, 16, v{r+1}\nds_write_b64 v22, v[{r}:{r+1}] offset:{1024*k}")
        a("s_mov_b32 s37, 0x07060302")
        cs_pub([(48, 0), (56, 1)])
        if QE == "6b":
            for k in range(4, 7): issue_q(k)
        if QE == "6c": issue_q(4)
        stamp(2, "e")
        M0 = self.opt.get("m0")
        a(f"s_waitcnt vmcnt({vm.wait(('q', 3)) if M0 else 63}) lgkmcnt(0)\ns_barrier")
        stamp(3, "e")
        stamp(2)
        if QE in ("7", "6c"):
            for k in range(4 if QE == "7" else 5, 7): issue_q(k)
        def cs_q(i0, i1):
            for i in range(i0, i1):
                for s_ in range(2): a(f"ds_read_b64_tr_b16 v[{32+4*(i-i0)+2*s_}:{33+4*(i-i0)+2*s_}], v30 offset:{i*4096 + s_*256}")
            a("s_waitcnt lgkmcnt(0)")
            for k in range(i1 - i0): a(f"{M16} v[48:51], v[52:55], v[{32+4*k}:{35+4*k}], {'0' if i0 + k == 0 else 'v[48:51]'}")
        QS = int(self.opt.get("qs", 4))
        if not M0:
            a(f"s_waitcnt vmcnt({vm.wait(('q', QS - 1))})")
            stamp(4, "e")
            arrive(0)
        a(f"""v_add_u32 v3, s44, v{GA}
        s_lshl_b32 s35, s{sRT}, 9
        s_add_u32 s35, s35, {L_ST}
        v_lshl_add_u32 v5, v2, 3, s35""")
        self.tail_addr(0, "s")
        a("s_mov_b32 s37, 0x07060302")
        if not M0: await_(0, 4)
        stamp(5, "e")
        self.opt.setdefault("q2", "9,11")
        if self.opt["q2"] != "no":
            ring = (80, 84, 88, 92, 240, 244, 248, 252)
            lg = Vm()
            def rq(n):
                i, j = 1 + n // 4, n % 4; w = ring[n % 8]
                for s_ in range(2): a(f"ds_read_b64_tr_b16 v[{w+2*s_}:{w+2*s_+1}], v26 offset:{i*4096 + j*1024 + s_*256}")
                lg.add(n, 2); assert len(lg.q) <= 15
            def rc(i):
                w = 32 + 4*(i % 4)
                for s_ in range(2): a(f"ds_read_b64_tr_b16 v[{w+2*s_}:{w+2*s_+1}], v30 offset:{i*4096 + s_*256}")
                lg.add(("c", i), 2); assert len(lg.q) <= 15
            def need(t):
                if t in lg.q: a(f"s_waitcnt lgkmcnt({lg.wait(t)})")
            def mq(n):
                need(n); w = ring[n % 8]; x = XF + 16 + 4*n
                a(f"{MF} v[{QC}:{QC+15}], v[{w}:{w+3}], v[{x}:{x+3}], v[{QC}:{QC+15}]")
            def mc(i):
                need(("c", i)); w = 32 + 4*(i % 4)
                a(f"{M16} v[48:51], v[52:55], v[{w}:{w+3}], {'0' if i == 0 else 'v[48:51]'}")
            def cnt(k): a(f"ds_read_b32 v19, v21 offset:{4*k}"); lg.add("cnt")
            def chk(k, c):
                need("cnt")
                a(f"v_cmp_gt_u32 vcc, {c}, v19\ns_cbranch_vccnz Lq{k}\nLq{k}x:")
                self.ool.append(f"Lq{k}:\nds_read_b32 v19, v21 offset:{4*k}\ns_waitcnt lgkmcnt(0)\nv_cmp_gt_u32 vcc, {c}, v19\ns_cbranch_vccnz Lq{k}\ns_branch Lq{k}x")
            A1, C1 = [int(x) for x in self.opt["q2"].split(",")]
            for n in range(6): rq(n)
            for n in range(12):
                mq(n)
                if n + 6 < 12: rq(n + 6)
                elif n < 10: rc(n - 6)
                if n == A1: a("s_waitcnt vmcnt(0)"); arrive(1); lg.add("a")
                if n == C1: cnt(1)
            for i in range(2): mc(i)
            chk(1, 4)
            stamp(3); stamp(6, "e")
            for n in range(12, 16): rq(n)
            for i in range(2, 4): mc(i)
            for i in range(4, 7): rc(i)
            nx = 16
            for n in range(12, 24):
                mq(n)
                while nx < 24 and nx <= n + 6 and len(lg.q) <= 11: rq(nx); nx += 1
                if n == 14:
                    for i in range(4, 7): mc(i)
                if n == 16: cs_pub([(48, 2)]); lg.add("w"); arrive(2); lg.add("a")
                if n == 20: cnt(2)
                if n == 22:
                    chk(2, 8)
                    a("ds_read_b64 v[40:41], v5\nds_read_b128 v[36:39], v119 offset:2048")
            assert nx == 24 and not lg.q
        else:
            A1 = int(self.opt.get("a1", 99))
            def h1(n):
                if n == A1: a("s_waitcnt vmcnt(0)"); arrive(1)
            qchunks(1, QS, h1)
            if A1 == 99: a("s_waitcnt vmcnt(0)"); arrive(1)
            cs_q(0, 4)
            if QS > 4: cs_q(4, QS)
            await_(1, 4)
            stamp(3); stamp(6, "e")
            cs_q(QS, 7)
            nn = 4 * (7 - QS)
            PQ = self.opt.get("pq", "2,8,10")
            fin = "ds_read_b64 v[40:41], v5\nds_read_b128 v[36:39], v119 offset:2048"
            def h(n):
                if not PQ:
                    if n == max(nn - 6, 1): cs_pub([(48, 2)])
                    if n == max(nn - 4, 2): arrive(2)
                    return
                p0, p1, p2 = [int(x) for x in PQ.split(",")]
                if n == p0: cs_pub([(48, 2)]); arrive(2)
                if n == p1: a("ds_read_b32 v19, v21 offset:8")
                if n == p2:
                    a(f"s_waitcnt lgkmcnt(0)\nv_cmp_gt_u32 vcc, 8, v19\ns_cbranch_vccnz Lq2\nLq2x:\n{fin}")
                    self.ool.append("Lq2:\nds_read_b32 v19, v21 offset:8\ns_waitcnt lgkmcnt(0)\nv_cmp_gt_u32 vcc, 8, v19\ns_cbranch_vccnz Lq2\ns_branch Lq2x")
                    nowait[0] = True
            qchunks(QS, 7, h)
            if not PQ:
                await_(2, 8)
                a(fin)
        stamp(7, "e")
        a(f"""s_waitcnt lgkmcnt(1)
        v_mul_f32 v44, {hex(f2u(math.log2(math.e) / math.sqrt(28)))}, v41
        v_mov_b32 v41, v40
        v_mov_b32 v42, v40
        v_mov_b32 v43, v40
        s_waitcnt lgkmcnt(0)
        {MF} v[{QC}:{QC+15}], v[36:39], v[40:43], v[{QC}:{QC+15}]""")
        poll = f"buffer_load_dword v26, v23, {WSR}, s{sFLG} offen sc1"
        a(poll)
        self.q_addr()
        self.scale_pack(QC, 44, False, 8)
        a(f"""s_mov_b32 exec_lo, 0
        v_mov_b32 v14, {self.opt.get('sh', '0xc220')}
        v_mov_b32 v15, 0
        s_mov_b32 exec_lo, -1
        ds_write_b128 v3, v[8:11]
        ds_write_b128 v3, v[12:15] offset:1024""")
        stamp(4)
        LB = self.opt.get("lb", "first")
        test = self.miss(26, 0) + f"\ns_cmp_eq_u32 s{sMISS}, 3"
        K0 = "\n".join(self.kv_load(0))
        if LB == "first":
            a("s_waitcnt lgkmcnt(0)\ns_barrier\ns_setprio 3\ns_branch Lpoll0a")
        else:
            a(f"s_waitcnt vmcnt(0)\n{test}\ns_cbranch_scc1 Lpoll0b\n{self.pick()}\n{K0}\ns_waitcnt lgkmcnt(0)\ns_barrier\ns_setprio 3\ns_branch Lpoll0c")
            a("Lpoll0b:\ns_waitcnt lgkmcnt(0)\ns_barrier\ns_setprio 3")
        a(f"Lpoll0:\n{poll}")
        self.spin_guard("Lpoll0x")
        a(f"Lpoll0a:\ns_waitcnt vmcnt(0)\n{test}\ns_cbranch_scc1 Lpoll0\nLpoll0x:\n{self.pick()}\n{K0}\nLpoll0c:")
        self.zero_o()
        a("s_branch Lattn")

    def compute(self):
        a = self.a; stamp = self.stamp
        XF, ACC, WF, PK = 192, 32, 64, 64
        XR, WR, QR, SC, SCR, ST = 8, 12, 14, 15, 26, 27
        S1, S2, T1, T2, NMB, RSTD, XC = 16, 17, 18, 19, 20, 22, 118
        self.a("; ==== waves 4-7: K or V projection, LN1 statistics")
        a("Lcomp:")
        a(f"s_lshl_b32 s43, s{sRT}, 12\ns_setprio {self.opt.get('cpri', 1)}")
        self.x_addr(XR)
        self.tr_addr(24)
        a(f"""v_add_u32 v{WR}, {L_W}, v24
        v_xor_b32 v{WR+1}, 64, v{WR}
        s_lshl_b32 s35, s{sRT}, 8
        s_add_u32 s35, s35, {L_SCR}
        v_lshl_add_u32 v{SC}, v2, 2, s35
        v_lshl_add_u32 v{SCR}, v4, 4, s35
        s_lshl_b32 s35, s{sRT}, 9
        s_add_u32 s35, s35, {L_ST}
        v_lshl_add_u32 v{QR}, v2, 3, s35""")
        stamp(1, "s")
        if not self.opt.get("st"): a(f"s_waitcnt lgkmcnt(0)\ns_load_dword s{sTAG}, s[{pWS}:{pWS+1}], 0")
        self.consts()
        def capture(f):
            old = self.a; self.a = Asm(); f(self.a); L = self.a.L; self.a = old
            return L
        def late(b):
            srd(b, sX, pX, 1835008); srd(b, sWS, pWS, WS_SIZE)
            self.epoch_to_tag()
            self.roles(1, 4)
            b(f"""s_and_b32 s35, s{sQB}, 7
            s_lshl_b32 s35, s35, 3
            s_add_u32 s35, s35, s{sXCD}
            s_lshl_b32 s35, s35, 2
            s_lshr_b32 s36, s{sQB}, 3
            s_add_u32 s35, s35, s36
            s_lshl_b32 s35, s35, 2
            s_add_u32 s35, s35, s{sRT}
            s_lshl_b32 s35, s35, 12
            s_lshr_b32 s36, s{sG}, 3
            s_lshl_b32 s36, s36, 11
            s_add_u32 s35, s35, s36
            s_add_u32 s46, s35, {WS_KV}
            s_add_u32 s47, s46, {8*4096}
            s_lshl_b32 s35, s{sXCD}, 2
            s_add_u32 s35, s35, s{sRT}
            s_lshl_b32 s35, s35, 8
            s_lshl_b32 s36, s{sJ}, 2
            s_add_u32 s35, s35, s36
            s_add_u32 s{sFLS}, s35, {WS_FLAG}
            s_lshl_b32 s35, s{sRT}, 2
            s_add_u32 s35, s35, {L_LOC}
            v_mov_b32 v{XC}, s35""")
            self.tail_addr(1, "s")
            self.tail_addr(1, "v")
        def atoms(L):
            out = []; hold = False
            for l in L:
                if hold: out[-1] += "\n" + l
                else: out.append(l)
                if "exec" in l: hold = "-1" not in l
            return out
        a(f"""s_cmp_ge_u32 s{sG}, 8
        s_cbranch_scc1 LcompV""")
        DA, NB, CA, CSF = (16, 17, 18, 19, 28, 29, 30, 31), 28, 119, 224
        def kloop(isV):
            order = [(j, m) for m in range(2) for j in range(4)]
            def wreg(i, j, m): return (WF, 224)[i % 2] + 8*j + 4*m
            def rlist(i):
                L = [(("x", i, j), f"ds_read_b128 v[{XF+16*(i%2)+4*j}:{XF+16*(i%2)+4*j+3}], v{XR+j} offset:{(i%4)*16384}") for j in range(4)]
                for k, (j, m) in enumerate(order):
                    for s in range(2):
                        w = wreg(i, j, m) + 2*s
                        L.append((("w", i, k), f"ds_read_b64_tr_b16 v[{w}:{w+1}], v{WR+m} offset:{(i%4)*8192 + j*2048 + s*512}"))
                return L
            def mm(c, w, x, src):
                if isV: a(f"{MF} v[{c}:{c+15}], v[{x}:{x+3}], v[{w}:{w+3}], {src}")
                else: a(f"{MF} v[{c}:{c+15}], v[{w}:{w+3}], v[{x}:{x+3}], {src}")
            BP = int(self.opt.get("bp", 4)); BPL = int(self.opt.get("bpl", 8)); CSP = int(self.opt.get("csp", 3))
            lg = Vm(); R = []
            def issue(n):
                c = 0
                while c < n and R and len(lg.q) < 15:
                    t, l = R.pop(0); a(l); lg.add(t); c += 1
                return c
            def need(t):
                assert all(u != t for u, _ in R)
                if t in lg.q: a(f"s_waitcnt lgkmcnt({lg.wait(t)})")
            def bar():
                assert not R
                a("s_waitcnt lgkmcnt(0)\ns_barrier"); lg.q = []
            LT = atoms(capture(late))
            NE = 40; NF = int(self.opt.get('nf', 7))
            for l in LT[-NE:]: a(l)
            LT = LT[:-NE]
            for e in DA: a(f"v_mov_b32 v{e}, 0")
            if self.opt.get("zc") != "late":
                for o_ in self.O: a(f"{MF} v[{o_}:{o_+15}], v[16:19], v[16:19], 0")
            stamp(5, "s"); bar(); stamp(7, "s")
            R += rlist(0)
            for i in range(7):
                issue(int(self.opt.get("li", 8)) if len(R) == 20 else 14)
                for j in range(4):
                    need(("x", i, j))
                    for e in range(4):
                        x = XF + 16*(i%2) + 4*j + e
                        a(f"v_dot2c_f32_bf16 v{DA[e]}, s{sONES}, v{x}\nv_dot2c_f32_bf16 v{DA[4+e]}, v{x}, v{x}")
                        issue(1)
                    if j == 3 and R: need(("w", i, 2)); issue(6)
                if i == 6: stamp(2, "e"); LT = capture(lambda b: stats(isV))
                bp = BP if i < 5 else BPL
                for k, (j, m) in enumerate(order):
                    if k == bp and i < 6: bar(); R += rlist(i + 1)
                    need(("w", i, k))
                    c = ACC + 16*m
                    mm(c, wreg(i, j, m), XF + 16*(i%2) + 4*j, "0" if (i == 0 and j == 0) else f"v[{c}:{c+15}]")
                    if i == 6 and k == CSP:
                        stamp(3, "e"); bar(); stamp(4, "e")
                        a(f"ds_read_b128 v[{CSF}:{CSF+3}], v{CA}\nds_read_b128 v[{CSF+4}:{CSF+7}], v{CA} offset:1024\nds_read_b32 v{XC}, v{XC}")
                    if issue(4) < 3:
                        for _ in range(6 if i == 6 else NF):
                            if LT: a(LT.pop(0))
                if bp >= 8 and i < 6: bar(); R += rlist(i + 1)
                if i == 5: stamp(1, "e"); assert not LT
            for l in LT: a(l)
            a(f"s_waitcnt lgkmcnt({5 if isV else 0})")
            for m in range(2): mm(ACC + 16*m, CSF + 4*m, NB, f"v[{ACC+16*m}:{ACC+16*m+15}]")
            a(f"""v_readfirstlane_b32 s{sLOC}, v{XC}
            s_and_b32 s35, s{sQB}, 6
            s_cselect_b32 s43, 0, {0 if self.opt.get("wt") else f"s{sLOC}"}
            ds_write2_b32 v{QR}, v{NB}, v{RSTD} offset1:1""")
        def stats(isV):
            b = self.a
            b(f"""v_add_f32 v{DA[0]}, v{DA[0]}, v{DA[1]}
            v_add_f32 v{DA[2]}, v{DA[2]}, v{DA[3]}
            v_add_f32 v{DA[4]}, v{DA[4]}, v{DA[5]}
            v_add_f32 v{DA[6]}, v{DA[6]}, v{DA[7]}
            v_add_f32 v{S1}, v{DA[0]}, v{DA[2]}
            v_add_f32 v{S2}, v{DA[4]}, v{DA[6]}""")
            self.allred32([(S1, 24), (S2, 25)])
            self.ln_stats(S1, S2, NMB, RSTD, 24)
            b(f"v_alignbit_b32 v{NB}, v{NMB}, v{NMB}, 16\nv_or_b32 v{NB}, v{NB}, v{NMB}")
            for e in range(1, 4): b(f"v_mov_b32 v{NB+e}, v{NB}")
            if isV:
                b(f"ds_write_b32 v{SC}, v{RSTD}")
                for q in range(4): b(f"ds_read_b128 v[{240+4*q}:{243+4*q}], v{SCR} offset:{q*32}")
        scale_pack = self.scale_pack
        def stores(m):
            stamp(5 + m, "e")
            if self.opt.get("linst"): a(f"v_mov_b32 v{ST}, v{GA}")
            self.dual([f"buffer_store_dwordx4 v[{PK+8*m}:{PK+8*m+3}], v{ST}, {WSR}, s{46+m} offen @",
                       f"buffer_store_dwordx4 v[{PK+8*m+4}:{PK+8*m+7}], v{ST}, {WSR}, s{46+m} offen offset:1024 @"], 43, not self.opt.get("noinl"))
        a(f"""v_bfe_u32 v3, v2, 2, 1
        v_bfe_u32 v4, v2, 3, 1
        v_and_b32 v5, 0x33, v2
        v_lshl_add_u32 v5, v3, 3, v5
        v_lshl_add_u32 v5, v4, 2, v5
        v_lshlrev_b32 v{ST}, 4, v5
""")
        kloop(False)
        stamp(1)
        for m in range(2):
            scale_pack(ACC + 16*m, RSTD, False, PK + 8*m, False)
            a(f"""s_mov_b32 exec_lo, 0
            v_mov_b32 v{PK+8*m+6}, s{sONES}
            v_mov_b32 v{PK+8*m+7}, 0x3f80
            s_mov_b32 exec_lo, -1""")
            stores(m)
        a("s_branch LcompQ")
        self.a("; ---- V variant (tokens along the accumulator registers)")
        a("LcompV:")
        a(f"""v_and_b32 v3, 31, v2
        v_mul_u32_u24 v4, 37, v3
        v_lshrrev_b32 v4, 8, v4
        v_mul_u32_u24 v5, 7, v4
        v_sub_u32 v5, v3, v5
        v_cmp_le_u32 vcc, 28, v3
        v_cndmask_b32 v4, v4, v5, vcc
        v_cndmask_b32 v5, v5, 7, vcc
        v_lshrrev_b32 v6, 1, v4
        v_and_b32 v4, 1, v4
        v_lshlrev_b32 v6, 4, v6
        v_lshl_add_u32 v6, v4, 2, v6
        v_lshrrev_b32 v4, 2, v5
        v_and_b32 v5, 3, v5
        v_lshl_add_u32 v6, v4, 3, v6
        v_add_u32 v6, v6, v5
        v_and_b32 v4, 32, v2
        v_add_u32 v6, v6, v4
        s_and_b32 s35, s{sQB}, 8
        s_lshl_b32 s35, s35, 1
        v_xor_b32 v6, s35, v6
        v_lshlrev_b32 v{ST}, 4, v6
""")
        kloop(True)
        stamp(1)
        a("s_mov_b32 exec_lo, 0xf0000000\ns_mov_b32 exec_hi, 0xf0000000")
        for p in range(16): a(f"v_mov_b32 v{PK+p}, s{sONES}")
        a("s_waitcnt lgkmcnt(0)")
        for m in range(2):
            a("s_mov_b32 exec_lo, 0x0fffffff\ns_mov_b32 exec_hi, 0x0fffffff")
            scale_pack(ACC + 16*m, 240, True, PK + 8*m, False)
            a("s_mov_b64 exec, -1")
            stores(m)
        self.a("; ---- flag the stores, wait for the first key blocks")
        a("LcompQ:")
        stamp(2); stamp(7, "e")
        a(f"""s_setprio {self.opt.get("cp2", 0)}
        v_mov_b32 v4, s{sTAG}
        v_mov_b32 v5, {L_CNT}
        v_mov_b32 v6, 1
        s_mov_b64 exec, 1
        ds_add_u32 v5, v6 offset:8
        s_mov_b64 exec, -1
        v_lshlrev_b32 v23, 2, v2""")
        self.q_addr()
        if self.opt.get("zc") == "late": self.zero_o()
        T2 = self.opt.get("t2p", "pre") if self.opt.get("tours") == "3" else None
        if T2 == "pre": a(f"s_cmp_lg_u32 s43, 0\ns_cbranch_scc1 Lno2\n@TOUR2\nLno2:")
        EP = not self.opt.get("noep")
        poll = f"buffer_load_dword v26, v23, {WSR}, s{sFLG} offen sc1"
        test = self.miss(26, 1) + f"\ns_cmp_eq_u32 s{sMISS}, 3"
        if EP: a(poll)
        a(f"s_waitcnt vmcnt({1 if EP else 0})\ns_mov_b64 exec, 1")
        self.dual([f"buffer_store_dword v4, v{ZR}, {WSR}, s{sFLS} offen offset:# @"])
        a("s_mov_b64 exec, -1")
        stamp(3)
        if EP: a(f"s_waitcnt vmcnt(1)\n{test}\ns_cbranch_scc0 Lpoll1x")
        a(f"Lpoll1:\n{poll}")
        self.spin_guard("Lpoll1x")
        a(f"s_waitcnt vmcnt(0)\n{test}\ns_cbranch_scc1 Lpoll1\nLpoll1x:\n{self.pick()}")
        stamp(4)
        K0 = self.kv_load(0); NB0 = int(self.opt.get("nb0", 4))
        if NB0: a("\n".join(K0[:NB0]))
        if T2 == "post": a("@TOUR2")
        a("s_barrier")
        if NB0 < 4: a("\n".join(K0[NB0:]))

    Q = (48, 56, 64, 72); O = (128, 144, 160, 176); KV = (192, 208, 224, 240, 80)
    def kv_load(self, kt):
        b = self.KV[kt % 5]
        if kt == 0: p = f"s_add_u32 s41, s{sKVS}, s{sPK}\n"
        elif kt == 1: p = f"s_xor_b32 s41, s{sPK}, {1 << 19}\ns_add_u32 s41, s41, s{sKVS}\n"
        else: p = f"""s_add_u32 s41, s{sKVL}, {kt}
            s_cmp_ge_u32 s41, 8
            s_cselect_b32 s35, 6, 0
            s_sub_u32 s41, s41, s35
            s_lshl_b32 s41, s41, 19
            s_add_u32 s41, s41, s{sKVS}
            """
        return [(p if j == 0 else "") + f"buffer_load_dwordx4 v[{b+4*j}:{b+4*j+3}], v{GA}, {WSR}, s41 offen offset:{j*1024} sc1" for j in range(4)]
    def tail_addr(self, grp, part):
        a = self.a
        if part == "s":
            QM = self.opt.get("qm", "no")
            QD = {"no": "s_mov_b32 s36, 0", "cg": f"s_and_b32 s36, s{sCG}, 1",
                  "own": f"s_and_b32 s36, s{sCG}, 1" if grp == 0 else f"s_bfe_u32 s36, s{sXCD}, 0x10001\ns_xor_b32 s36, s36, 1"}[QM]
            a(f"""s_sub_u32 s35, s{sF2C}, {WS_FLAG2}
            s_lshl_b32 s35, s35, 3
            s_add_u32 s35, s35, {WS_O}
            {QD}
            s_lshl_b32 s37, s36, 19
            s_sub_u32 s{sOB}, s35, s37
            s_add_u32 s{sOA}, s35, s37
            s_mul_i32 s35, s36, {4*3584}
            s_lshl_b32 s{sTS}, s35, 1
            s_bfe_u32 s36, s{sF2C}, 0x10011
            s_mulk_i32 s36, {8*3584}
            s_add_u32 s35, s35, s36""")
            for k in range(8): a(f"v_add_u32 v{TA+k}, s35, v{TA+k}")
            a(f"""s_lshl_b32 s36, s{sRB}, 6
            v_add_u32 v{ROW}, s36, v{ROW}
            s_lshl_b32 s35, s{sRT}, 4
            s_add_u32 s35, s35, s36
            s_lshl_b32 s35, s35, 7
            s_add_u32 s{sSTA}, s35, {WS_STAT}
            s_lshl_b32 s35, s{sCG}, 8
            s_lshl_b32 s36, s36, 7
            s_add_u32 s35, s35, s36
            s_add_u32 s{sCND}, s35, {WS_CAND}
            s_brev_b32 s{sSGN}, 1
            s_movk_i32 s{sKM}, 0xf800""")
            return
        a(f"""v_lshrrev_b32 v{KR}, 4, v2
        v_bfe_u32 v{KW}, v2, 2, 2
        v_and_b32 v1, 3, v2
        v_mul_u32_u24 v{ER}, 896, v{KR}
        v_lshl_add_u32 v{ER}, v1, 3, v{ER}
        v_and_b32 v1, 1, v{KR}
        v_lshl_add_u32 v{ER}, v1, 6, v{ER}
        v_lshrrev_b32 v1, 1, v{KW}
        v_lshl_add_u32 v{ER}, v1, 5, v{ER}
        v_add_u32 v{ER}, {L_W2}, v{ER}
        v_lshl_add_u32 v{TA}, v{KW}, 7, v{ER}
        v_min_u32 v{KW}, 2, v{KW}
        v_lshl_add_u32 v{TA+4}, v{KW}, 7, v{ER}""")
        for ct in range(1, 4): a(f"v_xor_b32 v{TA+ct}, {32*ct}, v{TA}\nv_xor_b32 v{TA+4+ct}, {32*ct}, v{TA+4}")
        a(f"""s_lshl_b32 s36, s{sRT}, 12
        s_add_u32 s35, s36, {L_EX}
        v_add_u32 v{EW}, s35, v{GA}
        s_add_u32 s35, s36, {L_EX + 16384}
        v_and_b32 v{ROW}, 15, v2
        v_mul_u32_u24 v{TD}, 144, v{ROW}
        v_lshl_add_u32 v{TD}, v{KR}, 3, v{TD}
        v_add_u32 v{TD}, s35, v{TD}
        v_lshrrev_b32 v1, 3, v2
        v_lshl_add_u32 v1, v1, 4, v{GA}
        v_add_u32 v{TR}, s35, v1
        v_lshlrev_b32 v{CA}, 4, v{KR}
        v_add_u32 v1, 1, v{KR}
        v_lshrrev_b32 v1, 2, v1
        v_lshl_add_u32 v{STL}, v1, 30, v{GA}
        v_lshlrev_b32 v1, 4, v{ROW}
        v_add_u32 v{KR}, {L_KEY}, v1
        s_lshl_b32 s35, s{sRT}, 4
        v_add_u32 v{ROW}, s35, v{ROW}
        v_lshlrev_b32 v{KW}, 2, v{ROW}
        v_add_u32 v{KW}, {L_KEY}, v{KW}""")
    def miss(self, v, grp=None):
        sh = f"s_lshr_b32 s35, s35, {8*grp}" if grp else "" if grp == 0 else f"s_lshl_b32 s36, s{sGRP}, 3\ns_lshr_b32 s35, s35, s36"
        return f"""v_cmp_ne_u32 vcc, s{sTAG}, v{v}
        s_and_b32 s35, vcc_lo, vcc_hi
        s_lshr_b32 s36, s35, 16
        s_or_b32 s35, s35, s36
        {sh}
        s_and_b32 s{sMISS}, s35, 3"""
    def pick(self): return f"s_and_b32 s{sPK}, s{sMISS}, 1\ns_lshl_b32 s{sPK}, s{sPK}, 19"
    def zero_o(self):
        for o in self.O: self.a(f"{MF} v[{o}:{o+15}], v[{ZR}:{ZR+3}], v[{ZR}:{ZR+3}], {self.opt.get('oi', 0)}")
    def q_addr(self):
        for p in range(4):
            self.a(f"s_add_u32 s35, s{sRT}, {p + 1}\ns_and_b32 s{44+p}, s35, 3\ns_lshl_b32 s35, s{44+p}, 11\nv_add_u32 v{16+p}, s35, v{GA}")
    def attention(self):
        a = self.a; stamp = self.stamp
        Q, O, KV = self.Q, self.O, self.KV
        S = (16, 32); IDX = 4
        PT = [O[0] + 8*i for i in range(6)]
        o = lambda k, d: int(self.opt.get(k, d))
        self.a("; ==== attention: 32 steps of 32 keys x 32 queries per wave")
        a("Lattn:")
        stamp(5); stamp(1, True)
        for p in range(4):
            for f in range(2): a(f"ds_read_b128 v[{Q[p]+4*f}:{Q[p]+4*f+3}], v{16+p} offset:{L_QX + 1024*f}")
        vm = Vm(); vm.add(("kv", 0), 4)
        RR = o("rr", 4); LW = self.opt.get("lw", "b")
        steps = [(t // 4, t % 4) for t in range(32 - 4*RR)] + [(8 - RR + t % RR, t // RR) for t in range(4*RR)]
        def qk(t):
            kt, p = steps[t]; n = S[t & 1]; k = KV[kt % 5]
            u, w = (4, 0) if not self.opt.get("noqo") else (0, 4)
            return [f"{MF} v[{n}:{n+15}], v[{k+u}:{k+u+3}], v[{Q[p]+u}:{Q[p]+u+3}], 0", f"{MF} v[{n}:{n+15}], v[{k+w}:{k+w+3}], v[{Q[p]+w}:{Q[p]+w+3}], v[{n}:{n+15}]"]
        def pv(t, f):
            kt, p = steps[t]; c = S[t & 1] + 8*f; v = KV[kt % 5] + 8 + 4*f
            return f"{SM} v[{O[p]}:{O[p]+15}], v[{v}:{v+3}], v[{c}:{c+7}], v{IDX}"
        a(f"v_mov_b32 v{IDX}, 0xdddddddd\ns_mul_i32 s36, s{sGRP}, {4*12288 + 2048}\ns_mul_i32 s37, s{sGRP}, {-8*12288}\ns_add_u32 s37, s37, {4*12288}")
        a(f"s_waitcnt vmcnt(2) lgkmcnt(6)")
        a("\n".join(qk(0)))
        for p in range(3):
            a(f"s_mul_i32 s35, s{44+p}, 12288\ns_add_u32 s35, s35, s36\nv_add_u32 v{8+2*p}, s35, v{GA}\nv_add_u32 v{9+2*p}, s37, v{8+2*p}")
        a("s_waitcnt lgkmcnt(0)")
        sd = {}
        def put(t, pos, tag, x):
            assert (t, pos) not in sd, (t, pos)
            sd[(t, pos)] = (tag, x)
        K3 = o("k3", 6)
        K1 = o("k1", 0)
        put(K1, 0, "m1", None)
        self.ool.append(f"""Lm1:
        v_lshrrev_b32 v14, 2, v{GA}
        buffer_load_dword v15, v14, {WSR}, s{sFLG} offen sc1
        s_sub_u32 s{sSPIN}, s{sSPIN}, 1
        s_bitcmp1_b32 s{sSPIN}, 31
        s_cbranch_scc1 Lm1x
        s_waitcnt vmcnt(0)
        {self.miss(15)}
        s_cbranch_scc1 Lm1
        s_branch Lm1x""")
        for j, x in enumerate(self.kv_load(1)): put(K1, 1 + j, ("kv", 1), x)
        K2 = o("k2", 3)
        put(K2 - 1, 0, "fl", f"v_lshrrev_b32 v14, 2, v{GA}\nbuffer_load_dword v15, v14, {WSR}, s{sFLG} offen sc1")
        put(K2, 0, "flc", None)
        self.ool.append(f"""Lfl:
        buffer_load_dword v15, v14, {WSR}, s{sFLG} offen sc1
        s_sub_u32 s{sSPIN}, s{sSPIN}, 1
        s_bitcmp1_b32 s{sSPIN}, 31
        s_cbranch_scc1 Lflx
        s_waitcnt vmcnt(0)
        v_cmp_ne_u32 vcc, s{sTAG}, v15
        s_and_b32 s35, vcc_lo, vcc_hi
        s_cbranch_scc1 Lfl
        s_branch Lflx""")
        for j, x in enumerate(self.kv_load(2)): put(K2, 1 + j, ("kv", 2), x)
        if self.opt.get("xc2"): put(K2 + 1, 1, "xc", f"""v_bfe_u32 v14, v{GA}, 1, 8
        s_lshl_b32 s35, s{sXCD}, 8
        s_add_u32 s35, s35, {WS_XCC}
        buffer_load_dwordx2 v[14:15], v14, {WSR}, s35 offen sc1""")
        if self.opt.get("xc2"): put(12, 0, "xce", None)
        KR = o("kr", 4)
        pat = {2: ((0, 1), (1, 1)), 3: ((0, 1), (0, 4), (1, 3)), 4: ((0, 1), (0, 3), (1, 1), (1, 3))}[KR]
        n = 0
        for kt in range(3, 8):
            for j, x in enumerate(self.kv_load(kt)):
                u = K3 + 2*(n // KR) + pat[n % KR][0]
                assert kt < 5 or u > 4*(kt - 4)
                put(u, pat[n % KR][1], ("kv", kt), x); n += 1
        put(o("tw0", 16), o("twp", 1), "t", f"buffer_load_dword v118, v{TC2}, s[{sW2}:{sW2+3}], 0 offen")
        put(o("s0", 5), 2, "clr", f"buffer_store_dwordx4 v[{ZR}:{ZR+3}], v{GA}, {WSR}, s{sOO} offen sc1")
        put(o("sf2", 14), 0, "f2", None)
        S1 = o("s1", 26)
        for n in range(8):
            put(*{1: (S1 + n, 3), 2: (S1 + n // 2, 1 + 2*(n % 2)), 3: (S1 + n // 3, (5, 1, 3)[n % 3])}[o("wr", 2)], "w2", f"""s_add_u32 m0, s{sW2L}, {L_W2 + n*8*896}
            s_add_u32 s35, s{sW2G}, {n*8*7*896}
            s_mov_b32 exec_hi, 0x00ffffff
            buffer_load_dwordx4 v{W2A}, s[{sW2}:{sW2+3}], s35 offen lds
            s_mov_b32 exec_hi, -1""")
        S2 = o("s2", 30)
        if o("wrt", 0):
            put(o("wrt", 0), 4, "t", f"""s_mov_b64 s[{sW}:{sW+1}], s[{pWR}:{pWR+1}]
            s_movk_i32 s{sW+2}, 896
            s_mov_b32 s{sW+3}, 0x00020000
            buffer_load_dword v118, v{GA}, s[{sW}:{sW+3}], 0 offen""")
        put(S2, o("s2p", 5), "f2c", f"buffer_load_dword v{F2V}, v{F2A}, {WSR}, s{sF2C} offen sc1")
        put(o("t0", 16), o("tp", 3), "t", f"buffer_load_dword v118, v{TCH}, s[{sOUT}:{sOUT+3}], 0 offen")
        ns = self.opt.get("noside", "")
        for k in list(sd):
            if sd[k][0] in ns.split(","): del sd[k]
        lds = {}
        for p in range(3):
            w = [f"ds_write_b128 v{8+2*p+(i>>1)}, v[{O[p]+4*i}:{O[p]+4*i+3}] offset:{4096*p + 1024*(i&1)}" for i in range(4)]
            if self.opt.get("w64"):
                w = [f"ds_write_b64 v{8+2*p+(i>>1)}, v[{O[p]+4*i}:{O[p]+4*i+1}] offset:{4096*p + 1024*(i&1)}\nds_write_b64 v{8+2*p+(i>>1)}, v[{O[p]+4*i+2}:{O[p]+4*i+3}] offset:{4096*p + 1024*(i&1) + 8}" for i in range(4)]
            t0 = 32 - RR*(3 - p)
            if LW == "a": pl = [(t0 + 1, i) for i in range(4)] if p < 2 else [(t0, 3), (t0, 3), (t0, 4), (t0, 4)]
            elif RR == 3: pl = [(t0, 4), (t0 + 1, 1), (t0 + 1, 4), (t0 + 2, 2)] if p < 2 else [(t0, 2), (t0, 4), (t0 + 1, 0), (t0 + 1, 2)]
            else: pl = [(t0 + i, 2) for i in range(4)] if p < 2 else [(t0, 2), (t0 + 1, 0), (t0 + 1, 4), (t0 + 2, 2)]
            for i in range(4): lds.setdefault(pl[i], []).append(w[i])
        rd = [f"ds_read_b128 v[{PT[i>>1]+4*(i&1)}:{PT[i>>1]+4*(i&1)+3}], v{CW} offset:{1024*i}" for i in range(12)]
        BA = (30, 1) if LW == "a" else (30, 4)
        rp = ((30, 1), (30, 2), (30, 2), (30, 3), (30, 4), (30, 4), (31, 0), (31, 0), (31, 1), (31, 1), (31, 2), (31, 2)) if LW == "a" else \
             ((30, 4), (30, 4), (30, 4), (31, 5), (31, 5), (31, 5), (31, 0), (31, 0), (31, 0), (31, 1), (31, 1), (31, 1))
        for i, k in enumerate(rp): lds.setdefault(k, []).append(rd[i])
        QBAR = o("qbar", 16)
        def side(t, pos):
            if (t, pos) == (QBAR, 0): a("s_barrier")
            if (t, pos) == BA and "bara" not in ns: a("s_waitcnt lgkmcnt(0)\ns_barrier")
            for x in lds.get((t, pos), []):
                if not (("ldw" in ns and "write" in x) or ("ldr" in ns and "read" in x)): a(x)
            if (t, pos) not in sd: return
            tag, x = sd[(t, pos)]
            if tag == "flc":
                a(f"s_waitcnt vmcnt({vm.wait('fl')})\nv_cmp_ne_u32 vcc, s{sTAG}, v15\ns_and_b32 s35, vcc_lo, vcc_hi\ns_cbranch_scc1 Lfl\nLflx:")
                return
            if tag == "m1":
                a(f"s_cmp_lg_u32 s{sMISS}, 0\ns_cbranch_scc1 Lm1\nLm1x:")
                return
            if tag == "xce":
                assert "xc" not in vm.q
                a(f"""s_getreg_b32 s35, hwreg(HW_REG_XCC_ID, 0, 4)
                v_cmp_ne_u32 vcc, s{sTAG}, v14
                v_cmp_ne_u32 s[36:37], s35, v15
                s_or_b64 vcc, vcc, s[36:37]
                s_cselect_b32 s{sLOC}, 0, 1""")
                return
            if tag == "f2":
                w = f"s_waitcnt vmcnt({vm.wait('clr')})\n" if "clr" in vm.q else ""
                x = f"v_mov_b32 v{F2V}, s{sTAG}\n{w}s_mov_b64 exec, 1\nbuffer_store_dword v{F2V}, v{ZR}, {WSR}, s{sF2} offen sc1\ns_mov_b64 exec, -1"
            a(x); vm.add(tag)
        seq = {"a": "e e P 5 e e e W Q0 e e e Q1 0 e e 1 e e C 2 e e 3 e 4 e",
               "c": "e e P 5 e e W Q0 e e e Q1 0 e e 1 e e e C 2 e e 3 e 4 e",
               "e": "e e e e P 5 e e e W Q0 e e e Q1 0 e 1 e e C 2 e 3 e 4 e",
               "f": "e e e P 5 e e e W Q0 e e e Q1 0 e e 1 e C 2 e e 3 e 4 e",
               "g": "e e e e P 5 e e e W Q0 0 e e e Q1 1 e e e C 2 e 3 e 4 e",
               "h": "e e P 5 e e e e W Q0 0 e e e e Q1 1 e e e e C 2 3 e 4 e"}[self.opt.get("seq", "c")]
        NT = 32
        PRI = {}
        for x in self.opt.get("pri", "0.0.3,8.8.2,13.0.1,15.4.0,16.7.3,24.0.2,28.0.1,30.0.0,30.15.1,31.9.0").split(","):
            u, v, w = [int(y) for y in x.split(".")]; PRI[(u, v)] = w
        for t in range(NT):
            c = S[t & 1]; ei = 0
            AS = [int(x) for x in self.opt.get("as", "4,8,16,24,28,31").split(",")]
            if t in AS: stamp(AS.index(t) + 2, True)
            for tok in seq.split():
                if tok == "e":
                    p = PRI.get((t, ei))
                    if p is not None: a(f"s_setprio {p}")
                    a(f"v_exp_f32 v{c+ei}, v{c+ei}"); ei += 1
                elif tok == "P":
                    if t > 0: a(pv(t - 1, 1))
                elif tok == "C": a(pv(t, 0))
                elif tok == "W":
                    if t + 1 < NT and ("kv", steps[t + 1][0]) in vm.q:
                        assert vm.q.count(("kv", steps[t + 1][0])) == 4 or all(v[0] != ("kv", steps[t + 1][0]) for k, v in sd.items() if k > (t, 0))
                        a(f"s_waitcnt vmcnt({vm.wait(('kv', steps[t + 1][0]))})")
                elif tok[0] == "Q":
                    if t + 1 < NT: a(qk(t + 1)[int(tok[1])])
                else: side(t, int(tok))
        self.a("; ---- sum the eight partial results, check the range of the row sums, normalise, publish O")
        X = O[3]
        a(f"""s_xor_b32 s35, s{sWAVE}, 4
        s_mulk_i32 s35, 12288
        {pv(NT - 1, 1)}""")
        stamp(6)
        a(f"""v_add_u32 v5, s35, v{GA}
        v_mov_b32 v6, {L_BAD}
        s_mov_b32 s36, {hex(f2u(float(self.opt.get('thr', 0.5))))}
        s_waitcnt lgkmcnt(0)""")
        def tree(i):
            p = lambda d, x, y: f"v_pk_add_f32 v[{d+2*i}:{d+2*i+1}], v[{x+2*i}:{x+2*i+1}], v[{y+2*i}:{y+2*i+1}]"
            return [p(PT[0], PT[0], PT[1]), p(PT[2], PT[2], PT[3]), p(PT[4], PT[4], PT[5]), p(PT[0], PT[0], PT[2]), p(PT[0], PT[0], PT[4]), p(X, X, PT[0])]
        t3, t2 = tree(3), tree(2)
        a("\n".join(t3[:5] + t2[:3]))
        a(f"ds_write_b128 v{CW}, v[{X+8}:{X+11}]\nds_write_b128 v{CW}, v[{X+12}:{X+15}] offset:1024")
        a(f"""{t3[5]}
        v_cmp_nge_f32 s[44:45], s36, v{X+7}
        v_cmp_nle_f32 vcc, {hex(f2u(2.0**-70))}, v{X+7}""")
        a("\n".join(t2[3:]))
        a(f"""s_or_b64 vcc, s[44:45], vcc
        s_cbranch_scc1 Lbad
        Lbadx:
        s_waitcnt vmcnt({vm.wait('f2c')}) lgkmcnt(0)
        s_barrier
        ds_read_b128 v[20:23], v5 offset:1024
        ds_read_b128 v[16:19], v5
        ds_read_b32 v26, v6""")
        a("\n".join(x for pr in zip(tree(0), tree(1)) for x in pr))
        a(f"""
        s_waitcnt lgkmcnt(2)
        v_add_f32 v23, v23, v{X+7}
        v_rcp_f32 v24, v23
        v_pk_add_f32 v[20:21], v[20:21], v[{X+4}:{X+5}]
        v_add_f32 v22, v22, v{X+6}
        s_waitcnt lgkmcnt(0)
        v_readfirstlane_b32 s35, v26
        v_pk_add_f32 v[16:17], v[16:17], v[{X}:{X+1}]
        v_pk_add_f32 v[18:19], v[18:19], v[{X+2}:{X+3}]
        v_mul_f32 v22, v22, v24
        v_pk_mul_f32 v[16:17], v[16:17], v[24:25] op_sel_hi:[1,0]
        v_pk_mul_f32 v[18:19], v[18:19], v[24:25] op_sel_hi:[1,0]
        v_pk_mul_f32 v[20:21], v[20:21], v[24:25] op_sel_hi:[1,0]
        v_cvt_pk_bf16_f32 v31, v22, -v{ZR}
        v_cvt_pk_bf16_f32 v28, v16, v17
        v_cvt_pk_bf16_f32 v29, v18, v19
        v_cvt_pk_bf16_f32 v30, v20, v21
        s_cmp_gt_u32 s35, s{sRETRY}
        s_cbranch_scc1 Lfallback
        buffer_store_dwordx4 v[28:31], v{GA}, {WSR}, s{sOO} offen sc1""")
        self.ool.append(f"Lbad:\nds_write_b32 v6, v{IDX}\ns_branch Lbadx")
        stamp(7)
        self.flush_stamps(0, 8, False)

    def fallback(self):
        a = self.a; Q = self.Q[3]
        a(f"""Lfallback:
        s_mov_b32 s{sRETRY}, -1
        s_barrier
        s_lshl_b32 s35, s{sH}, 15
        s_add_u32 s35, s35, {WS_KV}
        s_mov_b32 s36, 64
        v_mov_b32 v3, 0xff800000
        s_mov_b32 exec_lo, 0
        v_mov_b32 v{Q+6}, 0
        s_mov_b32 exec_lo, -1
        Lfb1:
        buffer_load_dwordx4 v[80:83], v{GA}, {WSR}, s35 offen sc1
        buffer_load_dwordx4 v[84:87], v{GA}, {WSR}, s35 offen offset:1024 sc1
        s_waitcnt vmcnt(0)
        {MF} v[16:31], v[80:83], v[{Q}:{Q+3}], 0
        {MF} v[16:31], v[84:87], v[{Q+4}:{Q+7}], v[16:31]
        s_sub_u32 s36, s36, 1
        s_and_b32 s37, s36, 7
        s_cselect_b32 s37, 0, {(1 << 19) - 32768}
        s_add_u32 s35, s35, s37
        s_add_u32 s35, s35, 4096""")
        for p in range(8): a(f"v_max3_f32 v3, v{16+2*p}, v{17+2*p}, v3")
        a(f"""s_cmp_lg_u32 s36, 0
        s_cbranch_scc1 Lfb1
        v_mov_b32 v5, v3
        v_permlane32_swap_b32 v5, v3
        v_max_f32 v3, v3, v5
        v_sub_f32 v3, 0, v3
        v_and_b32 v5, 0xffff0000, v3
        v_sub_f32 v3, v3, v5
        v_and_b32 v6, 0xffff0000, v3
        v_sub_f32 v3, v3, v6
        v_lshrrev_b32 v5, 16, v5
        s_mov_b32 exec_lo, 0
        v_or_b32 v{Q+6}, v5, v6
        v_lshrrev_b32 v{Q+7}, 16, v3
        s_mov_b32 exec_lo, -1
        s_lshl_b32 s35, s{sRT}, 11
        v_add_u32 v3, s35, v{GA}
        ds_write_b128 v3, v[{Q}:{Q+3}] offset:{L_QX}
        ds_write_b128 v3, v[{Q+4}:{Q+7}] offset:{L_QX + 1024}""")
        self.q_addr()
        self.zero_o()
        a("\n".join(self.kv_load(0)))
        a("s_waitcnt lgkmcnt(0)\ns_barrier\ns_branch Lattn")

    def build(self):
        import tail
        a = self.a; self.ool = []
        self.head(); self.loader(); self.compute(); self.attention()
        tail.emit(self)
        for x in self.ool: a(x)
        a("Lcoldcode:")
        self.fallback()
        a("Lexit:\ns_endpgm")
        rm = self.opt.get("rm", "").split(",")
        i0, i1, i2 = a.L.index("Lload:"), a.L.index("Lcomp:"), a.L.index("LcompQ:")
        kiss = []
        for i, l in enumerate(a.L):
            c = i1 < i < i2; ld = i0 < i < i1
            if ("dot" in rm and c and "v_dot2c" in l) or ("dots" in rm and c and "v_dot2c" in l and ", s" in l) or ("lx" in rm and ld and "ds_read_b128 v[1" in l) or ("lx" in rm and ld and "ds_read_b128 v[2" in l) \
               or ("lm" in rm and ld and "16x16x32" in l) or ("cm" in rm and c and "v_mfma" in l): continue
            kiss.append(l)
        a.L = kiss
        hazard.TRANS2 = bool(self.opt.get('t2'))
        import layout
        hdr = open(f"cdna_kernels/{NAME}.s.ref").read().split("; Override launch")[0]
        hdr += "; @launch grid=(256,1,1) block=(512,1,1) lds=163840\n"
        hdr += '.amdgcn_target "amdgcn-amd-amdhsa--gfx950"\n.text\n'
        hdr += DOC.lstrip("\n")
        if not self.opt.get("nopage"): hdr += "; never executed: places the entry point at the start of a 4 KiB page\n.p2align 12\n.fill 832, 4, 0xbf810000\n"
        lines = layout.finish(a.L, self.opt)
        return hdr + "\n".join(lines) + '\n.section .rodata,"a"\n' + kdesc(NAME + "_kernel", 256)

if __name__ == "__main__":
    opt = {}
    out = f"cdna_kernels/{NAME}.s"
    for x in sys.argv[1:]:
        if x.startswith("out="): out = x[4:]
        elif "=" in x: k, v = x.split("="); opt[k] = v
        else: opt[x] = True
    import gen
    open(out, "w").write(gen.G(opt).build())
```
